```python
import torch

def _softmax(x, axis=-1):
    return torch.softmax(x, dim=axis)
def _gelu(x):
    return torch.nn.functional.gelu(x, approximate="tanh")
def _silu(x):
    return torch.nn.functional.silu(x)
def _sigmoid(x):
    return torch.sigmoid(x)
def _layernorm(x, axis=-1, eps=1e-5):
    m = x.mean(dim=axis, keepdim=True)
    v = x.var(dim=axis, keepdim=True, unbiased=False)
    return (x - m) / torch.sqrt(v + eps)
def _scatter_add(tgt, idx, src, axis=0):
    return tgt.clone().index_add_(axis, idx, src)
def _segment_sum(src, seg, n):
    out = torch.zeros((n,) + src.shape[1:], dtype=src.dtype)
    return out.index_add_(0, seg, src)
def _pad(x, pw):
    flat = tuple(v for pair in reversed(pw) for v in pair)
    return torch.nn.functional.pad(x, flat)

kernel_name = 'parallel_sum__mha_block_cached__glu_gated_glu__decode'

def setup_inputs():

    _w = (lambda a: (lambda t: t.to(torch.bfloat16) if t.is_floating_point() else t)(torch.as_tensor(a)))
    def _A_setup():
        B, Sq, D = 8, 1, 448
        H, Sk, Dh = 16, 4096, 256
        return {
            "x": _w((lambda *s: torch.randn(*s, dtype=torch.bfloat16) * 0.05)(B, Sq, D)),
            "k_cache": _w((lambda *s: torch.randn(*s, dtype=torch.bfloat16) * 3.2)(B, H, Sk, Dh)),
            "v_cache": _w((lambda *s: torch.randn(*s, dtype=torch.bfloat16) * 1.6)(B, H, Sk, Dh)),
            "wq": _w((lambda *s: torch.randn(*s, dtype=torch.bfloat16) * 3.2)(D, H * Dh) * (D ** -0.5)),
            "wo": _w((lambda *s: torch.randn(*s, dtype=torch.bfloat16) * 1.6)(H * Dh, D) * ((H * Dh) ** -0.5)),
        }
    _A_in = _A_setup()

    def _B_setup():
        B, S, D, F = 8, 1, 448, 1792
        return {
            "x": _w((lambda *s: torch.randn(*s, dtype=torch.bfloat16) * 0.05)(B, S, D)),
            "w_gate": _w((lambda *s: torch.randn(*s, dtype=torch.bfloat16) * 0.4)(D, F)),
            "w_up": _w((lambda *s: torch.randn(*s, dtype=torch.bfloat16) * 0.05)(D, F)),
            "w_down": _w((lambda *s: torch.randn(*s, dtype=torch.bfloat16) * 0.05)(F, D)),
        }
    _B_in = _B_setup()

    return {
        "A_x": _A_in["x"],
        "A_k_cache": _A_in["k_cache"],
        "A_v_cache": _A_in["v_cache"],
        "A_wq": _A_in["wq"],
        "A_wo": _A_in["wo"],
        "B_x": _B_in["x"],
        "B_w_gate": _B_in["w_gate"],
        "B_w_up": _B_in["w_up"],
        "B_w_down": _B_in["w_down"],
    }

def reference(A_x, A_k_cache, A_v_cache, A_wq, A_wo, B_x, B_w_gate, B_w_up, B_w_down):
    def _A_ref(x, k_cache, v_cache, wq, wo):
        B, Sq, D = x.shape
        H, Dh = 16, 256
        q = (lambda x, *d: x.permute(*d))((x @ wq).reshape(B, Sq, H, Dh), 0, 2, 1, 3)
        scores = torch.einsum("bhqd,bhkd->bhqk", q, k_cache) * (Dh ** -0.5)
        p = _softmax(scores, axis=-1)
        o = torch.einsum("bhqk,bhkd->bhqd", p, v_cache)
        return (lambda x, *d: x.permute(*d))(o, 0, 2, 1, 3).reshape(B, Sq, H * Dh) @ wo

    def _B_ref(x, w_gate, w_up, w_down):
        g = torch.einsum("bsd,df->bsf", x, w_gate)
        u = torch.einsum("bsd,df->bsf", x, w_up)
        h = _sigmoid(g) * u
        return torch.einsum("bsf,fd->bsd", h, w_down)

    x = A_x
    xn = _layernorm(x, axis=-1)
    return x + _A_ref(xn, A_k_cache, A_v_cache, A_wq, A_wo) + _B_ref(xn, B_w_gate, B_w_up, B_w_down)
```

```python
import struct, sys, os

KN = "parallel_sum__mha_block_cached__glu_gated_glu__decode_kernel"
REF = "parallel_sum__mha_block_cached__glu_gated_glu__decode.s.ref"

def f32(x):
    return "0x%08x" % struct.unpack("<I", struct.pack("<f", x))[0]

LOG2E = 1.4426950408889634

class Asm:
    def __init__(self):
        self.lines = []
        self.vm = []
    def __call__(self, s):
        for l in s.strip("\n").split("\n"):
            self.lines.append("  " + l.strip() if not l.strip().endswith(":") else l.strip())
    def c(self, s):
        self.lines.append("  ; " + s)
    def vmem(self, s, tag):
        self(s); self.vm.append(tag)
    def wait_tag(self, tag):
        idx = max(i for i, t in enumerate(self.vm) if t == tag)
        n = len(self.vm) - 1 - idx
        self(f"s_waitcnt vmcnt({n})")
        self.vm = self.vm[idx+1:]
    def text(self):
        return "\n".join(self.lines) + "\n"

XN   = 0
QP   = 2048
GP   = QP + 8192
YG   = GP + 2048
OP   = YG + 16384
OPS  = 1040
ML   = OP + 8*OPS
FLAG = ML + 64
YA   = FLAG + 64
LDS_BYTES = YA + 16384

sX_, sK_, sV_, sWQ_, sWO_, sBX_, sWG_, sWU_ = 4, 6, 8, 10, 12, 14, 16, 18
sWD_, sOUT_, sDBG_, sWS_ = 20, 22, 24, 26
dK, dV, dWQ, dGU, dX, dWO, dWD, dWS = 28, 32, 36, 40, 44, 48, 52, 56
sW, sB, sH, sS, sJ, sIT, sOFF, sT0, sT1, sMASK, sT2, sT3 = 60, 61, 62, 63, 64, 65, 66, 67, 68, 69, 70, 71
sP = 72
vLANE, vL16, vWQO, vGUO, vA0, vA1 = 1, 2, 3, 4, 5, 6
vQ = 8
vO = 12
vM, vL = 20, 21
vT = 22
vFREE = 63
KA, VA, KB, VB = 64, 80, 96, 112
W = 128

def srd(a, d, base, off_s, nrec):
    if off_s is None:
        a(f"s_mov_b32 s{d}, s{base}")
        a(f"s_mov_b32 s{d+1}, s{base+1}")
    else:
        a(f"s_add_u32 s{d}, s{base}, {off_s}")
        a(f"s_addc_u32 s{d+1}, s{base+1}, 0")
    a(f"s_mov_b32 s{d+2}, {nrec}")
    a(f"s_mov_b32 s{d+3}, 0x00020000")

def dpp(op, d, s0, s1, ctrl, rm="0xf", bm="0xf"):
    return f"{op}_dpp v{d}, v{s0}, v{s1} {ctrl} row_mask:{rm} bank_mask:{bm}"

def reduce64(a, op, v, sdst):
    for ctrl, rm in (("quad_perm:[1,0,3,2]", "0xf"), ("quad_perm:[2,3,0,1]", "0xf"), ("row_half_mirror", "0xf"),
                     ("row_mirror", "0xf"), ("row_bcast:15", "0xa"), ("row_bcast:31", "0xc")):
        a("s_nop 1")
        a(dpp(op, v, v, v, ctrl, rm))
    a("s_nop 0")
    a(f"v_readlane_b32 s{sdst}, v{v}, 63")

def pkfma_bcast(acc, u, m, sgpr=False):
    r = "s" if sgpr else "v"
    base = m & ~1
    if m & 1:
        sel = "op_sel:[0,1,0] op_sel_hi:[1,1,1]"
    else:
        sel = "op_sel_hi:[1,0,1]"
    return f"v_pk_fma_f32 v[{acc}:{acc+1}], v[{u}:{u+1}], {r}[{base}:{base+1}], v[{acc}:{acc+1}] {sel}"

def axpy_row(a, acc, data, m, tmp, sgpr=False):
    for k in range(4):
        a(f"v_lshlrev_b32 v{tmp+2*k}, 16, v{data+k}")
        a(f"v_and_b32 v{tmp+2*k+1}, s{sMASK}, v{data+k}")
    for k in range(4):
        a(pkfma_bcast(acc+2*k, tmp+2*k, m, sgpr))

def bf16_round(a, v):
    a(f"v_cvt_pk_bf16_f32 v{v}, v{v}, v{v}")
    a(f"v_and_b32 v{v}, s{sMASK}, v{v}")

def stamp(a, cfg, idx):
    if cfg.get("stamps"):
        a("s_memrealtime s[96:97]")
        a("s_waitcnt lgkmcnt(0)")
        a(f"v_writelane_b32 v7, s96, {idx}")

def gen(cfg):
    KVF = cfg.get("kvflags", "nt")
    WF = cfg.get("wflags", "")
    ILV = cfg.get("ilv", 3)
    a = Asm()
    a("s_cmp_ge_u32 s2, 256")
    a("s_cbranch_scc1 L_end")
    a("s_load_dwordx16 s[4:19], s[0:1], 0")
    a("s_load_dwordx8 s[20:27], s[0:1], 64")
    if cfg.get("stamps"):
        a("v_mov_b32 v7, 0")
        a("s_memrealtime s[98:99]")
    a(f"v_and_b32 v{vLANE}, 63, v0")
    a(f"v_lshrrev_b32 v{vA0}, 6, v0")
    a(f"v_lshlrev_b32 v{vL16}, 4, v{vLANE}")
    a(f"v_readfirstlane_b32 s{sW}, v{vA0}")
    a.c("decode workgroup id: xcd=g&7, hh=(g>>3)&1, b=(g>>4)&7, s=g>>7, h=xcd*2+hh, j=h*2+s")
    a(f"s_and_b32 s{sT0}, s2, 7")
    a(f"s_bfe_u32 s{sT1}, s2, 0x10003")
    a(f"s_lshl_b32 s{sH}, s{sT0}, 1")
    a(f"s_add_u32 s{sH}, s{sH}, s{sT1}")
    a(f"s_bfe_u32 s{sB}, s2, 0x30004")
    a(f"s_lshr_b32 s{sS}, s2, 7")
    a(f"s_lshl_b32 s{sJ}, s{sH}, 1")
    a(f"s_add_u32 s{sJ}, s{sJ}, s{sS}")
    a(f"s_mov_b32 s{sMASK}, 0xffff0000")
    a.c("wq voffset = (lane>>5)*8192 + (lane&31)*16")
    a(f"v_lshrrev_b32 v{vA0}, 5, v{vLANE}")
    a(f"v_and_b32 v{vA1}, 31, v{vLANE}")
    a(f"v_lshlrev_b32 v{vWQO}, 13, v{vA0}")
    a(f"v_lshl_add_u32 v{vWQO}, v{vA1}, 4, v{vWQO}")
    a.c("K/V base offset = (b*16+h)<<21 + s<<20")
    a(f"s_lshl_b32 s{sT0}, s{sB}, 4")
    a(f"s_add_u32 s{sT0}, s{sT0}, s{sH}")
    a(f"s_lshl_b32 s{sT0}, s{sT0}, 21")
    a(f"s_lshl_b32 s{sT1}, s{sS}, 20")
    a(f"s_add_u32 s{sT0}, s{sT0}, s{sT1}")
    a(f"s_mul_i32 s{sT1}, s{sB}, 896")
    a(f"s_lshl_b32 s{sT2}, s{sH}, 9")
    a(f"s_sub_u32 s{sT3}, {448*8192}, s{sT2}")
    a(f"s_lshl_b32 s{sOFF}, s{sW}, 12")
    a(f"s_mul_i32 s{sIT}, s{sW}, {56*8192}")
    a("s_waitcnt lgkmcnt(0)")
    X4 = vT+2
    srd(a, dX, sX_, f"s{sT1}", 896)
    a.vmem(f"buffer_load_dwordx4 v[{X4}:{X4+3}], v{vL16}, s[{dX}:{dX+3}], 0 offen", "x")
    srd(a, dWQ, sWQ_, f"s{sT2}", f"s{sT3}")
    srd(a, dK, sK_, f"s{sT0}", 0x100000)
    srd(a, dV, sV_, f"s{sT0}", 0x100000)
    kv = [(KA, dK, i, "AK") for i in range(4)] + [(VA, dV, i, "AV") for i in range(4)]
    def kvload(base, d, i, tag):
        a.vmem(f"buffer_load_dwordx4 v[{base+4*i}:{base+4*i+3}], v{vL16}, s[{d}:{d+3}], s{sOFF} offen offset:{i*1024} {KVF}", tag)
    for i in range(28):
        a.vmem(f"buffer_load_dwordx4 v[{W+4*i}:{W+4*i+3}], v{vWQO}, s[{dWQ}:{dWQ+3}], s{sIT} offen {WF}", f"wq{i}")
        if i < 27:
            a(f"s_add_u32 s{sIT}, s{sIT}, 16384")
        if ILV and (i % ILV) == ILV-1 and kv:
            kvload(*kv.pop(0))
    while kv:
        kvload(*kv.pop(0))
    a(f"s_add_u32 s{sOFF}, s{sOFF}, 32768")
    for i in range(4): kvload(KB, dK, i, "BK")
    for i in range(4): kvload(VB, dV, i, "BV")
    a(f"s_add_u32 s{sOFF}, s{sOFF}, 32768")
    stamp(a, cfg, 1)
    a.c("remaining SRDs / offsets")
    a(f"s_cmp_lt_u32 s{sW}, 4")
    a(f"s_cselect_b32 s{dGU}, s{sWG_}, s{sWU_}")
    a(f"s_cselect_b32 s{dGU+1}, s{sWG_+1}, s{sWU_+1}")
    a(f"s_mov_b32 s{dGU+2}, {448*3584}")
    a(f"s_mov_b32 s{dGU+3}, 0x00020000")
    srd(a, dWO, sWO_, None, 4096*896)
    srd(a, dWD, sWD_, None, 1792*896)
    srd(a, dWS, sWS_, None, 0x400000)
    a.c("gu voffset = (lane>>3)*3584 + (lane&7)*16")
    a(f"v_lshrrev_b32 v{vA0}, 3, v{vLANE}")
    a(f"v_and_b32 v{vA1}, 7, v{vLANE}")
    a(f"v_mul_u32_u24 v{vGUO}, 3584, v{vA0}")
    a(f"v_lshl_add_u32 v{vGUO}, v{vA1}, 4, v{vGUO}")
    a(f"v_cmp_gt_u32 vcc, 56, v{vLANE}")
    for k in range(8):
        a(f"v_mov_b32 v{vO+k}, 0")
    a.c("flag init (any wave, same value)")
    a(f"v_mov_b32 v{vA0}, {FLAG}")
    a(f"ds_write_b32 v{vA0}, v{vO}")
    a.c("LayerNorm of x[b] (each wave redundantly)")
    E = vT+6
    S0 = vT+14
    a.wait_tag("x")
    for k in range(4):
        a(f"v_lshlrev_b32 v{E+2*k}, 16, v{X4+k}")
        a(f"v_and_b32 v{E+2*k+1}, s{sMASK}, v{X4+k}")
    a(f"v_add_f32 v{S0}, v{E}, v{E+1}")
    a(f"v_add_f32 v{S0+1}, v{E+2}, v{E+3}")
    a(f"v_add_f32 v{S0+2}, v{E+4}, v{E+5}")
    a(f"v_add_f32 v{S0+3}, v{E+6}, v{E+7}")
    a(f"v_add_f32 v{S0}, v{S0}, v{S0+1}")
    a(f"v_add_f32 v{S0+2}, v{S0+2}, v{S0+3}")
    a(f"v_add_f32 v{S0}, v{S0}, v{S0+2}")
    reduce64(a, "v_add_f32", S0, sT0)
    MEAN = S0+1; ACC = S0+2; D = S0+4
    a("s_nop 1")
    a(f"v_mov_b32 v{MEAN}, s{sT0}")
    a(f"v_mul_f32 v{MEAN}, {f32(1.0/448)}, v{MEAN}")
    for k in range(8):
        a(f"v_sub_f32 v{D+k}, v{E+k}, v{MEAN}")
    a(f"v_mul_f32 v{ACC}, v{D}, v{D}")
    for k in range(1, 8):
        a(f"v_fmac_f32 v{ACC}, v{D+k}, v{D+k}")
    a(f"v_cndmask_b32 v{ACC}, 0, v{ACC}, vcc")
    reduce64(a, "v_add_f32", ACC, sT0)
    bf16_round(a, MEAN)
    a(f"v_mov_b32 v{ACC}, s{sT0}")
    a(f"v_mul_f32 v{ACC}, {f32(1.0/448)}, v{ACC}")
    bf16_round(a, ACC)
    a(f"v_add_f32 v{ACC}, {f32(1e-5)}, v{ACC}")
    bf16_round(a, ACC)
    a(f"v_sqrt_f32 v{ACC}, v{ACC}")
    for k in range(8):
        a(f"v_sub_f32 v{D+k}, v{E+k}, v{MEAN}")
    bf16_round(a, ACC)
    a(f"v_rcp_f32 v{ACC}, v{ACC}")
    for k in range(4):
        a(f"v_cvt_pk_bf16_f32 v{X4+k}, v{D+2*k}, v{D+2*k+1}")
    for k in range(4):
        a(f"v_lshlrev_b32 v{D+2*k}, 16, v{X4+k}")
        a(f"v_and_b32 v{D+2*k+1}, s{sMASK}, v{X4+k}")
    for k in range(8):
        a(f"v_mul_f32 v{D+k}, v{D+k}, v{ACC}")
    for k in range(4):
        a(f"v_cvt_pk_bf16_f32 v{X4+k}, v{D+2*k}, v{D+2*k+1}")
    for k in range(4):
        a(f"v_lshlrev_b32 v{E+k}, 16, v{X4+k}")
        a(f"v_and_b32 v{E+4+k}, s{sMASK}, v{X4+k}")
    a(f"ds_write_b128 v{vL16}, v[{E}:{E+3}] offset:{XN}")
    a(f"ds_write_b128 v{vL16}, v[{E+4}:{E+7}] offset:{XN+1024}")
    a.c("xn multipliers for wq rows: XN + half*1024 + 112*w")
    a(f"v_lshrrev_b32 v{vA0}, 5, v{vLANE}")
    a(f"v_lshlrev_b32 v{vA0}, 10, v{vA0}")
    a(f"s_mul_i32 s{sT0}, s{sW}, 112")
    a(f"v_add_u32 v{vA0}, s{sT0}, v{vA0}")
    a("s_waitcnt lgkmcnt(0)")
    XM = 32
    for k in range(7):
        a(f"ds_read_b128 v[{XM+4*k}:{XM+4*k+3}], v{vA0} offset:{XN+16*k}")
    stamp(a, cfg, 2)
    a.c("gu soffset = (112*(w&3))*3584 + j*112")
    a(f"s_and_b32 s{sT0}, s{sW}, 3")
    a(f"s_mul_i32 s{sT0}, s{sT0}, {112*3584}")
    a(f"s_mul_i32 s{sT1}, s{sJ}, 112")
    a(f"s_add_u32 s{sT0}, s{sT0}, s{sT1}")
    a("s_waitcnt lgkmcnt(0)")
    TMP = 24
    for i in range(28):
        a.wait_tag(f"wq{i}")
        axpy_row(a, vO, W+4*i, XM+i, TMP)
        if i == 13:
            for g in range(14):
                a.vmem(f"buffer_load_dwordx4 v[{W+4*g}:{W+4*g+3}], v{vGUO}, s[{dGU}:{dGU+3}], s{sT0} offen {WF}", "gu")
                if g < 13:
                    a(f"s_add_u32 s{sT0}, s{sT0}, {8*3584}")
    a.c("w_down rows 56j+7w+i")
    a(f"s_mul_i32 s{sT0}, s{sJ}, 56")
    a(f"s_mul_i32 s{sT1}, s{sW}, 7")
    a(f"s_add_u32 s{sT0}, s{sT0}, s{sT1}")
    a(f"s_mul_i32 s{sT0}, s{sT0}, 896")
    a(f"s_add_u32 s{sT1}, s{sT0}, {4*896}")
    WD = W + 56
    for i in range(7):
        so, off = (sT0, i*896) if i < 4 else (sT1, (i-4)*896)
        a.vmem(f"buffer_load_dwordx4 v[{WD+4*i}:{WD+4*i+3}], v{vL16}, s[{dWD}:{dWD+3}], s{so} offen offset:{off} {WF}", "wd")
    a.c("combine halves, write q partial")
    a(f"v_and_b32 v{vA1}, 31, v{vLANE}")
    a(f"v_lshlrev_b32 v{vA1}, 5, v{vA1}")
    a(f"v_lshrrev_b32 v{vA0}, 5, v{vLANE}")
    a(f"v_lshl_add_u32 v{vA1}, v{vA0}, 4, v{vA1}")
    a(f"s_lshl_b32 s{sT0}, s{sW}, 10")
    a(f"v_add_u32 v{vA0}, s{sT0}, v{vA1}")
    for k in range(4):
        a(f"v_permlane32_swap_b32 v{vO+k}, v{vO+4+k}")
    a("s_nop 0")
    for k in range(4):
        a(f"v_add_f32 v{vO+k}, v{vO+k}, v{vO+4+k}")
    a(f"ds_write_b128 v{vA0}, v[{vO}:{vO+3}] offset:{QP}")
    a("s_waitcnt lgkmcnt(0)")
    a("s_barrier")
    for w2 in range(8):
        a(f"ds_read_b128 v[{24+4*w2}:{24+4*w2+3}], v{vA1} offset:{QP+1024*w2}")
    for k in range(8):
        a(f"v_mov_b32 v{vO+k}, 0")
    a(f"v_mov_b32 v{vM}, {f32(-1e30)}")
    a(f"v_mov_b32 v{vL}, 0")
    for w2 in range(1, 8):
        a(f"s_waitcnt lgkmcnt({7-w2})")
        a(f"v_pk_add_f32 v[24:25], v[24:25], v[{24+4*w2}:{24+4*w2+1}]")
        a(f"v_pk_add_f32 v[26:27], v[26:27], v[{24+4*w2+2}:{24+4*w2+3}]")
    a(f"v_cvt_pk_bf16_f32 v{vQ}, v24, v25")
    a(f"v_cvt_pk_bf16_f32 v{vQ+1}, v26, v27")
    a(f"v_mov_b32 v{vQ+2}, v{vQ}")
    a(f"v_mov_b32 v{vQ+3}, v{vQ+1}")
    a("s_nop 1")
    a(f"v_permlane32_swap_b32 v{vQ}, v{vQ+2}")
    a(f"v_permlane32_swap_b32 v{vQ+1}, v{vQ+3}")
    stamp(a, cfg, 3)
    a(f"s_mov_b32 s{sIT}, 0")
    CZ = f32(0.0625*LOG2E)
    def tile(K, V, lab):
        A = 22
        Z = 26; P = 27; T = 28; PB = 30
        U = 34
        a("s_waitcnt vmcnt(12)")
        for jj in range(4):
            for i in range(4):
                if jj == 0:
                    a(f"v_dot2_f32_bf16 v{A+i}, v{K+4*i}, v{vQ}, 0")
                else:
                    a(f"v_dot2c_f32_bf16 v{A+i}, v{K+4*i+jj}, v{vQ+jj}")
        for i in range(4):
            a(f"buffer_load_dwordx4 v[{K+4*i}:{K+4*i+3}], v{vL16}, s[{dK}:{dK+3}], s{sOFF} offen offset:{i*1024} {KVF}")
        a(f"v_permlane16_swap_b32 v{A}, v{A+1}")
        a(f"v_permlane16_swap_b32 v{A+2}, v{A+3}")
        a("s_nop 0")
        a(f"v_add_f32 v{A}, v{A}, v{A+1}")
        a(f"v_add_f32 v{A+2}, v{A+2}, v{A+3}")
        a("s_nop 0")
        a(dpp("v_add_f32", Z, A, A, "row_ror:8", bm="0x3"))
        a(dpp("v_add_f32", Z, A+2, A+2, "row_ror:8", bm="0xc"))
        for ctrl in ("quad_perm:[1,0,3,2]", "quad_perm:[2,3,0,1]", "row_half_mirror"):
            a("s_nop 1")
            a(dpp("v_add_f32", Z, Z, Z, ctrl))
        a(f"v_cvt_pk_bf16_f32 v{Z}, v{Z}, v{Z}")
        a(f"v_and_b32 v{Z}, s{sMASK}, v{Z}")
        a(f"v_mul_f32 v{Z}, {CZ}, v{Z}")
        a(f"v_cmp_gt_f32 vcc, v{Z}, v{vM}")
        a(f"s_cbranch_vccnz L_resc{lab}")
        a(f"L_back{lab}:")
        a(f"v_sub_f32 v{P}, v{Z}, v{vM}")
        a(f"v_exp_f32 v{P}, v{P}")
        a("s_nop 0")
        a(f"v_add_f32 v{vL}, v{vL}, v{P}")
        a(f"v_mov_b32 v{T}, v{P}")
        a("s_nop 1")
        a(f"v_permlane16_swap_b32 v{P}, v{T}")
        a("s_nop 1")
        a(f"v_mov_b32_dpp v{PB}, v{P} row_newbcast:0 row_mask:0xf bank_mask:0xf")
        a(f"v_mov_b32_dpp v{PB+1}, v{T} row_newbcast:0 row_mask:0xf bank_mask:0xf")
        a(f"v_mov_b32_dpp v{PB+2}, v{P} row_newbcast:8 row_mask:0xf bank_mask:0xf")
        a(f"v_mov_b32_dpp v{PB+3}, v{T} row_newbcast:8 row_mask:0xf bank_mask:0xf")
        a("s_waitcnt vmcnt(12)")
        for i in range(4):
            axpy_row(a, vO, V+4*i, PB+i, U + 8*(i&1))
        for i in range(4):
            a(f"buffer_load_dwordx4 v[{V+4*i}:{V+4*i+3}], v{vL16}, s[{dV}:{dV+3}], s{sOFF} offen offset:{i*1024} {KVF}")
        a(f"s_add_u32 s{sOFF}, s{sOFF}, 32768")
    def resc(lab):
        Z = 26; T = 28
        a(f"L_resc{lab}:")
        a(f"v_max_f32 v{T}, v{Z}, v{vM}")
        for ctrl, rm in (("row_ror:8", "0xf"), ("row_bcast:15", "0xa"), ("row_bcast:31", "0xc")):
            a("s_nop 1")
            a(dpp("v_max_f32", T, T, T, ctrl, rm))
        a("s_nop 0")
        a(f"v_readlane_b32 s{sT0}, v{T}, 63")
        a("s_nop 1")
        a(f"v_subrev_f32 v{T}, s{sT0}, v{vM}")
        a(f"v_exp_f32 v{T}, v{T}")
        a(f"v_mov_b32 v{vM}, s{sT0}")
        a(f"v_mul_f32 v{vL}, v{vL}, v{T}")
        for k in range(4):
            a(f"v_pk_mul_f32 v[{vO+2*k}:{vO+2*k+1}], v[{vO+2*k}:{vO+2*k+1}], v[{T}:{T+1}] op_sel_hi:[1,0]")
        a(f"s_branch L_back{lab}")
    a(".p2align 6")
    a("L_loop:")
    a(f"s_cmp_eq_u32 s{sIT}, 1")
    a("s_cbranch_scc1 L_glu")
    a(f"s_cmp_eq_u32 s{sIT}, 2")
    a("s_cbranch_scc1 L_perm")
    a("L_body:")
    tile(KA, VA, "A")
    tile(KB, VB, "B")
    a(f"s_add_u32 s{sIT}, s{sIT}, 1")
    a(f"s_cmp_lt_u32 s{sIT}, 16")
    a("s_cbranch_scc1 L_loop")
    a("s_branch L_epi")
    resc("A"); resc("B")
    a("L_glu:")
    G = 42
    XG = 22
    U = 50
    a(f"v_lshrrev_b32 v{vA0}, 3, v{vLANE}")
    a(f"v_and_b32 v{U}, 1, v{vA0}")
    a(f"v_lshrrev_b32 v{vA0}, 1, v{vA0}")
    a(f"v_lshlrev_b32 v{vA0}, 2, v{vA0}")
    a(f"v_lshl_add_u32 v{vA0}, v{U}, 10, v{vA0}")
    a(f"s_and_b32 s{sT0}, s{sW}, 3")
    a(f"s_mul_i32 s{sT0}, s{sT0}, 224")
    a(f"v_add_u32 v{vA0}, s{sT0}, v{vA0}")
    for k in range(7):
        a(f"ds_read2_b32 v[{XG+2*k}:{XG+2*k+1}], v{vA0} offset0:{XN//4+8*k} offset1:{XN//4+8*k+4}")
    for k in range(8):
        a(f"v_mov_b32 v{G+k}, 0")
    a("s_waitcnt vmcnt(16) lgkmcnt(0)")
    for i in range(14):
        axpy_row(a, G, W+4*i, XG+i, U)
    a("s_nop 0")
    for k in range(4):
        a(f"v_permlane32_swap_b32 v{G+k}, v{G+4+k}")
    a("s_nop 0")
    for k in range(4):
        a(f"v_add_f32 v{G+k}, v{G+k}, v{G+4+k}")
    a("s_nop 0")
    a(f"v_permlane16_swap_b32 v{G}, v{G+2}")
    a(f"v_permlane16_swap_b32 v{G+1}, v{G+3}")
    a("s_nop 0")
    a(f"v_add_f32 v{G}, v{G}, v{G+2}")
    a(f"v_add_f32 v{G+1}, v{G+1}, v{G+3}")
    a.c("LDS addr = GP + w*256 + ((lane&7)*8 + (lane>>3))*4")
    a(f"v_and_b32 v{U}, 7, v{vLANE}")
    a(f"v_lshrrev_b32 v{U+1}, 3, v{vLANE}")
    a(dpp("v_add_f32", G+4, G, G, "row_ror:8", bm="0x3"))
    a(dpp("v_add_f32", G+4, G+1, G+1, "row_ror:8", bm="0xc"))
    a(f"v_lshl_add_u32 v{U}, v{U}, 3, v{U+1}")
    a(f"v_lshlrev_b32 v{U}, 2, v{U}")
    a(f"s_lshl_b32 s{sT0}, s{sW}, 8")
    a(f"v_add_u32 v{U}, s{sT0}, v{U}")
    a(f"ds_write_b32 v{U}, v{G+4} offset:{GP}")
    a(f"v_lshlrev_b32 v{vA0}, 2, v{vLANE}")
    a(f"v_add_u32 v{vA0}, {GP}, v{vA0}")
    a("s_waitcnt lgkmcnt(0)")
    a("s_barrier")
    for k in range(4):
        a(f"ds_read2st64_b32 v[{XG+2*k}:{XG+2*k+1}], v{vA0} offset0:{2*k} offset1:{2*k+1}")
    for k in range(8):
        a(f"v_mov_b32 v{G+k}, 0")
    a(f"s_mul_i32 s{sT0}, s{sW}, 7")
    a("s_waitcnt lgkmcnt(0)")
    a(f"v_add_f32 v{XG}, v{XG}, v{XG+1}")
    a(f"v_add_f32 v{XG+2}, v{XG+2}, v{XG+3}")
    a(f"v_add_f32 v{XG+4}, v{XG+4}, v{XG+5}")
    a(f"v_add_f32 v{XG+6}, v{XG+6}, v{XG+7}")
    a(f"v_add_f32 v{XG}, v{XG}, v{XG+2}")
    a(f"v_add_f32 v{XG+4}, v{XG+4}, v{XG+6}")
    bf16_round(a, XG)
    bf16_round(a, XG+4)
    a(f"v_mul_f32 v{XG}, {f32(-LOG2E)}, v{XG}")
    a(f"v_exp_f32 v{XG}, v{XG}")
    a("s_nop 0")
    a(f"v_add_f32 v{XG}, 1.0, v{XG}")
    a(f"v_rcp_f32 v{XG}, v{XG}")
    a("s_nop 0")
    bf16_round(a, XG)
    a(f"v_mul_f32 v{XG}, v{XG}, v{XG+4}")
    bf16_round(a, XG)
    a("s_nop 0")
    for i in range(7):
        a(f"v_readlane_b32 s{sP+i}, v{XG}, s{sT0}")
        a(f"s_add_u32 s{sT0}, s{sT0}, 1")
    a("s_nop 0")
    for i in range(7):
        axpy_row(a, G, WD+4*i, sP+i, U, sgpr=True)
    a(f"v_lshlrev_b32 v{vA0}, 5, v{vLANE}")
    a(f"s_lshl_b32 s{sT0}, s{sW}, 11")
    a(f"v_add_u32 v{vA0}, s{sT0}, v{vA0}")
    a(f"ds_write_b128 v{vA0}, v[{G}:{G+3}] offset:{YG}")
    a(f"ds_write_b128 v{vA0}, v[{G+4}:{G+7}] offset:{YG+16}")
    a.c("wo rows h*256+32w+i")
    a(f"s_lshl_b32 s{sT0}, s{sH}, 8")
    a(f"s_lshl_b32 s{sT1}, s{sW}, 5")
    a(f"s_add_u32 s{sT0}, s{sT0}, s{sT1}")
    a(f"s_mul_i32 s{sT0}, s{sT0}, 896")
    for i in range(32):
        a(f"buffer_load_dwordx4 v[{W+4*i}:{W+4*i+3}], v{vL16}, s[{dWO}:{dWO+3}], s{sT0} offen offset:{(i%4)*896} {WF}")
        if i % 4 == 3 and i < 31:
            a(f"s_add_u32 s{sT0}, s{sT0}, {4*896}")
    a("s_branch L_body")
    a("L_perm:")
    a(f"s_mov_b32 s{sT0}, 0x05040100")
    a(f"s_mov_b32 s{sT1}, 0x07060302")
    a("s_waitcnt vmcnt(16)")
    free = vFREE
    wmap = {}
    for k in range(16):
        for e in range(4):
            r0 = W + 8*k + e; r1 = W + 8*k + 4 + e
            a(f"v_perm_b32 v{free}, v{r1}, v{r0}, s{sT0}")
            a(f"v_perm_b32 v{r1}, v{r1}, v{r0}, s{sT1}")
            wmap[(k, 2*e)] = free; wmap[(k, 2*e+1)] = r1
            free = r0
    a("s_branch L_body")
    a("L_epi:")
    stamp(a, cfg, 4)
    a(dpp("v_add_f32", vL, vL, vL, "row_ror:8"))
    for k in range(4):
        a(f"v_permlane32_swap_b32 v{vO+k}, v{vO+4+k}")
    a(dpp("v_add_f32", vL, vL, vL, "row_bcast:15", "0xa"))
    for k in range(4):
        a(f"v_add_f32 v{vO+k}, v{vO+k}, v{vO+4+k}")
    a(dpp("v_add_f32", vL, vL, vL, "row_bcast:31", "0xc"))
    a(f"s_mul_i32 s{sT0}, s{sW}, {OPS}")
    a(f"v_add_u32 v{vA0}, s{sT0}, v{vA1}")
    a(f"ds_write_b128 v{vA0}, v[{vO}:{vO+3}] offset:{OP}")
    a(f"s_lshl_b32 s{sT0}, s{sW}, 3")
    a(f"v_mov_b32 v{vA0}, s{sT0}")
    a("s_lshl_b64 exec, 1, 63")
    a(f"ds_write_b64 v{vA0}, v[{vM}:{vL}] offset:{ML}")
    a("s_mov_b64 exec, -1")
    a.c("addresses for the cross-wave read: ML + (lane&7)*8 ; OP + (lane&7)*OPS + (32w + 4*(lane>>3))*4")
    R = 22
    a(f"v_and_b32 v{R}, 7, v{vLANE}")
    a(f"v_lshlrev_b32 v{vA0}, 3, v{R}")
    a(f"v_mul_u32_u24 v{R}, {OPS}, v{R}")
    a(f"v_lshrrev_b32 v{R+1}, 3, v{vLANE}")
    a(f"v_lshl_add_u32 v{R}, v{R+1}, 4, v{R}")
    a(f"s_lshl_b32 s{sT0}, s{sW}, 7")
    a(f"v_add_u32 v{R}, s{sT0}, v{R}")
    a("s_waitcnt lgkmcnt(0)")
    a("s_barrier")
    MX = 24; O4 = 28; MM = 26; Y = 32
    a(f"ds_read_b64 v[{MX}:{MX+1}], v{vA0} offset:{ML}")
    a(f"ds_read_b128 v[{O4}:{O4+3}], v{R} offset:{OP}")
    for k in range(8):
        a(f"v_mov_b32 v{Y+k}, 0")
    a("s_waitcnt lgkmcnt(1)")
    a(dpp("v_max_f32", MM, MX, MX, "quad_perm:[1,0,3,2]"))
    a("s_nop 1")
    a(dpp("v_max_f32", MM, MM, MM, "quad_perm:[2,3,0,1]"))
    a("s_nop 1")
    a(dpp("v_max_f32", MM, MM, MM, "row_half_mirror"))
    a(f"v_sub_f32 v{MX}, v{MX}, v{MM}")
    a(f"v_exp_f32 v{MX}, v{MX}")
    a("s_waitcnt lgkmcnt(0)")
    a(f"v_mul_f32 v{MM+1}, v{MX+1}, v{MX}")
    for k in range(4):
        a(f"v_mul_f32 v{O4+k}, v{O4+k}, v{MX}")
    for ctrl in ("quad_perm:[1,0,3,2]", "quad_perm:[2,3,0,1]", "row_half_mirror"):
        a(dpp("v_add_f32", MM+1, MM+1, MM+1, ctrl))
        for k in range(4):
            a(dpp("v_add_f32", O4+k, O4+k, O4+k, ctrl))
    a(f"v_cvt_pk_bf16_f32 v{O4}, v{O4}, v{O4+1}")
    a(f"v_cvt_pk_bf16_f32 v{O4+1}, v{O4+2}, v{O4+3}")
    a("s_nop 0")
    for dq in range(8):
        a(f"v_readlane_b32 s{sP+2*dq}, v{O4}, {8*dq}")
        a(f"v_readlane_b32 s{sP+2*dq+1}, v{O4+1}, {8*dq}")
    a(f"v_lshlrev_b32 v{vA0}, 5, v{vLANE}")
    a(f"s_lshl_b32 s{sT0}, s{sW}, 11")
    a(f"v_add_u32 v{vA0}, s{sT0}, v{vA0}")
    for k in range(16):
        for e in range(8):
            a(f"v_dot2c_f32_bf16 v{Y+e}, s{sP+k}, v{wmap[(k,e)]}")
    a("s_nop 3")
    a(f"ds_write_b128 v{vA0}, v[{Y}:{Y+3}] offset:{YA}")
    a(f"ds_write_b128 v{vA0}, v[{Y+4}:{Y+7}] offset:{YA+16}")
    a.c("slot index = b*32 + j")
    a(f"s_lshl_b32 s{sT2}, s{sB}, 5")
    a(f"s_add_u32 s{sT2}, s{sT2}, s{sJ}")
    a("s_waitcnt lgkmcnt(0)")
    a("s_barrier")
    stamp(a, cfg, 5)
    a(f"s_cmp_gt_u32 s{sW}, 4")
    a("s_cbranch_scc1 L_join")
    a(f"s_cmp_eq_u32 s{sW}, 4")
    a("s_cbranch_scc1 L_stml")
    a.c("waves 0,1: YA ; waves 2,3: YG ; n = (w&1)*64 + lane < 112")
    a(f"s_and_b32 s{sT0}, s{sW}, 1")
    a(f"s_lshl_b32 s{sT0}, s{sT0}, 10")
    a(f"v_add_u32 v{vA0}, s{sT0}, v{vL16}")
    a(f"s_lshr_b32 s{sT1}, s{sW}, 1")
    a(f"s_mov_b32 s{sT0}, {YA}")
    a(f"s_cmp_eq_u32 s{sT1}, 0")
    a(f"s_cselect_b32 s{sT0}, s{sT0}, {YG}")
    a(f"v_add_u32 v{R}, s{sT0}, v{vA0}")
    RD = 40
    for w2 in range(4):
        a(f"ds_read_b128 v[{RD+4*w2}:{RD+4*w2+3}], v{R} offset:{2048*w2}")
    for w2 in range(4, 8):
        a(f"ds_read_b128 v[{vO+4*(w2&1)+20*((w2>>1)&1)}:{vO+4*(w2&1)+20*((w2>>1)&1)+3}], v{R} offset:{2048*w2}")
    rds = [RD, RD+4, RD+8, RD+12, vO, vO+4, vO+20, vO+24]
    a(f"s_mul_i32 s{sT0}, s{sT2}, 3584")
    a(f"s_mul_i32 s{sT1}, s{sT1}, 1792")
    a(f"s_add_u32 s{sT0}, s{sT0}, s{sT1}")
    a(f"v_cmp_gt_u32 vcc, 1792, v{vA0}")
    for w2 in range(1, 8):
        a(f"s_waitcnt lgkmcnt({7-w2})")
        a(f"v_pk_add_f32 v[{RD}:{RD+1}], v[{RD}:{RD+1}], v[{rds[w2]}:{rds[w2]+1}]")
        a(f"v_pk_add_f32 v[{RD+2}:{RD+3}], v[{RD+2}:{RD+3}], v[{rds[w2]+2}:{rds[w2]+3}]")
    a("s_and_saveexec_b64 s[100:101], vcc")
    a(f"buffer_store_dwordx4 v[{RD}:{RD+3}], v{vA0}, s[{dWS}:{dWS+3}], s{sT0} offen sc1")
    a("s_branch L_arrive")
    a("L_stml:")
    a(f"s_lshl_b32 s{sT0}, s{sT2}, 3")
    a(f"s_add_u32 s{sT0}, s{sT0}, 0x100000")
    a(f"v_mov_b32 v{vA0}, 0")
    a("s_mov_b64 exec, 1")
    a(f"buffer_store_dwordx2 v[{MM}:{MM+1}], v{vA0}, s[{dWS}:{dWS+3}], s{sT0} offen sc1")
    a("L_arrive:")
    a("s_mov_b64 exec, -1")
    a(f"s_lshl_b32 s{sT0}, s{sB}, 5")
    a(f"v_mov_b32 v{R}, s{sT0}")
    a(f"v_mov_b32 v{R+1}, 1")
    a("s_mov_b64 exec, 1")
    a("s_waitcnt vmcnt(0)")
    a(f"global_atomic_add v{R+2}, v{R}, v{R+1}, s[{sDBG_}:{sDBG_+1}] sc0 sc1")
    a(f"v_mov_b32 v{R}, {FLAG}")
    a("s_waitcnt vmcnt(0)")
    a(f"v_cmp_eq_u32 vcc, 159, v{R+2}")
    a("s_and_saveexec_b64 s[100:101], vcc")
    a("s_cbranch_execz L_noflag")
    a(f"ds_write_b32 v{R}, v{R+1}")
    a("L_noflag:")
    a("s_mov_b64 exec, -1")
    a("s_waitcnt lgkmcnt(0)")
    a("L_join:")
    a("s_barrier")
    stamp(a, cfg, 6)
    a(f"v_mov_b32 v{R}, {FLAG}")
    a(f"ds_read_b32 v{R+1}, v{R}")
    a("s_waitcnt lgkmcnt(0)")
    a(f"v_readfirstlane_b32 s{sT0}, v{R+1}")
    a(f"s_cmp_eq_u32 s{sT0}, 0")
    a("s_cbranch_scc1 L_fin")
    a(f"s_cmp_eq_u32 s{sW}, 7")
    a("s_cbranch_scc1 L_fin")
    a.c("final combine for batch b: thread n = tid < 448")
    a("s_waitcnt vmcnt(0)")
    a(f"v_lshlrev_b32 v{vA0}, 2, v0")
    a(f"v_lshlrev_b32 v{vA1}, 1, v0")
    a(f"v_and_b32 v{R}, 31, v{vLANE}")
    a(f"v_lshlrev_b32 v{R}, 3, v{R}")
    a(f"s_lshl_b32 s{sT0}, s{sB}, 8")
    a(f"s_add_u32 s{sT0}, s{sT0}, 0x100000")
    a(f"buffer_load_dwordx2 v[{MX}:{MX+1}], v{R}, s[{dWS}:{dWS+3}], s{sT0} offen sc1")
    a(f"buffer_load_ushort v{O4}, v{vA1}, s[{dX}:{dX+3}], 0 offen")
    a(f"s_mul_i32 s{sT0}, s{sB}, {32*3584}")
    NJ = 30
    for j in range(32):
        if j == NJ:
            a("s_waitcnt vmcnt(58)")
        a(f"buffer_load_dword v{64+j}, v{vA0}, s[{dWS}:{dWS+3}], s{sT0} offen sc1")
        a(f"buffer_load_dword v{96+j}, v{vA0}, s[{dWS}:{dWS+3}], s{sT0} offen offset:1792 sc1")
        if j < 31:
            a(f"s_add_u32 s{sT0}, s{sT0}, 3584")
    a(f"s_mul_i32 s{sT1}, s{sB}, 896")
    srd(a, dGU, sOUT_, f"s{sT1}", 896)
    a(dpp("v_max_f32", MM, MX, MX, "quad_perm:[1,0,3,2]"))
    a(f"v_sub_f32 v{MX}, v{MX}, v{MM}")
    a(f"v_exp_f32 v{MX}, v{MX}")
    a("s_nop 0")
    a(f"v_mul_f32 v{MX+1}, v{MX+1}, v{MX}")
    a("s_nop 1")
    a(dpp("v_add_f32", MX+1, MX+1, MX+1, "quad_perm:[1,0,3,2]"))
    a(f"v_rcp_f32 v{MX+1}, v{MX+1}")
    a("s_nop 0")
    a(f"v_mul_f32 v{MX}, v{MX}, v{MX+1}")
    a(f"v_mov_b32 v{Y}, 0")
    a(f"v_mov_b32 v{Y+1}, 0")
    for j in range(32):
        a(f"v_readlane_b32 s{sT0 + (j&1)}, v{MX}, {j}")
        a(f"s_waitcnt vmcnt({62-2*j})")
        a(f"v_add_f32 v{Y+1}, v{Y+1}, v{96+j}")
        a(f"v_fmac_f32 v{Y}, s{sT0 + (j&1)}, v{64+j}")
    bf16_round(a, Y)
    bf16_round(a, Y+1)
    a(f"v_lshlrev_b32 v{O4}, 16, v{O4}")
    a(f"v_add_f32 v{Y}, v{O4}, v{Y}")
    bf16_round(a, Y)
    a(f"v_add_f32 v{Y}, v{Y}, v{Y+1}")
    a(f"v_cvt_pk_bf16_f32 v{Y}, v{Y}, v{Y}")
    a(f"buffer_store_short v{Y}, v{vA1}, s[{dGU}:{dGU+3}], 0 offen")
    a("L_fin:")
    if cfg.get("stamps"):
        a("s_waitcnt vmcnt(0)")
        stamp(a, cfg, 7)
        a("v_writelane_b32 v7, s98, 0")
        a("s_getreg_b32 s96, hwreg(HW_REG_XCC_ID)")
        a("v_writelane_b32 v7, s96, 8")
        a(f"s_lshl_b32 s{sT0}, s2, 3")
        a(f"s_add_u32 s{sT0}, s{sT0}, s{sW}")
        a(f"s_lshl_b32 s{sT0}, s{sT0}, 6")
        a(f"s_add_u32 s{sT0}, s{sT0}, 0x200000")
        a(f"v_lshlrev_b32 v{vA0}, 2, v{vLANE}")
        a("s_mov_b64 exec, 0xffff")
        a(f"buffer_store_dword v7, v{vA0}, s[{dWS}:{dWS+3}], s{sT0} offen")
    a("L_end:")
    a("s_endpgm")
    hdr = open(REF).read().split("; Override launch")[0] if os.path.exists(REF) else ""
    out = hdr + f"""; @launch grid=(256,1,1) block=(512,1,1) lds={LDS_BYTES}
.amdgcn_target "amdgcn-amd-amdhsa--gfx950"
.text
.globl {KN}
.p2align 8
.type {KN},@function
{KN}:
""" + a.text() + f""".section .rodata,"a"
.p2align 6
.amdhsa_kernel {KN}
  .amdhsa_next_free_vgpr 256
  .amdhsa_next_free_sgpr 102
  .amdhsa_accum_offset 256
  .amdhsa_group_segment_fixed_size 0
  .amdhsa_kernarg_size 96
  .amdhsa_user_sgpr_count 2
  .amdhsa_user_sgpr_kernarg_segment_ptr 1
  .amdhsa_system_sgpr_workgroup_id_x 1
.end_amdhsa_kernel
"""
    return out

if __name__ == "__main__":
    import json
    name = sys.argv[1]
    cfg = json.loads(sys.argv[2]) if len(sys.argv) > 2 else {}
    open(name, "w").write(gen(cfg))
```

```python
import struct, sys, os

KN = "parallel_sum__mha_block_cached__glu_gated_glu__decode_kernel"
REF = "parallel_sum__mha_block_cached__glu_gated_glu__decode.s.ref"

def f32(x):
    return "0x%08x" % struct.unpack("<I", struct.pack("<f", x))[0]

LOG2E = 1.4426950408889634

class Asm:
    def __init__(self):
        self.lines = []
        self.vm = []
    def __call__(self, s):
        for l in s.strip("\n").split("\n"):
            self.lines.append("  " + l.strip() if not l.strip().endswith(":") else l.strip())
    def c(self, s):
        self.lines.append("  ; " + s)
    def vmem(self, s, tag):
        self(s); self.vm.append(tag)
    def wait_tag(self, tag):
        idx = max(i for i, t in enumerate(self.vm) if t == tag)
        n = len(self.vm) - 1 - idx
        self(f"s_waitcnt vmcnt({n})")
        self.vm = self.vm[idx+1:]
    def text(self):
        return "\n".join(self.lines) + "\n"

XN   = 0
QP   = 2048
GP   = QP + 8192
YG   = GP + 2048
OP   = YG + 16384
OPS  = 1040
ML   = OP + 8*OPS
FLAG = ML + 64
YA   = FLAG + 64
LDS_BYTES = YA + 16384

sX_, sK_, sV_, sWQ_, sWO_, sBX_, sWG_, sWU_ = 4, 6, 8, 10, 12, 14, 16, 18
sWD_, sOUT_, sDBG_, sWS_ = 20, 22, 24, 26
dK, dV, dWQ, dGU, dX, dWO, dWD, dWS = 28, 32, 36, 40, 44, 48, 52, 56
sW, sB, sH, sS, sJ, sIT, sOFF, sT0, sT1, sMASK, sT2, sT3 = 60, 61, 62, 63, 64, 65, 66, 67, 68, 69, 70, 71
sP = 72
sG = 88
vLANE, vL16, vWQO, vGUO, vA0, vA1 = 1, 2, 3, 4, 5, 6
vQ = 8
vO = 12
vM, vL = 20, 21
vT = 22
vFREE = 63
KA, VA, KB, VB = 64, 80, 96, 112
W = 128

def srd(a, d, base, off_s, nrec):
    if off_s is None:
        a(f"s_mov_b32 s{d}, s{base}")
        a(f"s_mov_b32 s{d+1}, s{base+1}")
    else:
        a(f"s_add_u32 s{d}, s{base}, {off_s}")
        a(f"s_addc_u32 s{d+1}, s{base+1}, 0")
    a(f"s_mov_b32 s{d+2}, {nrec}")
    a(f"s_mov_b32 s{d+3}, 0x00020000")

def dpp(op, d, s0, s1, ctrl, rm="0xf", bm="0xf"):
    return f"{op}_dpp v{d}, v{s0}, v{s1} {ctrl} row_mask:{rm} bank_mask:{bm}"

def reduce64(a, op, v, sdst):
    for ctrl, rm in (("quad_perm:[1,0,3,2]", "0xf"), ("quad_perm:[2,3,0,1]", "0xf"), ("row_half_mirror", "0xf"),
                     ("row_mirror", "0xf"), ("row_bcast:15", "0xa"), ("row_bcast:31", "0xc")):
        a("s_nop 1")
        a(dpp(op, v, v, v, ctrl, rm))
    a("s_nop 0")
    a(f"v_readlane_b32 s{sdst}, v{v}, 63")

def pkfma_bcast(acc, u, m, sgpr=False):
    r = "s" if sgpr else "v"
    base = m & ~1
    if m & 1:
        sel = "op_sel:[0,1,0] op_sel_hi:[1,1,1]"
    else:
        sel = "op_sel_hi:[1,0,1]"
    return f"v_pk_fma_f32 v[{acc}:{acc+1}], v[{u}:{u+1}], {r}[{base}:{base+1}], v[{acc}:{acc+1}] {sel}"

def axpy_row(a, acc, data, m, tmp, sgpr=False):
    for k in range(4):
        a(f"v_lshlrev_b32 v{tmp+2*k}, 16, v{data+k}")
        a(f"v_and_b32 v{tmp+2*k+1}, s{sMASK}, v{data+k}")
    for k in range(4):
        a(pkfma_bcast(acc+2*k, tmp+2*k, m, sgpr))

def bf16_round(a, v):
    a(f"v_cvt_pk_bf16_f32 v{v}, v{v}, v{v}")
    a(f"v_and_b32 v{v}, s{sMASK}, v{v}")

def stamp(a, cfg, idx):
    if cfg.get("stamps"):
        a("s_memrealtime s[96:97]")
        a("s_waitcnt lgkmcnt(0)")
        a(f"v_writelane_b32 v7, s96, {idx}")

def gen(cfg):
    KVF = cfg.get("kvflags", "nt")
    WF = cfg.get("wflags", "")
    ILV = cfg.get("ilv", 3)
    a = Asm()
    a("s_cmp_ge_u32 s2, 256")
    a("s_cbranch_scc1 L_end")
    a("s_load_dwordx16 s[4:19], s[0:1], 0")
    a("s_load_dwordx8 s[20:27], s[0:1], 64")
    if cfg.get("stamps"):
        a("v_mov_b32 v7, 0")
        a("s_memrealtime s[98:99]")
    a(f"v_and_b32 v{vLANE}, 63, v0")
    a(f"v_lshrrev_b32 v{vA0}, 6, v0")
    a(f"v_lshlrev_b32 v{vL16}, 4, v{vLANE}")
    a(f"v_readfirstlane_b32 s{sW}, v{vA0}")
    a.c("decode workgroup id: xcd=g&7, hh=(g>>3)&1, b=(g>>4)&7, s=g>>7, h=xcd*2+hh, j=h*2+s")
    a(f"s_and_b32 s{sT0}, s2, 7")
    a(f"s_bfe_u32 s{sT1}, s2, 0x10003")
    a(f"s_lshl_b32 s{sH}, s{sT0}, 1")
    a(f"s_add_u32 s{sH}, s{sH}, s{sT1}")
    a(f"s_bfe_u32 s{sB}, s2, 0x30004")
    a(f"s_lshr_b32 s{sS}, s2, 7")
    a(f"s_lshl_b32 s{sJ}, s{sH}, 1")
    a(f"s_add_u32 s{sJ}, s{sJ}, s{sS}")
    a(f"s_mov_b32 s{sMASK}, 0xffff0000")
    a.c("wq voffset = (lane>>5)*8192 + (lane&31)*16")
    a(f"v_lshrrev_b32 v{vA0}, 5, v{vLANE}")
    a(f"v_and_b32 v{vA1}, 31, v{vLANE}")
    a(f"v_lshlrev_b32 v{vWQO}, 13, v{vA0}")
    a(f"v_lshl_add_u32 v{vWQO}, v{vA1}, 4, v{vWQO}")
    a.c("K/V base offset = (b*16+h)<<21 + s<<20")
    a(f"s_lshl_b32 s{sT0}, s{sB}, 4")
    a(f"s_add_u32 s{sT0}, s{sT0}, s{sH}")
    a(f"s_lshl_b32 s{sT0}, s{sT0}, 21")
    a(f"s_lshl_b32 s{sT1}, s{sS}, 20")
    a(f"s_add_u32 s{sT0}, s{sT0}, s{sT1}")
    a(f"s_mul_i32 s{sT1}, s{sB}, 896")
    a(f"s_lshl_b32 s{sT2}, s{sH}, 9")
    a(f"s_sub_u32 s{sT3}, {448*8192}, s{sT2}")
    a(f"s_lshl_b32 s{sOFF}, s{sW}, 12")
    a(f"s_mul_i32 s{sIT}, s{sW}, {56*8192}")
    a("s_waitcnt lgkmcnt(0)")
    X4 = vT+2
    srd(a, dX, sX_, f"s{sT1}", 896)
    a.vmem(f"buffer_load_dwordx4 v[{X4}:{X4+3}], v{vL16}, s[{dX}:{dX+3}], 0 offen", "x")
    srd(a, dWQ, sWQ_, f"s{sT2}", f"s{sT3}")
    srd(a, dK, sK_, f"s{sT0}", 0x100000)
    srd(a, dV, sV_, f"s{sT0}", 0x100000)
    kv = [(KA, dK, i, "AK") for i in range(4)] + [(VA, dV, i, "AV") for i in range(4)]
    def kvload(base, d, i, tag):
        a.vmem(f"buffer_load_dwordx4 v[{base+4*i}:{base+4*i+3}], v{vL16}, s[{d}:{d+3}], s{sOFF} offen offset:{i*1024} {KVF}", tag)
    for i in range(28):
        a.vmem(f"buffer_load_dwordx4 v[{W+4*i}:{W+4*i+3}], v{vWQO}, s[{dWQ}:{dWQ+3}], s{sIT} offen {WF}", f"wq{i}")
        if i < 27:
            a(f"s_add_u32 s{sIT}, s{sIT}, 16384")
        if ILV and (i % ILV) == ILV-1 and kv:
            kvload(*kv.pop(0))
    if cfg.get("bar0", 1):
        a("s_barrier")
    while kv:
        kvload(*kv.pop(0))
    a(f"s_add_u32 s{sOFF}, s{sOFF}, 32768")
    for i in range(4): kvload(KB, dK, i, "BK")
    for i in range(4): kvload(VB, dV, i, "BV")
    a(f"s_add_u32 s{sOFF}, s{sOFF}, 32768")
    stamp(a, cfg, 1)
    a.c("remaining SRDs / offsets")
    a(f"s_cmp_lt_u32 s{sW}, 4")
    a(f"s_cselect_b32 s{dGU}, s{sWG_}, s{sWU_}")
    a(f"s_cselect_b32 s{dGU+1}, s{sWG_+1}, s{sWU_+1}")
    a(f"s_mov_b32 s{dGU+2}, {448*3584}")
    a(f"s_mov_b32 s{dGU+3}, 0x00020000")
    srd(a, dWO, sWO_, None, 4096*896)
    srd(a, dWD, sWD_, None, 1792*896)
    srd(a, dWS, sWS_, None, 0x400000)
    a.c("gu voffset = (lane>>3)*3584 + (lane&7)*16")
    a(f"v_lshrrev_b32 v{vA0}, 3, v{vLANE}")
    a(f"v_and_b32 v{vA1}, 7, v{vLANE}")
    a(f"v_mul_u32_u24 v{vGUO}, 3584, v{vA0}")
    a(f"v_lshl_add_u32 v{vGUO}, v{vA1}, 4, v{vGUO}")
    a(f"v_cmp_gt_u32 vcc, 56, v{vLANE}")
    for k in range(8):
        a(f"v_mov_b32 v{vO+k}, 0")
    a.c("flag init (any wave, same value)")
    a(f"v_mov_b32 v{vA0}, {FLAG}")
    a(f"ds_write_b32 v{vA0}, v{vO}")
    a.c("LayerNorm of x[b] (each wave redundantly)")
    E = vT+6
    S0 = vT+14
    a.wait_tag("x")
    for k in range(4):
        a(f"v_lshlrev_b32 v{E+2*k}, 16, v{X4+k}")
        a(f"v_and_b32 v{E+2*k+1}, s{sMASK}, v{X4+k}")
    a(f"v_add_f32 v{S0}, v{E}, v{E+1}")
    a(f"v_add_f32 v{S0+1}, v{E+2}, v{E+3}")
    a(f"v_add_f32 v{S0+2}, v{E+4}, v{E+5}")
    a(f"v_add_f32 v{S0+3}, v{E+6}, v{E+7}")
    a(f"v_add_f32 v{S0}, v{S0}, v{S0+1}")
    a(f"v_add_f32 v{S0+2}, v{S0+2}, v{S0+3}")
    a(f"v_add_f32 v{S0}, v{S0}, v{S0+2}")
    reduce64(a, "v_add_f32", S0, sT0)
    MEAN = S0+1; ACC = S0+2; D = S0+4
    a("s_nop 1")
    a(f"v_mov_b32 v{MEAN}, s{sT0}")
    a(f"v_mul_f32 v{MEAN}, {f32(1.0/448)}, v{MEAN}")
    for k in range(8):
        a(f"v_sub_f32 v{D+k}, v{E+k}, v{MEAN}")
    a(f"v_mul_f32 v{ACC}, v{D}, v{D}")
    for k in range(1, 8):
        a(f"v_fmac_f32 v{ACC}, v{D+k}, v{D+k}")
    a(f"v_cndmask_b32 v{ACC}, 0, v{ACC}, vcc")
    reduce64(a, "v_add_f32", ACC, sT0)
    bf16_round(a, MEAN)
    a(f"v_mov_b32 v{ACC}, s{sT0}")
    a(f"v_mul_f32 v{ACC}, {f32(1.0/448)}, v{ACC}")
    bf16_round(a, ACC)
    a(f"v_add_f32 v{ACC}, {f32(1e-5)}, v{ACC}")
    bf16_round(a, ACC)
    a(f"v_sqrt_f32 v{ACC}, v{ACC}")
    for k in range(8):
        a(f"v_sub_f32 v{D+k}, v{E+k}, v{MEAN}")
    bf16_round(a, ACC)
    a(f"v_rcp_f32 v{ACC}, v{ACC}")
    for k in range(4):
        a(f"v_cvt_pk_bf16_f32 v{X4+k}, v{D+2*k}, v{D+2*k+1}")
    for k in range(4):
        a(f"v_lshlrev_b32 v{D+2*k}, 16, v{X4+k}")
        a(f"v_and_b32 v{D+2*k+1}, s{sMASK}, v{X4+k}")
    for k in range(8):
        a(f"v_mul_f32 v{D+k}, v{D+k}, v{ACC}")
    for k in range(4):
        a(f"v_cvt_pk_bf16_f32 v{X4+k}, v{D+2*k}, v{D+2*k+1}")
    for k in range(4):
        a(f"v_lshlrev_b32 v{E+k}, 16, v{X4+k}")
        a(f"v_and_b32 v{E+4+k}, s{sMASK}, v{X4+k}")
    a(f"ds_write_b128 v{vL16}, v[{E}:{E+3}] offset:{XN}")
    a(f"ds_write_b128 v{vL16}, v[{E+4}:{E+7}] offset:{XN+1024}")
    a.c("xn multipliers for wq rows: XN + half*1024 + 112*w")
    a(f"v_lshrrev_b32 v{vA0}, 5, v{vLANE}")
    a(f"v_lshlrev_b32 v{vA0}, 10, v{vA0}")
    a(f"s_mul_i32 s{sT0}, s{sW}, 112")
    a(f"v_add_u32 v{vA0}, s{sT0}, v{vA0}")
    a("s_waitcnt lgkmcnt(0)")
    XM = 32
    for k in range(7):
        a(f"ds_read_b128 v[{XM+4*k}:{XM+4*k+3}], v{vA0} offset:{XN+16*k}")
    stamp(a, cfg, 2)
    a("s_waitcnt lgkmcnt(0)")
    TMP = 24
    for i in range(28):
        a.wait_tag(f"wq{i}")
        axpy_row(a, vO, W+4*i, XM+i, TMP)
    WD = W + 56
    a.c("combine halves, write q partial")
    a(f"v_and_b32 v{vA1}, 31, v{vLANE}")
    a(f"v_lshlrev_b32 v{vA1}, 5, v{vA1}")
    a(f"v_lshrrev_b32 v{vA0}, 5, v{vLANE}")
    a(f"v_lshl_add_u32 v{vA1}, v{vA0}, 4, v{vA1}")
    a(f"s_lshl_b32 s{sT0}, s{sW}, 10")
    a(f"v_add_u32 v{vA0}, s{sT0}, v{vA1}")
    for k in range(4):
        a(f"v_permlane32_swap_b32 v{vO+k}, v{vO+4+k}")
    a("s_nop 0")
    for k in range(4):
        a(f"v_add_f32 v{vO+k}, v{vO+k}, v{vO+4+k}")
    a(f"ds_write_b128 v{vA0}, v[{vO}:{vO+3}] offset:{QP}")
    a("s_waitcnt lgkmcnt(0)")
    a("s_barrier")
    for w2 in range(8):
        a(f"ds_read_b128 v[{24+4*w2}:{24+4*w2+3}], v{vA1} offset:{QP+1024*w2}")
    for k in range(8):
        a(f"v_mov_b32 v{vO+k}, 0")
    a(f"v_mov_b32 v{vM}, {f32(-1e30)}")
    a(f"v_mov_b32 v{vL}, 0")
    for w2 in range(1, 8):
        a(f"s_waitcnt lgkmcnt({7-w2})")
        a(f"v_pk_add_f32 v[24:25], v[24:25], v[{24+4*w2}:{24+4*w2+1}]")
        a(f"v_pk_add_f32 v[26:27], v[26:27], v[{24+4*w2+2}:{24+4*w2+3}]")
    a(f"v_cvt_pk_bf16_f32 v{vQ}, v24, v25")
    a(f"v_cvt_pk_bf16_f32 v{vQ+1}, v26, v27")
    a(f"v_mov_b32 v{vQ+2}, v{vQ}")
    a(f"v_mov_b32 v{vQ+3}, v{vQ+1}")
    a("s_nop 1")
    a(f"v_permlane32_swap_b32 v{vQ}, v{vQ+2}")
    a(f"v_permlane32_swap_b32 v{vQ+1}, v{vQ+3}")
    stamp(a, cfg, 3)
    a(f"s_mov_b32 s{sIT}, 0")
    stg = cfg.get("stagger", "h")
    if stg == "h":
        a(f"s_and_b32 s{sG}, s{sH}, 7")
        a(f"s_add_u32 s{sG}, s{sG}, 1")
    elif stg == "b":
        a(f"s_add_u32 s{sG}, s{sB}, 1")
    else:
        a(f"s_mov_b32 s{sG}, 1")
    CZ = f32(0.0625*LOG2E)
    def tile(K, V, lab):
        A = 22
        Z = 26; P = 27; T = 28; PB = 30
        U = 34
        a("s_waitcnt vmcnt(12)")
        for jj in range(4):
            for i in range(4):
                if jj == 0:
                    a(f"v_dot2_f32_bf16 v{A+i}, v{K+4*i}, v{vQ}, 0")
                else:
                    a(f"v_dot2c_f32_bf16 v{A+i}, v{K+4*i+jj}, v{vQ+jj}")
        for i in range(4):
            a(f"buffer_load_dwordx4 v[{K+4*i}:{K+4*i+3}], v{vL16}, s[{dK}:{dK+3}], s{sOFF} offen offset:{i*1024} {KVF}")
        a(f"v_permlane16_swap_b32 v{A}, v{A+1}")
        a(f"v_permlane16_swap_b32 v{A+2}, v{A+3}")
        a("s_nop 0")
        a(f"v_add_f32 v{A}, v{A}, v{A+1}")
        a(f"v_add_f32 v{A+2}, v{A+2}, v{A+3}")
        a("s_nop 0")
        a(dpp("v_add_f32", Z, A, A, "row_ror:8", bm="0x3"))
        a(dpp("v_add_f32", Z, A+2, A+2, "row_ror:8", bm="0xc"))
        for ctrl in ("quad_perm:[1,0,3,2]", "quad_perm:[2,3,0,1]", "row_half_mirror"):
            a("s_nop 1")
            a(dpp("v_add_f32", Z, Z, Z, ctrl))
        a(f"v_cvt_pk_bf16_f32 v{Z}, v{Z}, v{Z}")
        a(f"v_and_b32 v{Z}, s{sMASK}, v{Z}")
        a(f"v_mul_f32 v{Z}, {CZ}, v{Z}")
        a(f"v_cmp_gt_f32 vcc, v{Z}, v{vM}")
        a(f"s_cbranch_vccnz L_resc{lab}")
        a(f"L_back{lab}:")
        a(f"v_sub_f32 v{P}, v{Z}, v{vM}")
        a(f"v_exp_f32 v{P}, v{P}")
        a("s_nop 0")
        a(f"v_add_f32 v{vL}, v{vL}, v{P}")
        a(f"v_mov_b32 v{T}, v{P}")
        a("s_nop 1")
        a(f"v_permlane16_swap_b32 v{P}, v{T}")
        a("s_nop 1")
        a(f"v_mov_b32_dpp v{PB}, v{P} row_newbcast:0 row_mask:0xf bank_mask:0xf")
        a(f"v_mov_b32_dpp v{PB+1}, v{T} row_newbcast:0 row_mask:0xf bank_mask:0xf")
        a(f"v_mov_b32_dpp v{PB+2}, v{P} row_newbcast:8 row_mask:0xf bank_mask:0xf")
        a(f"v_mov_b32_dpp v{PB+3}, v{T} row_newbcast:8 row_mask:0xf bank_mask:0xf")
        a("s_waitcnt vmcnt(12)")
        for i in range(4):
            axpy_row(a, vO, V+4*i, PB+i, U + 8*(i&1))
        for i in range(4):
            a(f"buffer_load_dwordx4 v[{V+4*i}:{V+4*i+3}], v{vL16}, s[{dV}:{dV+3}], s{sOFF} offen offset:{i*1024} {KVF}")
        a(f"s_add_u32 s{sOFF}, s{sOFF}, 32768")
    def resc(lab):
        Z = 26; T = 28
        a(f"L_resc{lab}:")
        a(f"v_max_f32 v{T}, v{Z}, v{vM}")
        for ctrl, rm in (("row_ror:8", "0xf"), ("row_bcast:15", "0xa"), ("row_bcast:31", "0xc")):
            a("s_nop 1")
            a(dpp("v_max_f32", T, T, T, ctrl, rm))
        a("s_nop 0")
        a(f"v_readlane_b32 s{sT0}, v{T}, 63")
        a("s_nop 1")
        a(f"v_subrev_f32 v{T}, s{sT0}, v{vM}")
        a(f"v_exp_f32 v{T}, v{T}")
        a(f"v_mov_b32 v{vM}, s{sT0}")
        a(f"v_mul_f32 v{vL}, v{vL}, v{T}")
        for k in range(4):
            a(f"v_pk_mul_f32 v[{vO+2*k}:{vO+2*k+1}], v[{vO+2*k}:{vO+2*k+1}], v[{T}:{T+1}] op_sel_hi:[1,0]")
        a(f"s_branch L_back{lab}")
    a(".p2align 6")
    a("L_loop:")
    a(f"s_sub_u32 s{sT0}, s{sIT}, s{sG}")
    a(f"s_cmp_lt_u32 s{sT0}, 3")
    a("s_cbranch_scc1 L_side")
    a("L_body:")
    tile(KA, VA, "A")
    tile(KB, VB, "B")
    a(f"s_add_u32 s{sIT}, s{sIT}, 1")
    a(f"s_cmp_lt_u32 s{sIT}, 16")
    a("s_cbranch_scc1 L_loop")
    a("s_branch L_epi")
    resc("A"); resc("B")
    a("L_side:")
    a(f"s_cmp_eq_u32 s{sT0}, 1")
    a("s_cbranch_scc1 L_glu")
    a(f"s_cmp_eq_u32 s{sT0}, 2")
    a("s_cbranch_scc1 L_perm")
    a.c("GLU weight loads: gu soffset = (112*(w&3))*3584 + j*112")
    a(f"s_and_b32 s{sT0}, s{sW}, 3")
    a(f"s_mul_i32 s{sT0}, s{sT0}, {112*3584}")
    a(f"s_mul_i32 s{sT1}, s{sJ}, 112")
    a(f"s_add_u32 s{sT0}, s{sT0}, s{sT1}")
    for g in range(14):
        a(f"buffer_load_dwordx4 v[{W+4*g}:{W+4*g+3}], v{vGUO}, s[{dGU}:{dGU+3}], s{sT0} offen {WF}")
        if g < 13:
            a(f"s_add_u32 s{sT0}, s{sT0}, {8*3584}")
    a.c("w_down rows 56j+7w+i")
    a(f"s_mul_i32 s{sT0}, s{sJ}, 56")
    a(f"s_mul_i32 s{sT1}, s{sW}, 7")
    a(f"s_add_u32 s{sT0}, s{sT0}, s{sT1}")
    a(f"s_mul_i32 s{sT0}, s{sT0}, 896")
    a(f"s_add_u32 s{sT1}, s{sT0}, {4*896}")
    for i in range(7):
        so, off = (sT0, i*896) if i < 4 else (sT1, (i-4)*896)
        a(f"buffer_load_dwordx4 v[{WD+4*i}:{WD+4*i+3}], v{vL16}, s[{dWD}:{dWD+3}], s{so} offen offset:{off} {WF}")
    a("s_branch L_body")
    a("L_glu:")
    G = 42
    XG = 22
    U = 50
    a(f"v_lshrrev_b32 v{vA0}, 3, v{vLANE}")
    a(f"v_and_b32 v{U}, 1, v{vA0}")
    a(f"v_lshrrev_b32 v{vA0}, 1, v{vA0}")
    a(f"v_lshlrev_b32 v{vA0}, 2, v{vA0}")
    a(f"v_lshl_add_u32 v{vA0}, v{U}, 10, v{vA0}")
    a(f"s_and_b32 s{sT0}, s{sW}, 3")
    a(f"s_mul_i32 s{sT0}, s{sT0}, 224")
    a(f"v_add_u32 v{vA0}, s{sT0}, v{vA0}")
    for k in range(7):
        a(f"ds_read2_b32 v[{XG+2*k}:{XG+2*k+1}], v{vA0} offset0:{XN//4+8*k} offset1:{XN//4+8*k+4}")
    for k in range(8):
        a(f"v_mov_b32 v{G+k}, 0")
    a("s_waitcnt vmcnt(16) lgkmcnt(0)")
    for i in range(14):
        axpy_row(a, G, W+4*i, XG+i, U)
    a("s_nop 0")
    for k in range(4):
        a(f"v_permlane32_swap_b32 v{G+k}, v{G+4+k}")
    a("s_nop 0")
    for k in range(4):
        a(f"v_add_f32 v{G+k}, v{G+k}, v{G+4+k}")
    a("s_nop 0")
    a(f"v_permlane16_swap_b32 v{G}, v{G+2}")
    a(f"v_permlane16_swap_b32 v{G+1}, v{G+3}")
    a("s_nop 0")
    a(f"v_add_f32 v{G}, v{G}, v{G+2}")
    a(f"v_add_f32 v{G+1}, v{G+1}, v{G+3}")
    a.c("LDS addr = GP + w*256 + ((lane&7)*8 + (lane>>3))*4")
    a(f"v_and_b32 v{U}, 7, v{vLANE}")
    a(f"v_lshrrev_b32 v{U+1}, 3, v{vLANE}")
    a(dpp("v_add_f32", G+4, G, G, "row_ror:8", bm="0x3"))
    a(dpp("v_add_f32", G+4, G+1, G+1, "row_ror:8", bm="0xc"))
    a(f"v_lshl_add_u32 v{U}, v{U}, 3, v{U+1}")
    a(f"v_lshlrev_b32 v{U}, 2, v{U}")
    a(f"s_lshl_b32 s{sT0}, s{sW}, 8")
    a(f"v_add_u32 v{U}, s{sT0}, v{U}")
    a(f"ds_write_b32 v{U}, v{G+4} offset:{GP}")
    a(f"v_lshlrev_b32 v{vA0}, 2, v{vLANE}")
    a(f"v_add_u32 v{vA0}, {GP}, v{vA0}")
    a("s_waitcnt lgkmcnt(0)")
    a("s_barrier")
    for k in range(4):
        a(f"ds_read2st64_b32 v[{XG+2*k}:{XG+2*k+1}], v{vA0} offset0:{2*k} offset1:{2*k+1}")
    for k in range(8):
        a(f"v_mov_b32 v{G+k}, 0")
    a(f"s_mul_i32 s{sT0}, s{sW}, 7")
    a("s_waitcnt lgkmcnt(0)")
    a(f"v_add_f32 v{XG}, v{XG}, v{XG+1}")
    a(f"v_add_f32 v{XG+2}, v{XG+2}, v{XG+3}")
    a(f"v_add_f32 v{XG+4}, v{XG+4}, v{XG+5}")
    a(f"v_add_f32 v{XG+6}, v{XG+6}, v{XG+7}")
    a(f"v_add_f32 v{XG}, v{XG}, v{XG+2}")
    a(f"v_add_f32 v{XG+4}, v{XG+4}, v{XG+6}")
    bf16_round(a, XG)
    bf16_round(a, XG+4)
    a(f"v_mul_f32 v{XG}, {f32(-LOG2E)}, v{XG}")
    a(f"v_exp_f32 v{XG}, v{XG}")
    a("s_nop 0")
    a(f"v_add_f32 v{XG}, 1.0, v{XG}")
    a(f"v_rcp_f32 v{XG}, v{XG}")
    a("s_nop 0")
    bf16_round(a, XG)
    a(f"v_mul_f32 v{XG}, v{XG}, v{XG+4}")
    bf16_round(a, XG)
    a("s_nop 0")
    for i in range(7):
        a(f"v_readlane_b32 s{sP+i}, v{XG}, s{sT0}")
        a(f"s_add_u32 s{sT0}, s{sT0}, 1")
    a("s_nop 0")
    for i in range(7):
        axpy_row(a, G, WD+4*i, sP+i, U, sgpr=True)
    a(f"v_lshlrev_b32 v{vA0}, 5, v{vLANE}")
    a(f"s_lshl_b32 s{sT0}, s{sW}, 11")
    a(f"v_add_u32 v{vA0}, s{sT0}, v{vA0}")
    a(f"ds_write_b128 v{vA0}, v[{G}:{G+3}] offset:{YG}")
    a(f"ds_write_b128 v{vA0}, v[{G+4}:{G+7}] offset:{YG+16}")
    a.c("wo rows h*256+32w+i")
    a(f"s_lshl_b32 s{sT0}, s{sH}, 8")
    a(f"s_lshl_b32 s{sT1}, s{sW}, 5")
    a(f"s_add_u32 s{sT0}, s{sT0}, s{sT1}")
    a(f"s_mul_i32 s{sT0}, s{sT0}, 896")
    for i in range(32):
        a(f"buffer_load_dwordx4 v[{W+4*i}:{W+4*i+3}], v{vL16}, s[{dWO}:{dWO+3}], s{sT0} offen offset:{(i%4)*896} {WF}")
        if i % 4 == 3 and i < 31:
            a(f"s_add_u32 s{sT0}, s{sT0}, {4*896}")
    a("s_branch L_body")
    a("L_perm:")
    a(f"s_mov_b32 s{sT0}, 0x05040100")
    a(f"s_mov_b32 s{sT1}, 0x07060302")
    a("s_waitcnt vmcnt(16)")
    free = vFREE
    wmap = {}
    for k in range(16):
        for e in range(4):
            r0 = W + 8*k + e; r1 = W + 8*k + 4 + e
            a(f"v_perm_b32 v{free}, v{r1}, v{r0}, s{sT0}")
            a(f"v_perm_b32 v{r1}, v{r1}, v{r0}, s{sT1}")
            wmap[(k, 2*e)] = free; wmap[(k, 2*e+1)] = r1
            free = r0
    a("s_branch L_body")
    a("L_epi:")
    stamp(a, cfg, 4)
    a(dpp("v_add_f32", vL, vL, vL, "row_ror:8"))
    for k in range(4):
        a(f"v_permlane32_swap_b32 v{vO+k}, v{vO+4+k}")
    a(dpp("v_add_f32", vL, vL, vL, "row_bcast:15", "0xa"))
    for k in range(4):
        a(f"v_add_f32 v{vO+k}, v{vO+k}, v{vO+4+k}")
    a(dpp("v_add_f32", vL, vL, vL, "row_bcast:31", "0xc"))
    a(f"s_mul_i32 s{sT0}, s{sW}, {OPS}")
    a(f"v_add_u32 v{vA0}, s{sT0}, v{vA1}")
    a(f"ds_write_b128 v{vA0}, v[{vO}:{vO+3}] offset:{OP}")
    a(f"s_lshl_b32 s{sT0}, s{sW}, 3")
    a(f"v_mov_b32 v{vA0}, s{sT0}")
    a("s_lshl_b64 exec, 1, 63")
    a(f"ds_write_b64 v{vA0}, v[{vM}:{vL}] offset:{ML}")
    a("s_mov_b64 exec, -1")
    a.c("addresses for the cross-wave read: ML + (lane&7)*8 ; OP + (lane&7)*OPS + (32w + 4*(lane>>3))*4")
    R = 22
    a(f"v_and_b32 v{R}, 7, v{vLANE}")
    a(f"v_lshlrev_b32 v{vA0}, 3, v{R}")
    a(f"v_mul_u32_u24 v{R}, {OPS}, v{R}")
    a(f"v_lshrrev_b32 v{R+1}, 3, v{vLANE}")
    a(f"v_lshl_add_u32 v{R}, v{R+1}, 4, v{R}")
    a(f"s_lshl_b32 s{sT0}, s{sW}, 7")
    a(f"v_add_u32 v{R}, s{sT0}, v{R}")
    a("s_waitcnt lgkmcnt(0)")
    a("s_barrier")
    MX = 24; O4 = 28; MM = 26; Y = 32
    a(f"ds_read_b64 v[{MX}:{MX+1}], v{vA0} offset:{ML}")
    a(f"ds_read_b128 v[{O4}:{O4+3}], v{R} offset:{OP}")
    for k in range(8):
        a(f"v_mov_b32 v{Y+k}, 0")
    a("s_waitcnt lgkmcnt(1)")
    a(dpp("v_max_f32", MM, MX, MX, "quad_perm:[1,0,3,2]"))
    a("s_nop 1")
    a(dpp("v_max_f32", MM, MM, MM, "quad_perm:[2,3,0,1]"))
    a("s_nop 1")
    a(dpp("v_max_f32", MM, MM, MM, "row_half_mirror"))
    a(f"v_sub_f32 v{MX}, v{MX}, v{MM}")
    a(f"v_exp_f32 v{MX}, v{MX}")
    a("s_waitcnt lgkmcnt(0)")
    a(f"v_mul_f32 v{MM+1}, v{MX+1}, v{MX}")
    for k in range(4):
        a(f"v_mul_f32 v{O4+k}, v{O4+k}, v{MX}")
    for ctrl in ("quad_perm:[1,0,3,2]", "quad_perm:[2,3,0,1]", "row_half_mirror"):
        a(dpp("v_add_f32", MM+1, MM+1, MM+1, ctrl))
        for k in range(4):
            a(dpp("v_add_f32", O4+k, O4+k, O4+k, ctrl))
    a(f"v_cvt_pk_bf16_f32 v{O4}, v{O4}, v{O4+1}")
    a(f"v_cvt_pk_bf16_f32 v{O4+1}, v{O4+2}, v{O4+3}")
    a("s_nop 0")
    for dq in range(8):
        a(f"v_readlane_b32 s{sP+2*dq}, v{O4}, {8*dq}")
        a(f"v_readlane_b32 s{sP+2*dq+1}, v{O4+1}, {8*dq}")
    a(f"v_lshlrev_b32 v{vA0}, 5, v{vLANE}")
    a(f"s_lshl_b32 s{sT0}, s{sW}, 11")
    a(f"v_add_u32 v{vA0}, s{sT0}, v{vA0}")
    for k in range(16):
        for e in range(8):
            a(f"v_dot2c_f32_bf16 v{Y+e}, s{sP+k}, v{wmap[(k,e)]}")
    a("s_nop 3")
    a(f"ds_write_b128 v{vA0}, v[{Y}:{Y+3}] offset:{YA}")
    a(f"ds_write_b128 v{vA0}, v[{Y+4}:{Y+7}] offset:{YA+16}")
    a.c("slot index = b*32 + j")
    a(f"s_lshl_b32 s{sT2}, s{sB}, 5")
    a(f"s_add_u32 s{sT2}, s{sT2}, s{sJ}")
    a("s_waitcnt lgkmcnt(0)")
    a("s_barrier")
    stamp(a, cfg, 5)
    a(f"s_cmp_gt_u32 s{sW}, 4")
    a("s_cbranch_scc1 L_join")
    a(f"s_cmp_eq_u32 s{sW}, 4")
    a("s_cbranch_scc1 L_stml")
    a.c("waves 0,1: YA ; waves 2,3: YG ; n = (w&1)*64 + lane < 112")
    a(f"s_and_b32 s{sT0}, s{sW}, 1")
    a(f"s_lshl_b32 s{sT0}, s{sT0}, 10")
    a(f"v_add_u32 v{vA0}, s{sT0}, v{vL16}")
    a(f"s_lshr_b32 s{sT1}, s{sW}, 1")
    a(f"s_mov_b32 s{sT0}, {YA}")
    a(f"s_cmp_eq_u32 s{sT1}, 0")
    a(f"s_cselect_b32 s{sT0}, s{sT0}, {YG}")
    a(f"v_add_u32 v{R}, s{sT0}, v{vA0}")
    RD = 40
    for w2 in range(4):
        a(f"ds_read_b128 v[{RD+4*w2}:{RD+4*w2+3}], v{R} offset:{2048*w2}")
    for w2 in range(4, 8):
        a(f"ds_read_b128 v[{vO+4*(w2&1)+20*((w2>>1)&1)}:{vO+4*(w2&1)+20*((w2>>1)&1)+3}], v{R} offset:{2048*w2}")
    rds = [RD, RD+4, RD+8, RD+12, vO, vO+4, vO+20, vO+24]
    a(f"s_mul_i32 s{sT0}, s{sT2}, 3584")
    a(f"s_mul_i32 s{sT1}, s{sT1}, 1792")
    a(f"s_add_u32 s{sT0}, s{sT0}, s{sT1}")
    a(f"v_cmp_gt_u32 vcc, 1792, v{vA0}")
    for w2 in range(1, 8):
        a(f"s_waitcnt lgkmcnt({7-w2})")
        a(f"v_pk_add_f32 v[{RD}:{RD+1}], v[{RD}:{RD+1}], v[{rds[w2]}:{rds[w2]+1}]")
        a(f"v_pk_add_f32 v[{RD+2}:{RD+3}], v[{RD+2}:{RD+3}], v[{rds[w2]+2}:{rds[w2]+3}]")
    a("s_and_saveexec_b64 s[100:101], vcc")
    a(f"buffer_store_dwordx4 v[{RD}:{RD+3}], v{vA0}, s[{dWS}:{dWS+3}], s{sT0} offen sc1")
    a("s_branch L_arrive")
    a("L_stml:")
    a(f"s_lshl_b32 s{sT0}, s{sT2}, 3")
    a(f"s_add_u32 s{sT0}, s{sT0}, 0x100000")
    a(f"v_mov_b32 v{vA0}, 0")
    a("s_mov_b64 exec, 1")
    a(f"buffer_store_dwordx2 v[{MM}:{MM+1}], v{vA0}, s[{dWS}:{dWS+3}], s{sT0} offen sc1")
    a("L_arrive:")
    a("s_mov_b64 exec, -1")
    a(f"s_lshl_b32 s{sT0}, s{sB}, 5")
    a(f"v_mov_b32 v{R}, s{sT0}")
    a(f"v_mov_b32 v{R+1}, 1")
    a("s_mov_b64 exec, 1")
    a("s_waitcnt vmcnt(0)")
    a(f"global_atomic_add v{R+2}, v{R}, v{R+1}, s[{sDBG_}:{sDBG_+1}] sc0 sc1")
    a(f"v_mov_b32 v{R}, {FLAG}")
    a("s_waitcnt vmcnt(0)")
    a(f"v_cmp_eq_u32 vcc, 159, v{R+2}")
    a("s_and_saveexec_b64 s[100:101], vcc")
    a("s_cbranch_execz L_noflag")
    a(f"ds_write_b32 v{R}, v{R+1}")
    a("L_noflag:")
    a("s_mov_b64 exec, -1")
    a("s_waitcnt lgkmcnt(0)")
    a("L_join:")
    a("s_barrier")
    stamp(a, cfg, 6)
    a(f"v_mov_b32 v{R}, {FLAG}")
    a(f"ds_read_b32 v{R+1}, v{R}")
    a("s_waitcnt lgkmcnt(0)")
    a(f"v_readfirstlane_b32 s{sT0}, v{R+1}")
    a(f"s_cmp_eq_u32 s{sT0}, 0")
    a("s_cbranch_scc1 L_fin")
    a(f"s_cmp_eq_u32 s{sW}, 7")
    a("s_cbranch_scc1 L_fin")
    a.c("final combine for batch b: thread n = tid < 448")
    a("s_waitcnt vmcnt(0)")
    a(f"v_lshlrev_b32 v{vA0}, 2, v0")
    a(f"v_lshlrev_b32 v{vA1}, 1, v0")
    a(f"v_and_b32 v{R}, 31, v{vLANE}")
    a(f"v_lshlrev_b32 v{R}, 3, v{R}")
    a(f"s_lshl_b32 s{sT0}, s{sB}, 8")
    a(f"s_add_u32 s{sT0}, s{sT0}, 0x100000")
    a(f"buffer_load_dwordx2 v[{MX}:{MX+1}], v{R}, s[{dWS}:{dWS+3}], s{sT0} offen sc1")
    a(f"buffer_load_ushort v{O4}, v{vA1}, s[{dX}:{dX+3}], 0 offen")
    a(f"s_mul_i32 s{sT0}, s{sB}, {32*3584}")
    NJ = 30
    for j in range(32):
        if j == NJ:
            a("s_waitcnt vmcnt(58)")
        a(f"buffer_load_dword v{64+j}, v{vA0}, s[{dWS}:{dWS+3}], s{sT0} offen sc1")
        a(f"buffer_load_dword v{96+j}, v{vA0}, s[{dWS}:{dWS+3}], s{sT0} offen offset:1792 sc1")
        if j < 31:
            a(f"s_add_u32 s{sT0}, s{sT0}, 3584")
    a(f"s_mul_i32 s{sT1}, s{sB}, 896")
    srd(a, dGU, sOUT_, f"s{sT1}", 896)
    a(dpp("v_max_f32", MM, MX, MX, "quad_perm:[1,0,3,2]"))
    a(f"v_sub_f32 v{MX}, v{MX}, v{MM}")
    a(f"v_exp_f32 v{MX}, v{MX}")
    a("s_nop 0")
    a(f"v_mul_f32 v{MX+1}, v{MX+1}, v{MX}")
    a("s_nop 1")
    a(dpp("v_add_f32", MX+1, MX+1, MX+1, "quad_perm:[1,0,3,2]"))
    a(f"v_rcp_f32 v{MX+1}, v{MX+1}")
    a("s_nop 0")
    a(f"v_mul_f32 v{MX}, v{MX}, v{MX+1}")
    a(f"v_mov_b32 v{Y}, 0")
    a(f"v_mov_b32 v{Y+1}, 0")
    for j in range(32):
        a(f"v_readlane_b32 s{sT0 + (j&1)}, v{MX}, {j}")
        a(f"s_waitcnt vmcnt({62-2*j})")
        a(f"v_add_f32 v{Y+1}, v{Y+1}, v{96+j}")
        a(f"v_fmac_f32 v{Y}, s{sT0 + (j&1)}, v{64+j}")
    bf16_round(a, Y)
    bf16_round(a, Y+1)
    a(f"v_lshlrev_b32 v{O4}, 16, v{O4}")
    a(f"v_add_f32 v{Y}, v{O4}, v{Y}")
    bf16_round(a, Y)
    a(f"v_add_f32 v{Y}, v{Y}, v{Y+1}")
    a(f"v_cvt_pk_bf16_f32 v{Y}, v{Y}, v{Y}")
    a(f"buffer_store_short v{Y}, v{vA1}, s[{dGU}:{dGU+3}], 0 offen")
    a("L_fin:")
    if cfg.get("stamps"):
        a("s_waitcnt vmcnt(0)")
        stamp(a, cfg, 7)
        a("v_writelane_b32 v7, s98, 0")
        a("s_getreg_b32 s96, hwreg(HW_REG_XCC_ID)")
        a("v_writelane_b32 v7, s96, 8")
        a(f"s_lshl_b32 s{sT0}, s2, 3")
        a(f"s_add_u32 s{sT0}, s{sT0}, s{sW}")
        a(f"s_lshl_b32 s{sT0}, s{sT0}, 6")
        a(f"s_add_u32 s{sT0}, s{sT0}, 0x200000")
        a(f"v_lshlrev_b32 v{vA0}, 2, v{vLANE}")
        a("s_mov_b64 exec, 0xffff")
        a(f"buffer_store_dword v7, v{vA0}, s[{dWS}:{dWS+3}], s{sT0} offen")
    a("L_end:")
    a("s_endpgm")
    hdr = open(REF).read().split("; Override launch")[0] if os.path.exists(REF) else ""
    out = hdr + f"""; @launch grid=(256,1,1) block=(512,1,1) lds={LDS_BYTES}
.amdgcn_target "amdgcn-amd-amdhsa--gfx950"
.text
.globl {KN}
.p2align 8
.type {KN},@function
{KN}:
""" + a.text() + f""".section .rodata,"a"
.p2align 6
.amdhsa_kernel {KN}
  .amdhsa_next_free_vgpr 256
  .amdhsa_next_free_sgpr 102
  .amdhsa_accum_offset 256
  .amdhsa_group_segment_fixed_size 0
  .amdhsa_kernarg_size 96
  .amdhsa_user_sgpr_count 2
  .amdhsa_user_sgpr_kernarg_segment_ptr 1
  .amdhsa_system_sgpr_workgroup_id_x 1
.end_amdhsa_kernel
"""
    return out

if __name__ == "__main__":
    import json
    name = sys.argv[1]
    cfg = json.loads(sys.argv[2]) if len(sys.argv) > 2 else {}
    open(name, "w").write(gen(cfg))
```

```python
import struct, sys, os, json

KN = "parallel_sum__mha_block_cached__glu_gated_glu__decode_kernel"
REF = "parallel_sum__mha_block_cached__glu_gated_glu__decode.s.ref"
LOG2E = 1.4426950408889634

def f32(x):
    return "0x%08x" % struct.unpack("<I", struct.pack("<f", x))[0]

class Asm:
    def __init__(self):
        self.lines = []
        self.vm = []
    def __call__(self, s):
        for l in s.strip("\n").split("\n"):
            self.lines.append("  " + l.strip() if not l.strip().endswith(":") else l.strip())
    def c(self, s):
        self.lines.append("  ; " + s)
    def vmem(self, s, tag):
        self(s); self.vm.append(tag)
        assert len(self.vm) <= 59
    def wait_tag(self, tag):
        idx = max(i for i, t in enumerate(self.vm) if t == tag)
        n = len(self.vm) - 1 - idx
        self(f"s_waitcnt vmcnt({n})")
        self.vm = self.vm[idx+1:]
    def text(self):
        return "\n".join(self.lines) + "\n"

XN   = 0
QP   = 2048
GP   = QP + 8192
YG   = GP + 2048
OP   = YG + 16384
OPS  = 1040
ML   = OP + 8*OPS
CNT  = ML + 64
YA   = CNT + 64
LDS_BYTES = YA + 16384
SLOT = 4096

sX_, sK_, sV_, sWQ_, sWO_, sBX_, sWG_, sWU_ = 4, 6, 8, 10, 12, 14, 16, 18
sWD_, sOUT_, sDBG_, sWS_ = 20, 22, 24, 26
dK, dV, dWQ, dGU, dX, dWO, dWD, dWS = 28, 32, 36, 40, 44, 48, 52, 56
sW, sB, sH, sS, sJ, sIT, sOFF, sT0, sT1, sMASK, sT2, sT3 = 60, 61, 62, 63, 64, 65, 66, 67, 68, 69, 70, 71
sP = 72
sO1, sO2, sO3 = 88, 89, 90
sJO = 91
sIDX = 92
sPL, sPH = 93, 94
sSLOT = 95
vLANE, vL16, vWQO, vGUO, vA0, vA1 = 1, 2, 3, 4, 5, 6
vQ = 8
vO = 12
vM, vL = 20, 21
STG = 48
KA, VA, KB, VB = 64, 80, 96, 112
W = 128
KC, VC, KD, VD = 128, 144, 160, 176
POOL = 192

def srd(a, d, base, off_s, nrec):
    if off_s is None:
        a(f"s_mov_b32 s{d}, s{base}")
        a(f"s_mov_b32 s{d+1}, s{base+1}")
    else:
        a(f"s_add_u32 s{d}, s{base}, {off_s}")
        a(f"s_addc_u32 s{d+1}, s{base+1}, 0")
    a(f"s_mov_b32 s{d+2}, {nrec}")
    a(f"s_mov_b32 s{d+3}, 0x00020000")

def dpp(op, d, s0, s1, ctrl, rm="0xf", bm="0xf"):
    return f"{op}_dpp v{d}, v{s0}, v{s1} {ctrl} row_mask:{rm} bank_mask:{bm}"

def reduce64(a, op, v, sdst):
    for ctrl, rm in (("quad_perm:[1,0,3,2]", "0xf"), ("quad_perm:[2,3,0,1]", "0xf"), ("row_half_mirror", "0xf"),
                     ("row_mirror", "0xf"), ("row_bcast:15", "0xa"), ("row_bcast:31", "0xc")):
        a("s_nop 1")
        a(dpp(op, v, v, v, ctrl, rm))
    a("s_nop 0")
    a(f"v_readlane_b32 s{sdst}, v{v}, 63")

def pkfma_bcast(acc, u, m, sgpr=False):
    r = "s" if sgpr else "v"
    base = m & ~1
    sel = "op_sel:[0,1,0] op_sel_hi:[1,1,1]" if m & 1 else "op_sel_hi:[1,0,1]"
    return f"v_pk_fma_f32 v[{acc}:{acc+1}], v[{u}:{u+1}], {r}[{base}:{base+1}], v[{acc}:{acc+1}] {sel}"

def axpy_row(a, acc, data, m, tmp, sgpr=False):
    for k in range(4):
        a(f"v_lshlrev_b32 v{tmp+2*k}, 16, v{data+k}")
        a(f"v_and_b32 v{tmp+2*k+1}, s{sMASK}, v{data+k}")
    for k in range(4):
        a(pkfma_bcast(acc+2*k, tmp+2*k, m, sgpr))

def bf16_round(a, v):
    a(f"v_cvt_pk_bf16_f32 v{v}, v{v}, v{v}")
    a(f"v_and_b32 v{v}, s{sMASK}, v{v}")

def stamp(a, cfg, idx):
    if cfg.get("stamps"):
        a("s_memrealtime s[96:97]")
        a("s_waitcnt lgkmcnt(0)")
        a(f"v_writelane_b32 v7, s96, {idx}")

def gen(cfg):
    KVF = cfg.get("kvflags", "nt")
    WF = cfg.get("wflags", "")
    PRE = cfg.get("pre", 9)
    AHEAD = cfg.get("ahead", 12)
    RAT = cfg.get("rat", 2)
    SLEEP = cfg.get("sleep", 4)
    a = Asm()
    a("s_cmp_ge_u32 s2, 256")
    a("s_cbranch_scc1 L_end")
    a("s_load_dwordx16 s[4:19], s[0:1], 0")
    a("s_load_dwordx8 s[20:27], s[0:1], 64")
    if cfg.get("stamps"):
        a("v_mov_b32 v7, 0")
        a("s_memrealtime s[98:99]")
    a(f"v_and_b32 v{vLANE}, 63, v0")
    a(f"v_lshrrev_b32 v{vA0}, 6, v0")
    a(f"v_lshlrev_b32 v{vL16}, 4, v{vLANE}")
    a(f"v_readfirstlane_b32 s{sW}, v{vA0}")
    a.c("decode workgroup id: xcd=g&7, hh=(g>>3)&1, b=(g>>4)&7, s=g>>7, h=xcd*2+hh, j=h*2+s")
    a(f"s_and_b32 s{sT0}, s2, 7")
    a(f"s_bfe_u32 s{sT1}, s2, 0x10003")
    a(f"s_lshl_b32 s{sH}, s{sT0}, 1")
    a(f"s_add_u32 s{sH}, s{sH}, s{sT1}")
    a(f"s_bfe_u32 s{sB}, s2, 0x30004")
    a(f"s_lshr_b32 s{sS}, s2, 7")
    a(f"s_lshl_b32 s{sJ}, s{sH}, 1")
    a(f"s_add_u32 s{sJ}, s{sJ}, s{sS}")
    a(f"s_mov_b32 s{sMASK}, 0xffff0000")
    a.c("wq voffset = (lane>>5)*8192 + (lane&31)*16")
    a(f"v_lshrrev_b32 v{vA0}, 5, v{vLANE}")
    a(f"v_and_b32 v{vA1}, 31, v{vLANE}")
    a(f"v_lshlrev_b32 v{vWQO}, 13, v{vA0}")
    a(f"v_lshl_add_u32 v{vWQO}, v{vA1}, 4, v{vWQO}")
    a.c("K/V base offset = (b*16+h)<<21 + s<<20")
    a(f"s_lshl_b32 s{sT0}, s{sB}, 4")
    a(f"s_add_u32 s{sT0}, s{sT0}, s{sH}")
    a(f"s_lshl_b32 s{sT0}, s{sT0}, 21")
    a(f"s_lshl_b32 s{sT1}, s{sS}, 20")
    a(f"s_add_u32 s{sT0}, s{sT0}, s{sT1}")
    a(f"s_mul_i32 s{sT1}, s{sB}, 896")
    a(f"s_lshl_b32 s{sT2}, s{sH}, 9")
    a(f"s_sub_u32 s{sT3}, {448*8192}, s{sT2}")
    a(f"s_lshl_b32 s{sOFF}, s{sW}, 12")
    a(f"s_mul_i32 s{sIT}, s{sW}, {56*8192}")
    a(f"s_add_u32 s{sO1}, s{sOFF}, 0x8000")
    a(f"s_add_u32 s{sO2}, s{sOFF}, 0x10000")
    a(f"s_add_u32 s{sO3}, s{sOFF}, 0x18000")
    a("s_waitcnt lgkmcnt(0)")
    X4 = 24
    srd(a, dX, sX_, f"s{sT1}", 896)
    a.vmem(f"buffer_load_dwordx4 v[{X4}:{X4+3}], v{vL16}, s[{dX}:{dX+3}], 0 offen", "x")
    srd(a, dWQ, sWQ_, f"s{sT2}", f"s{sT3}")
    srd(a, dK, sK_, f"s{sT0}", 0x100000)
    srd(a, dV, sV_, f"s{sT0}", 0x100000)
    kv = []
    for (K, V, so) in ((KA, VA, sOFF), (KB, VB, sO1), (KC, VC, sO2), (KD, VD, sO3)):
        kv += [("kv", K, dK, so, i) for i in range(4)] + [("kv", V, dV, so, i) for i in range(4)]
    items = []
    for i in range(28):
        items.append(("wq", i))
        if i % RAT == RAT-1 and kv:
            items.append(kv.pop(0))
    nmain = len(items)
    tailkv = kv
    pos = {it[1]: n for n, it in enumerate(items) if it[0] == "wq"}
    state = {"n": 0, "gu": 0, "consumed": -1}
    def issue_item(it):
        if it[0] == "wq":
            i = it[1]
            assert i - 16 <= state["consumed"], "wq pool overrun"
            r = POOL + 4*(i % 16)
            a.vmem(f"buffer_load_dwordx4 v[{r}:{r+3}], v{vWQO}, s[{dWQ}:{dWQ+3}], s{sIT} offen {WF}", f"wq{i}")
            if i < 27:
                a(f"s_add_u32 s{sIT}, s{sIT}, 16384")
        else:
            _, base, d, so, i = it
            a.vmem(f"buffer_load_dwordx4 v[{base+4*i}:{base+4*i+3}], v{vL16}, s[{d}:{d+3}], s{so} offen offset:{i*1024} {KVF}", "kv")
    def issue_upto(n):
        while state["n"] < min(n, nmain):
            issue_item(items[state["n"]]); state["n"] += 1
    issue_upto(PRE)
    stamp(a, cfg, 1)
    a.c("remaining SRDs / offsets")
    a(f"s_cmp_lt_u32 s{sW}, 4")
    a(f"s_cselect_b32 s{dGU}, s{sWG_}, s{sWU_}")
    a(f"s_cselect_b32 s{dGU+1}, s{sWG_+1}, s{sWU_+1}")
    a(f"s_mov_b32 s{dGU+2}, {448*3584}")
    a(f"s_mov_b32 s{dGU+3}, 0x00020000")
    srd(a, dWO, sWO_, None, 4096*896)
    srd(a, dWD, sWD_, None, 1792*896)
    srd(a, dWS, sWS_, None, 0x400000)
    a.c("slot byte offset = (b*32 + j) * SLOT")
    a(f"s_lshl_b32 s{sSLOT}, s{sB}, 5")
    a(f"s_add_u32 s{sSLOT}, s{sSLOT}, s{sJ}")
    a(f"s_lshl_b32 s{sSLOT}, s{sSLOT}, 12")
    a.c("gu voffset = (lane>>3)*3584 + (lane&7)*16 ; gu soffset = (112*(w&3))*3584 + j*112")
    a(f"v_lshrrev_b32 v{vA0}, 3, v{vLANE}")
    a(f"v_and_b32 v{vA1}, 7, v{vLANE}")
    a(f"v_mul_u32_u24 v{vGUO}, 3584, v{vA0}")
    a(f"v_lshl_add_u32 v{vGUO}, v{vA1}, 4, v{vGUO}")
    a(f"s_and_b32 s{sT0}, s{sW}, 3")
    a(f"s_mul_i32 s{sJO}, s{sT0}, {112*3584}")
    a(f"s_mul_i32 s{sT1}, s{sJ}, 112")
    a(f"s_add_u32 s{sJO}, s{sJO}, s{sT1}")
    a(f"v_cmp_gt_u32 vcc, 56, v{vLANE}")
    for k in range(8):
        a(f"v_mov_b32 v{vO+k}, 0")
    a.c("counter init (every wave, same value, before the first barrier)")
    a(f"v_mov_b32 v{vA0}, {CNT}")
    a(f"ds_write_b32 v{vA0}, v{vO}")
    a.c("wave 7 clears this workgroup's slot with the sentinel")
    a(f"s_cmp_lg_u32 s{sW}, 7")
    a("s_cbranch_scc1 L_noclr")
    for k in range(4):
        a(f"v_mov_b32 v{STG+k}, -1")
    for k in range(4):
        a(f"buffer_store_dwordx4 v[{STG}:{STG+3}], v{vL16}, s[{dWS}:{dWS+3}], s{sSLOT} offen offset:{1024*k} sc1")
    a("L_noclr:")
    a.c("LayerNorm of x[b] (each wave redundantly)")
    E = 28; S0 = 36
    a.wait_tag("x")
    for k in range(4):
        a(f"v_lshlrev_b32 v{E+2*k}, 16, v{X4+k}")
        a(f"v_and_b32 v{E+2*k+1}, s{sMASK}, v{X4+k}")
    a(f"v_add_f32 v{S0}, v{E}, v{E+1}")
    a(f"v_add_f32 v{S0+1}, v{E+2}, v{E+3}")
    a(f"v_add_f32 v{S0+2}, v{E+4}, v{E+5}")
    a(f"v_add_f32 v{S0+3}, v{E+6}, v{E+7}")
    a(f"v_add_f32 v{S0}, v{S0}, v{S0+1}")
    a(f"v_add_f32 v{S0+2}, v{S0+2}, v{S0+3}")
    a(f"v_add_f32 v{S0}, v{S0}, v{S0+2}")
    reduce64(a, "v_add_f32", S0, sT0)
    MEAN = S0+1; ACC = S0+2; D = S0+4
    a("s_nop 1")
    a(f"v_mov_b32 v{MEAN}, s{sT0}")
    a(f"v_mul_f32 v{MEAN}, {f32(1.0/448)}, v{MEAN}")
    for k in range(8):
        a(f"v_sub_f32 v{D+k}, v{E+k}, v{MEAN}")
    a(f"v_mul_f32 v{ACC}, v{D}, v{D}")
    for k in range(1, 8):
        a(f"v_fmac_f32 v{ACC}, v{D+k}, v{D+k}")
    a(f"v_cndmask_b32 v{ACC}, 0, v{ACC}, vcc")
    reduce64(a, "v_add_f32", ACC, sT0)
    bf16_round(a, MEAN)
    a(f"v_mov_b32 v{ACC}, s{sT0}")
    a(f"v_mul_f32 v{ACC}, {f32(1.0/448)}, v{ACC}")
    bf16_round(a, ACC)
    a(f"v_add_f32 v{ACC}, {f32(1e-5)}, v{ACC}")
    bf16_round(a, ACC)
    a(f"v_sqrt_f32 v{ACC}, v{ACC}")
    for k in range(8):
        a(f"v_sub_f32 v{D+k}, v{E+k}, v{MEAN}")
    bf16_round(a, ACC)
    a(f"v_rcp_f32 v{ACC}, v{ACC}")
    for k in range(4):
        a(f"v_cvt_pk_bf16_f32 v{X4+k}, v{D+2*k}, v{D+2*k+1}")
    for k in range(4):
        a(f"v_lshlrev_b32 v{D+2*k}, 16, v{X4+k}")
        a(f"v_and_b32 v{D+2*k+1}, s{sMASK}, v{X4+k}")
    for k in range(8):
        a(f"v_mul_f32 v{D+k}, v{D+k}, v{ACC}")
    for k in range(4):
        a(f"v_cvt_pk_bf16_f32 v{X4+k}, v{D+2*k}, v{D+2*k+1}")
    for k in range(4):
        a(f"v_lshlrev_b32 v{E+k}, 16, v{X4+k}")
        a(f"v_and_b32 v{E+4+k}, s{sMASK}, v{X4+k}")
    a(f"ds_write_b128 v{vL16}, v[{E}:{E+3}] offset:{XN}")
    a(f"ds_write_b128 v{vL16}, v[{E+4}:{E+7}] offset:{XN+1024}")
    a.c("xn multipliers for wq rows: XN + half*1024 + 112*w")
    a(f"v_lshrrev_b32 v{vA0}, 5, v{vLANE}")
    a(f"v_lshlrev_b32 v{vA0}, 10, v{vA0}")
    a(f"s_mul_i32 s{sT0}, s{sW}, 112")
    a(f"v_add_u32 v{vA0}, s{sT0}, v{vA0}")
    a("s_waitcnt lgkmcnt(0)")
    XM = 32
    for k in range(7):
        a(f"ds_read_b128 v[{XM+4*k}:{XM+4*k+3}], v{vA0} offset:{XN+16*k}")
    issue_upto(pos[0] + AHEAD)
    stamp(a, cfg, 2)
    a("s_waitcnt lgkmcnt(0)")
    TMP = 24
    gureg = {}
    def issue_tail_one(i_consumed):
        did = False
        if tailkv:
            issue_item(tailkv.pop(0)); did = True
        g = state["gu"]
        if g < 14 and (12 + g) <= i_consumed:
            r = POOL + 4*((12 + g) % 16)
            gureg[g] = r
            a.vmem(f"buffer_load_dwordx4 v[{r}:{r+3}], v{vGUO}, s[{dGU}:{dGU+3}], s{sJO} offen {WF}", "gu")
            a(f"s_add_u32 s{sJO}, s{sJO}, {8*3584}")
            state["gu"] += 1; did = True
        return did
    for i in range(28):
        a.wait_tag(f"wq{i}")
        axpy_row(a, vO, POOL + 4*(i % 16), XM+i, TMP)
        state["consumed"] = i
        if state["n"] < nmain:
            issue_upto((pos[i+1] if i < 27 else nmain) + AHEAD)
        else:
            issue_tail_one(i)
    a.c("combine halves, write q partial")
    a(f"v_and_b32 v{vA1}, 31, v{vLANE}")
    a(f"v_lshlrev_b32 v{vA1}, 5, v{vA1}")
    a(f"v_lshrrev_b32 v{vA0}, 5, v{vLANE}")
    a(f"v_lshl_add_u32 v{vA1}, v{vA0}, 4, v{vA1}")
    a(f"s_lshl_b32 s{sT0}, s{sW}, 10")
    a(f"v_add_u32 v{vA0}, s{sT0}, v{vA1}")
    for k in range(4):
        a(f"v_permlane32_swap_b32 v{vO+k}, v{vO+4+k}")
    a("s_nop 0")
    for k in range(4):
        a(f"v_add_f32 v{vO+k}, v{vO+k}, v{vO+4+k}")
    a(f"ds_write_b128 v{vA0}, v[{vO}:{vO+3}] offset:{QP}")
    if not cfg.get("tailafter"):
        while issue_tail_one(27):
            pass
    a(f"s_add_u32 s{sOFF}, s{sOFF}, 0x20000")
    a("s_waitcnt lgkmcnt(0)")
    a("s_barrier")
    for w2 in range(8):
        a(f"ds_read_b128 v[{24+4*w2}:{24+4*w2+3}], v{vA1} offset:{QP+1024*w2}")
    while issue_tail_one(27):
        pass
    for k in range(8):
        a(f"v_mov_b32 v{vO+k}, 0")
    a(f"v_mov_b32 v{vM}, {f32(-1e30)}")
    a(f"v_mov_b32 v{vL}, 0")
    for w2 in range(1, 8):
        a(f"s_waitcnt lgkmcnt({7-w2})")
        a(f"v_pk_add_f32 v[24:25], v[24:25], v[{24+4*w2}:{24+4*w2+1}]")
        a(f"v_pk_add_f32 v[26:27], v[26:27], v[{24+4*w2+2}:{24+4*w2+3}]")
    a(f"v_cvt_pk_bf16_f32 v{vQ}, v24, v25")
    a(f"v_cvt_pk_bf16_f32 v{vQ+1}, v26, v27")
    a(f"v_mov_b32 v{vQ+2}, v{vQ}")
    a(f"v_mov_b32 v{vQ+3}, v{vQ+1}")
    a(f"s_mov_b32 s{sIT}, 0")
    a(f"s_mov_b32 s{sPL}, 0x05040100")
    a(f"v_permlane32_swap_b32 v{vQ}, v{vQ+2}")
    a(f"v_permlane32_swap_b32 v{vQ+1}, v{vQ+3}")
    a(f"s_mov_b32 s{sPH}, 0x07060302")
    stamp(a, cfg, 3)
    CZ = f32(0.0625*LOG2E)
    A = 22; Z = 26; P = 27; T = 28; PB = 30; U = 34
    def tile(K, V, lab, refill=True):
        if refill:
            a("s_waitcnt vmcnt(12)")
        for jj in range(4):
            for i in range(4):
                if jj == 0:
                    a(f"v_dot2_f32_bf16 v{A+i}, v{K+4*i}, v{vQ}, 0")
                else:
                    a(f"v_dot2c_f32_bf16 v{A+i}, v{K+4*i+jj}, v{vQ+jj}")
        if refill:
            for i in range(4):
                a(f"buffer_load_dwordx4 v[{K+4*i}:{K+4*i+3}], v{vL16}, s[{dK}:{dK+3}], s{sOFF} offen offset:{i*1024} {KVF}")
        else:
            a("s_nop 2")
        a(f"v_permlane16_swap_b32 v{A}, v{A+1}")
        a(f"v_permlane16_swap_b32 v{A+2}, v{A+3}")
        a("s_nop 0")
        a(f"v_add_f32 v{A}, v{A}, v{A+1}")
        a(f"v_add_f32 v{A+2}, v{A+2}, v{A+3}")
        a("s_nop 0")
        a(dpp("v_add_f32", Z, A, A, "row_ror:8", bm="0x3"))
        a(dpp("v_add_f32", Z, A+2, A+2, "row_ror:8", bm="0xc"))
        for ctrl in ("quad_perm:[1,0,3,2]", "quad_perm:[2,3,0,1]", "row_half_mirror"):
            a("s_nop 1")
            a(dpp("v_add_f32", Z, Z, Z, ctrl))
        a(f"v_cvt_pk_bf16_f32 v{Z}, v{Z}, v{Z}")
        a(f"v_and_b32 v{Z}, s{sMASK}, v{Z}")
        a(f"v_mul_f32 v{Z}, {CZ}, v{Z}")
        a(f"v_cmp_gt_f32 vcc, v{Z}, v{vM}")
        a(f"s_cbranch_vccnz L_resc{lab}")
        a(f"L_back{lab}:")
        a(f"v_sub_f32 v{P}, v{Z}, v{vM}")
        a(f"v_exp_f32 v{P}, v{P}")
        a("s_nop 0")
        a(f"v_add_f32 v{vL}, v{vL}, v{P}")
        a(f"v_mov_b32 v{T}, v{P}")
        a("s_nop 1")
        a(f"v_permlane16_swap_b32 v{P}, v{T}")
        a("s_nop 1")
        a(f"v_mov_b32_dpp v{PB}, v{P} row_newbcast:0 row_mask:0xf bank_mask:0xf")
        a(f"v_mov_b32_dpp v{PB+1}, v{T} row_newbcast:0 row_mask:0xf bank_mask:0xf")
        a(f"v_mov_b32_dpp v{PB+2}, v{P} row_newbcast:8 row_mask:0xf bank_mask:0xf")
        a(f"v_mov_b32_dpp v{PB+3}, v{T} row_newbcast:8 row_mask:0xf bank_mask:0xf")
        if refill:
            a("s_waitcnt vmcnt(12)")
        for i in range(4):
            axpy_row(a, vO, V+4*i, PB+i, U)
        if refill:
            for i in range(4):
                a(f"buffer_load_dwordx4 v[{V+4*i}:{V+4*i+3}], v{vL16}, s[{dV}:{dV+3}], s{sOFF} offen offset:{i*1024} {KVF}")
            a(f"s_add_u32 s{sOFF}, s{sOFF}, 32768")
    def resc(lab):
        a(f"L_resc{lab}:")
        a(f"v_max_f32 v{T}, v{Z}, v{vM}")
        for ctrl, rm in (("row_ror:8", "0xf"), ("row_bcast:15", "0xa"), ("row_bcast:31", "0xc")):
            a("s_nop 1")
            a(dpp("v_max_f32", T, T, T, ctrl, rm))
        a("s_nop 0")
        a(f"v_readlane_b32 s{sT0}, v{T}, 63")
        a("s_nop 1")
        a(f"v_subrev_f32 v{T}, s{sT0}, v{vM}")
        a(f"v_exp_f32 v{T}, v{T}")
        a(f"v_mov_b32 v{vM}, s{sT0}")
        a(f"v_mul_f32 v{vL}, v{vL}, v{T}")
        for k in range(4):
            a(f"v_pk_mul_f32 v[{vO+2*k}:{vO+2*k+1}], v[{vO+2*k}:{vO+2*k+1}], v[{T}:{T+1}] op_sel_hi:[1,0]")
        a(f"s_branch L_back{lab}")
    a(".p2align 6")
    a("L_loop:")
    tile(KA, VA, "A")
    tile(KB, VB, "B")
    a(f"s_cmp_lt_u32 s{sIT}, 11")
    a("s_cbranch_scc1 L_job")
    a("L_jobret:")
    a(f"s_add_u32 s{sIT}, s{sIT}, 1")
    if cfg.get("stamps"):
        for n, itv in ((9, 3), (10, 6), (11, 9), (12, 12)):
            a(f"s_cmp_lg_u32 s{sIT}, {itv}")
            a(f"s_cbranch_scc1 L_nost{n}")
            stamp(a, cfg, n)
            a(f"L_nost{n}:")
    a(f"s_cmp_lt_u32 s{sIT}, 15")
    a("s_cbranch_scc1 L_loop")
    a("s_branch L_epi")
    for lab in "ABCD":
        resc(lab)
    def wo_issue():
        for i in range(4):
            a(f"buffer_load_dwordx4 v[{STG+4*i}:{STG+4*i+3}], v{vL16}, s[{dWO}:{dWO+3}], s{sJO} offen offset:{i*896} {WF}")
        a(f"s_add_u32 s{sJO}, s{sJO}, {4*896}")
    a("L_job:")
    a(f"s_cmp_eq_u32 s{sIT}, 0")
    a("s_cbranch_scc1 L_job0")
    a(f"s_cmp_gt_u32 s{sIT}, 8")
    a("s_cbranch_scc1 L_jobwd")
    a.c("slots 1..8: interleave two staged wo row pairs into W + idx")
    a(f"s_set_gpr_idx_on s{sIDX}, 0x8")
    a("s_nop 0")
    for pr in range(2):
        for e in range(4):
            r0 = STG + 8*pr + e; r1 = r0 + 4
            a(f"v_perm_b32 v{W+8*pr+2*e}, v{r1}, v{r0}, s{sPL}")
            a(f"v_perm_b32 v{W+8*pr+2*e+1}, v{r1}, v{r0}, s{sPH}")
    a("s_set_gpr_idx_off")
    a(f"s_add_u32 s{sIDX}, s{sIDX}, 16")
    a(f"s_cmp_eq_u32 s{sIT}, 8")
    a("s_cbranch_scc1 L_job8")
    wo_issue()
    a("s_branch L_jobret")
    a("L_job8:")
    a.c("w_down rows 56j+7w+i")
    a(f"s_mul_i32 s{sT0}, s{sJ}, 56")
    a(f"s_mul_i32 s{sT1}, s{sW}, 7")
    a(f"s_add_u32 s{sT0}, s{sT0}, s{sT1}")
    a(f"s_mul_i32 s{sJO}, s{sT0}, 896")
    for i in range(4):
        a(f"buffer_load_dwordx4 v[{STG+4*i}:{STG+4*i+3}], v{vL16}, s[{dWD}:{dWD+3}], s{sJO} offen offset:{i*896} {WF}")
    a(f"s_add_u32 s{sJO}, s{sJO}, {4*896}")
    a("s_branch L_jobret")
    a("L_job0:")
    G = 40; XG = 22; UG = STG
    a(f"v_lshrrev_b32 v{vA0}, 3, v{vLANE}")
    a(f"v_and_b32 v{UG}, 1, v{vA0}")
    a(f"v_lshrrev_b32 v{vA0}, 1, v{vA0}")
    a(f"v_lshlrev_b32 v{vA0}, 2, v{vA0}")
    a(f"v_lshl_add_u32 v{vA0}, v{UG}, 10, v{vA0}")
    a(f"s_and_b32 s{sT0}, s{sW}, 3")
    a(f"s_mul_i32 s{sT0}, s{sT0}, 224")
    a(f"v_add_u32 v{vA0}, s{sT0}, v{vA0}")
    for k in range(7):
        a(f"ds_read2_b32 v[{XG+2*k}:{XG+2*k+1}], v{vA0} offset0:{XN//4+8*k} offset1:{XN//4+8*k+4}")
    for k in range(8):
        a(f"v_mov_b32 v{G+k}, 0")
    a("s_waitcnt vmcnt(16) lgkmcnt(0)")
    a.c("wave 7: slot cleared (stores complete: older than everything waited for) -> count it")
    a(f"s_cmp_lg_u32 s{sW}, 7")
    a("s_cbranch_scc1 L_nocnt")
    a(f"s_lshl_b32 s{sT0}, s{sB}, 5")
    a(f"v_mov_b32 v{UG}, s{sT0}")
    a(f"v_mov_b32 v{UG+1}, 1")
    a("s_mov_b64 exec, 1")
    a(f"global_atomic_add v{UG}, v{UG+1}, s[{sDBG_}:{sDBG_+1}] sc1")
    a("s_mov_b64 exec, -1")
    a("s_nop 0")
    a("L_nocnt:")
    for i in range(14):
        axpy_row(a, G, gureg[i], XG+i, UG)
    a("s_nop 0")
    for k in range(4):
        a(f"v_permlane32_swap_b32 v{G+k}, v{G+4+k}")
    a("s_nop 0")
    for k in range(4):
        a(f"v_add_f32 v{G+k}, v{G+k}, v{G+4+k}")
    a("s_nop 0")
    a(f"v_permlane16_swap_b32 v{G}, v{G+2}")
    a(f"v_permlane16_swap_b32 v{G+1}, v{G+3}")
    a("s_nop 0")
    a(f"v_add_f32 v{G}, v{G}, v{G+2}")
    a(f"v_add_f32 v{G+1}, v{G+1}, v{G+3}")
    a.c("LDS addr = GP + w*256 + ((lane&7)*8 + (lane>>3))*4")
    a(f"v_and_b32 v{XG}, 7, v{vLANE}")
    a(f"v_lshrrev_b32 v{XG+1}, 3, v{vLANE}")
    a(dpp("v_add_f32", G+4, G, G, "row_ror:8", bm="0x3"))
    a(dpp("v_add_f32", G+4, G+1, G+1, "row_ror:8", bm="0xc"))
    a(f"v_lshl_add_u32 v{XG}, v{XG}, 3, v{XG+1}")
    a(f"v_lshlrev_b32 v{XG}, 2, v{XG}")
    a(f"s_lshl_b32 s{sT0}, s{sW}, 8")
    a(f"v_add_u32 v{XG}, s{sT0}, v{XG}")
    a(f"ds_write_b32 v{XG}, v{G+4} offset:{GP}")
    a.c("wo rows h*256+32w+i")
    a(f"s_lshl_b32 s{sT0}, s{sH}, 8")
    a(f"s_lshl_b32 s{sT1}, s{sW}, 5")
    a(f"s_add_u32 s{sT0}, s{sT0}, s{sT1}")
    a(f"s_mul_i32 s{sJO}, s{sT0}, 896")
    a(f"s_mov_b32 s{sIDX}, 0")
    wo_issue()
    a(f"v_mov_b32 v{XG}, {CNT}")
    a(f"v_mov_b32 v{XG+1}, 1")
    a("s_waitcnt lgkmcnt(0)")
    a("s_mov_b64 exec, 1")
    a(f"ds_add_u32 v{XG}, v{XG+1}")
    a("s_mov_b64 exec, -1")
    a.c("tiles C and D (prefetched during the q phase; older than the gu loads waited for above)")
    tile(KC, VC, "C", refill=False)
    tile(KD, VD, "D", refill=False)
    a("s_branch L_jobret")
    a("L_jobwd:")
    a(f"v_lshlrev_b32 v{vA0}, 5, v{vLANE}")
    a(f"s_lshl_b32 s{sT0}, s{sW}, 11")
    a(f"v_add_u32 v{vA0}, s{sT0}, v{vA0}")
    a(f"s_cmp_eq_u32 s{sIT}, 10")
    a("s_cbranch_scc1 L_job10")
    a(f"v_mov_b32 v{XG}, {CNT}")
    a("L_cntspin:")
    a(f"ds_read_b32 v{XG+1}, v{XG}")
    a("s_waitcnt lgkmcnt(0)")
    a(f"v_readfirstlane_b32 s{sT0}, v{XG+1}")
    a(f"s_cmp_lt_u32 s{sT0}, 8")
    a("s_cbranch_scc1 L_cntspin")
    a(f"v_lshlrev_b32 v{XG+8}, 2, v{vLANE}")
    a(f"v_add_u32 v{XG+8}, {GP}, v{XG+8}")
    for k in range(4):
        a(f"ds_read2st64_b32 v[{XG+2*k}:{XG+2*k+1}], v{XG+8} offset0:{2*k} offset1:{2*k+1}")
    for k in range(8):
        a(f"v_mov_b32 v{G+k}, 0")
    a(f"s_mul_i32 s{sT0}, s{sW}, 7")
    a("s_waitcnt lgkmcnt(0)")
    a(f"v_add_f32 v{XG}, v{XG}, v{XG+1}")
    a(f"v_add_f32 v{XG+2}, v{XG+2}, v{XG+3}")
    a(f"v_add_f32 v{XG+4}, v{XG+4}, v{XG+5}")
    a(f"v_add_f32 v{XG+6}, v{XG+6}, v{XG+7}")
    a(f"v_add_f32 v{XG}, v{XG}, v{XG+2}")
    a(f"v_add_f32 v{XG+4}, v{XG+4}, v{XG+6}")
    bf16_round(a, XG)
    bf16_round(a, XG+4)
    a(f"v_mul_f32 v{XG}, {f32(-LOG2E)}, v{XG}")
    a(f"v_exp_f32 v{XG}, v{XG}")
    a("s_nop 0")
    a(f"v_add_f32 v{XG}, 1.0, v{XG}")
    a(f"v_rcp_f32 v{XG}, v{XG}")
    a("s_nop 0")
    bf16_round(a, XG)
    a(f"v_mul_f32 v{XG}, v{XG}, v{XG+4}")
    bf16_round(a, XG)
    a("s_nop 0")
    for i in range(7):
        a(f"v_readlane_b32 s{sP+i}, v{XG}, s{sT0}")
        a(f"s_add_u32 s{sT0}, s{sT0}, 1")
    a("s_nop 0")
    UW = 32
    for i in range(4):
        axpy_row(a, G, STG+4*i, sP+i, UW, sgpr=True)
    for i in range(3):
        a(f"buffer_load_dwordx4 v[{STG+4*i}:{STG+4*i+3}], v{vL16}, s[{dWD}:{dWD+3}], s{sJO} offen offset:{i*896} {WF}")
    a(f"ds_write_b128 v{vA0}, v[{G}:{G+3}] offset:{YG}")
    a(f"ds_write_b128 v{vA0}, v[{G+4}:{G+7}] offset:{YG+16}")
    a("s_branch L_jobret")
    a("L_job10:")
    a(f"ds_read_b128 v[{G}:{G+3}], v{vA0} offset:{YG}")
    a(f"ds_read_b128 v[{G+4}:{G+7}], v{vA0} offset:{YG+16}")
    a("s_waitcnt lgkmcnt(0)")
    for i in range(3):
        axpy_row(a, G, STG+4*i, sP+4+i, UW, sgpr=True)
    a(f"ds_write_b128 v{vA0}, v[{G}:{G+3}] offset:{YG}")
    a(f"ds_write_b128 v{vA0}, v[{G+4}:{G+7}] offset:{YG+16}")
    a("s_branch L_jobret")
    a("L_epi:")
    stamp(a, cfg, 4)
    CW = 5
    CL = STG
    XR = STG+2
    a(f"s_cmp_lg_u32 s{sW}, {CW}")
    a("s_cbranch_scc1 L_epi1")
    a(f"s_lshl_b32 s{sT0}, s{sB}, 5")
    a(f"v_mov_b32 v{CL+1}, s{sT0}")
    a(f"global_load_dword v{CL}, v{CL+1}, s[{sDBG_}:{sDBG_+1}] sc1")
    a(f"v_and_b32 v{CL+4}, 3, v{vLANE}")
    a(f"v_lshlrev_b32 v{CL+4}, 3, v{CL+4}")
    a(f"s_lshl_b32 s{sT0}, s{sJ}, 5")
    a(f"buffer_load_dwordx2 v[{XR}:{XR+1}], v{CL+4}, s[{dX}:{dX+3}], s{sT0} offen")
    a("L_epi1:")
    a(dpp("v_add_f32", vL, vL, vL, "row_ror:8"))
    for k in range(4):
        a(f"v_permlane32_swap_b32 v{vO+k}, v{vO+4+k}")
    a(dpp("v_add_f32", vL, vL, vL, "row_bcast:15", "0xa"))
    for k in range(4):
        a(f"v_add_f32 v{vO+k}, v{vO+k}, v{vO+4+k}")
    a(dpp("v_add_f32", vL, vL, vL, "row_bcast:31", "0xc"))
    a(f"s_mul_i32 s{sT0}, s{sW}, {OPS}")
    a(f"v_add_u32 v{vA0}, s{sT0}, v{vA1}")
    a(f"ds_write_b128 v{vA0}, v[{vO}:{vO+3}] offset:{OP}")
    a(f"s_lshl_b32 s{sT0}, s{sW}, 3")
    a(f"v_mov_b32 v{vA0}, s{sT0}")
    a("s_lshl_b64 exec, 1, 63")
    a(f"ds_write_b64 v{vA0}, v[{vM}:{vL}] offset:{ML}")
    a("s_mov_b64 exec, -1")
    R = 22
    a(f"v_and_b32 v{R}, 7, v{vLANE}")
    a(f"v_lshlrev_b32 v{vA0}, 3, v{R}")
    a(f"v_mul_u32_u24 v{R}, {OPS}, v{R}")
    a(f"v_lshrrev_b32 v{R+1}, 3, v{vLANE}")
    a(f"v_lshl_add_u32 v{R}, v{R+1}, 4, v{R}")
    a(f"s_lshl_b32 s{sT0}, s{sW}, 7")
    a(f"v_add_u32 v{R}, s{sT0}, v{R}")
    a("s_waitcnt lgkmcnt(0)")
    a("s_barrier")
    MX = 24; O4 = 28; MM = 26; Y = 32
    a(f"ds_read_b64 v[{MX}:{MX+1}], v{vA0} offset:{ML}")
    a(f"ds_read_b128 v[{O4}:{O4+3}], v{R} offset:{OP}")
    for k in range(8):
        a(f"v_mov_b32 v{Y+k}, 0")
    a("s_waitcnt lgkmcnt(1)")
    a(dpp("v_max_f32", MM, MX, MX, "quad_perm:[1,0,3,2]"))
    a("s_nop 1")
    a(dpp("v_max_f32", MM, MM, MM, "quad_perm:[2,3,0,1]"))
    a("s_nop 1")
    a(dpp("v_max_f32", MM, MM, MM, "row_half_mirror"))
    a(f"v_sub_f32 v{MX}, v{MX}, v{MM}")
    a(f"v_exp_f32 v{MX}, v{MX}")
    a("s_waitcnt lgkmcnt(0)")
    a(f"v_mul_f32 v{MM+1}, v{MX+1}, v{MX}")
    for k in range(4):
        a(f"v_mul_f32 v{O4+k}, v{O4+k}, v{MX}")
    for ctrl in ("quad_perm:[1,0,3,2]", "quad_perm:[2,3,0,1]", "row_half_mirror"):
        a(dpp("v_add_f32", MM+1, MM+1, MM+1, ctrl))
        for k in range(4):
            a(dpp("v_add_f32", O4+k, O4+k, O4+k, ctrl))
    a(f"v_cvt_pk_bf16_f32 v{O4}, v{O4}, v{O4+1}")
    a(f"v_cvt_pk_bf16_f32 v{O4+1}, v{O4+2}, v{O4+3}")
    a("s_nop 0")
    for dq in range(8):
        a(f"v_readlane_b32 s{sP+2*dq}, v{O4}, {8*dq}")
        a(f"v_readlane_b32 s{sP+2*dq+1}, v{O4+1}, {8*dq}")
    a(f"v_lshlrev_b32 v{vA0}, 5, v{vLANE}")
    a(f"s_lshl_b32 s{sT0}, s{sW}, 11")
    a(f"v_add_u32 v{vA0}, s{sT0}, v{vA0}")
    for k in range(16):
        for e in range(8):
            a(f"v_dot2c_f32_bf16 v{Y+e}, s{sP+k}, v{W+8*k+e}")
    a("s_nop 3")
    a(f"ds_write_b128 v{vA0}, v[{Y}:{Y+3}] offset:{YA}")
    a(f"ds_write_b128 v{vA0}, v[{Y+4}:{Y+7}] offset:{YA+16}")
    a("s_waitcnt lgkmcnt(0)")
    a("s_barrier")
    stamp(a, cfg, 5)
    a(f"s_cmp_eq_u32 s{sW}, {CW}")
    a("s_cbranch_scc1 L_cons")
    a(f"s_cmp_gt_u32 s{sW}, 4")
    a("s_cbranch_scc1 L_fin")
    a(f"s_cmp_eq_u32 s{sW}, 4")
    a("s_cbranch_scc1 L_stml")
    a.c("waves 0,1: YA ; waves 2,3: YG ; n = (w&1)*64 + lane < 112")
    a(f"s_and_b32 s{sT0}, s{sW}, 1")
    a(f"s_lshl_b32 s{sT0}, s{sT0}, 10")
    a(f"v_add_u32 v{vA0}, s{sT0}, v{vL16}")
    a(f"s_lshr_b32 s{sT1}, s{sW}, 1")
    a(f"s_mov_b32 s{sT0}, {YA}")
    a(f"s_cmp_eq_u32 s{sT1}, 0")
    a(f"s_cselect_b32 s{sT0}, s{sT0}, {YG}")
    a(f"v_add_u32 v{R}, s{sT0}, v{vA0}")
    rds = [24, 28, 32, 36, 40, 44, 48, 52]
    for w2 in range(8):
        a(f"ds_read_b128 v[{rds[w2]}:{rds[w2]+3}], v{R} offset:{2048*w2}")
    a(f"s_mul_i32 s{sT1}, s{sT1}, 1792")
    a(f"s_add_u32 s{sT0}, s{sSLOT}, s{sT1}")
    a(f"v_cmp_gt_u32 vcc, 1792, v{vA0}")
    RD = rds[0]
    for w2 in range(1, 8):
        a(f"s_waitcnt lgkmcnt({7-w2})")
        a(f"v_pk_add_f32 v[{RD}:{RD+1}], v[{RD}:{RD+1}], v[{rds[w2]}:{rds[w2]+1}]")
        a(f"v_pk_add_f32 v[{RD+2}:{RD+3}], v[{RD+2}:{RD+3}], v[{rds[w2]+2}:{rds[w2]+3}]")
    a("s_and_saveexec_b64 s[100:101], vcc")
    a(f"buffer_store_dwordx4 v[{RD}:{RD+3}], v{vA0}, s[{dWS}:{dWS+3}], s{sT0} offen sc1")
    a("s_mov_b64 exec, -1")
    a("s_branch L_fin")
    a("L_stml:")
    a(f"v_mov_b32 v{vA0}, 3584")
    a("s_mov_b64 exec, 1")
    a(f"buffer_store_dwordx2 v[{MM}:{MM+1}], v{vA0}, s[{dWS}:{dWS+3}], s{sSLOT} offen sc1")
    a("s_mov_b64 exec, -1")
    a("s_branch L_fin")
    a("L_cons:")
    a(f"s_cmp_ge_u32 s{sJ}, 28")
    a("s_cbranch_scc1 L_fin")
    a.c("voffset = (lane>>2)*SLOT + (lane&3)*16 ; ML voffset = (lane>>2)*SLOT + 3584")
    VO_, VM_ = 22, 23
    a(f"v_lshrrev_b32 v{VM_}, 2, v{vLANE}")
    a(f"v_lshlrev_b32 v{VM_}, 12, v{VM_}")
    a(f"v_and_b32 v{VO_}, 3, v{vLANE}")
    a(f"v_lshl_add_u32 v{VO_}, v{VO_}, 4, v{VM_}")
    a(f"s_lshl_b32 s{sT0}, s{sB}, 17")
    a(f"s_lshl_b32 s{sT1}, s{sJ}, 6")
    a(f"s_add_u32 s{sT1}, s{sT1}, s{sT0}")
    a(f"s_add_u32 s{sT2}, s{sT1}, 0x10000")
    a(f"s_add_u32 s{sT3}, s{sT0}, 0x10000")
    a(f"s_mov_b32 s{sIT}, 0")
    a("s_waitcnt vmcnt(0)")
    a("L_clrchk:")
    a(f"v_readfirstlane_b32 s{sIDX}, v{CL}")
    a(f"s_cmp_ge_u32 s{sIDX}, 32")
    a("s_cbranch_scc1 L_poll0")
    a("s_sleep 8")
    a(f"global_load_dword v{CL}, v{CL+1}, s[{sDBG_}:{sDBG_+1}] sc1")
    a(f"s_add_u32 s{sIT}, s{sIT}, 1")
    a(f"s_cmp_lt_u32 s{sIT}, 0x400000")
    a("s_waitcnt vmcnt(0)")
    a("s_cbranch_scc1 L_clrchk")
    a("L_poll0:")
    A0, A1, G0, G1, M0, M1 = 24, 28, 32, 36, 40, 42
    loads = [
        (A0, 4, VO_, sT1, 0), (A1, 4, VO_, sT2, 0), (G0, 4, VO_, sT1, 1792), (G1, 4, VO_, sT2, 1792),
        (M0, 2, VM_, sT0, 3584), (M1, 2, VM_, sT3, 3584)]
    masks = [sP + 2*i for i in range(6)]
    for m in masks:
        a(f"s_mov_b64 s[{m}:{m+1}], -1")
    a(f"s_mov_b32 s{sIT}, 0")
    a("L_poll:")
    for n, ((r, cnt, vo, so, off), m) in enumerate(zip(loads, masks)):
        a(f"s_mov_b64 exec, s[{m}:{m+1}]")
        a(f"s_cbranch_execz L_skip{n}")
        a(f"buffer_load_dwordx{cnt} v[{r}:{r+cnt-1}], v{vo}, s[{dWS}:{dWS+3}], s{so} offen offset:{off} sc1")
        a(f"L_skip{n}:")
    a("s_mov_b64 exec, -1")
    a("s_waitcnt vmcnt(0)")
    TM = 44
    for (r, cnt, vo, so, off), m in zip(loads, masks):
        if cnt == 4:
            a(f"v_max3_u32 v{TM}, v{r}, v{r+1}, v{r+2}")
            a(f"v_max_u32 v{TM}, v{TM}, v{r+3}")
        else:
            a(f"v_max_u32 v{TM}, v{r}, v{r+1}")
        a(f"v_cmp_eq_u32 s[{m}:{m+1}], -1, v{TM}")
    a("s_nop 1")
    a(f"s_or_b64 s[100:101], s[{masks[0]}:{masks[0]+1}], s[{masks[1]}:{masks[1]+1}]")
    for m in masks[2:]:
        a(f"s_or_b64 s[100:101], s[100:101], s[{m}:{m+1}]")
    a("s_cbranch_scc0 L_ready")
    a(f"s_add_u32 s{sIT}, s{sIT}, 1")
    a(f"s_cmp_lt_u32 s{sIT}, 0x400000")
    if SLEEP:
        a(f"s_sleep {SLEEP}")
    a("s_cbranch_scc1 L_poll")
    a("L_ready:")
    stamp(a, cfg, 6)
    a.c("weights: partner of src is src^1 = lane^4 (all four lanes of a src hold the same M,L)")
    for M in (M0, M1):
        a(dpp("v_max_f32", TM + (M == M1), M, M, "row_half_mirror"))
    for M in (M0, M1):
        a(f"v_sub_f32 v{M}, v{M}, v{TM + (M == M1)}")
    for M in (M0, M1):
        a(f"v_exp_f32 v{M}, v{M}")
    a("s_nop 0")
    for M in (M0, M1):
        a(f"v_mul_f32 v{M+1}, v{M+1}, v{M}")
    a("s_nop 0")
    for M in (M0, M1):
        a(dpp("v_add_f32", M+1, M+1, M+1, "row_half_mirror"))
    for M in (M0, M1):
        a(f"v_rcp_f32 v{M+1}, v{M+1}")
    a(f"v_pk_add_f32 v[{G0}:{G0+1}], v[{G0}:{G0+1}], v[{G1}:{G1+1}]")
    a(f"v_pk_add_f32 v[{G0+2}:{G0+3}], v[{G0+2}:{G0+3}], v[{G1+2}:{G1+3}]")
    for M in (M0, M1):
        a(f"v_mul_f32 v{M}, v{M}, v{M+1}")
    a(f"v_pk_mul_f32 v[{A0}:{A0+1}], v[{A0}:{A0+1}], v[{M0}:{M0+1}] op_sel_hi:[1,0]")
    a(f"v_pk_mul_f32 v[{A0+2}:{A0+3}], v[{A0+2}:{A0+3}], v[{M0}:{M0+1}] op_sel_hi:[1,0]")
    a(pkfma_bcast(A0, A1, M1))
    a(pkfma_bcast(A0+2, A1+2, M1))
    regs8 = [G0, G0+1, G0+2, G0+3, A0, A0+1, A0+2, A0+3]
    for ctrl in ("row_ror:4", "row_ror:8"):
        for r in regs8:
            a(dpp("v_add_f32", r, r, r, ctrl))
    a("s_nop 0")
    for k in range(4):
        a(f"v_permlane32_swap_b32 v{A0+k}, v{G0+k}")
    a("s_nop 0")
    for k in range(4):
        a(f"v_add_f32 v{A0+k}, v{A0+k}, v{G0+k}")
    for k in range(4):
        a(f"v_mov_b32 v{G0+k}, v{A0+k}")
    a("s_nop 0")
    for k in range(4):
        a(f"v_permlane16_swap_b32 v{A0+k}, v{G0+k}")
    a("s_nop 0")
    for k in range(4):
        a(f"v_add_f32 v{A0+k}, v{A0+k}, v{G0+k}")
    for k in range(4):
        bf16_round(a, A0+k)
    for k in range(4):
        a(f"v_mov_b32 v{G0+k}, v{A0+k}")
    a(f"v_lshlrev_b32 v{A1}, 16, v{XR}")
    a(f"v_and_b32 v{A1+1}, s{sMASK}, v{XR}")
    for k in range(4):
        a(f"v_permlane32_swap_b32 v{A0+k}, v{G0+k}")
    a(f"v_lshlrev_b32 v{A1+2}, 16, v{XR+1}")
    a(f"v_and_b32 v{A1+3}, s{sMASK}, v{XR+1}")
    for k in range(4):
        a(f"v_add_f32 v{A0+k}, v{A0+k}, v{A1+k}")
    for k in range(4):
        bf16_round(a, A0+k)
    for k in range(4):
        a(f"v_add_f32 v{A0+k}, v{A0+k}, v{G0+k}")
    a(f"v_cvt_pk_bf16_f32 v{A0}, v{A0}, v{A0+1}")
    a(f"v_cvt_pk_bf16_f32 v{A0+1}, v{A0+2}, v{A0+3}")
    a(f"s_mul_i32 s{sT1}, s{sB}, 896")
    srd(a, dGU, sOUT_, f"s{sT1}", 896)
    a(f"s_lshl_b32 s{sT0}, s{sJ}, 5")
    a("s_mov_b64 exec, 15")
    a(f"buffer_store_dwordx2 v[{A0}:{A0+1}], v{CL+4}, s[{dGU}:{dGU+3}], s{sT0} offen")
    a("s_mov_b64 exec, -1")
    a("L_fin:")
    if cfg.get("stamps"):
        a("s_waitcnt vmcnt(0)")
        stamp(a, cfg, 7)
        a("v_writelane_b32 v7, s98, 0")
        a("s_getreg_b32 s96, hwreg(HW_REG_XCC_ID)")
        a("v_writelane_b32 v7, s96, 8")
        a(f"s_lshl_b32 s{sT0}, s2, 3")
        a(f"s_add_u32 s{sT0}, s{sT0}, s{sW}")
        a(f"s_lshl_b32 s{sT0}, s{sT0}, 6")
        a(f"s_add_u32 s{sT0}, s{sT0}, 0x200000")
        a(f"v_lshlrev_b32 v{vA0}, 2, v{vLANE}")
        a("s_mov_b64 exec, 0xffff")
        a(f"buffer_store_dword v7, v{vA0}, s[{dWS}:{dWS+3}], s{sT0} offen")
    a("L_end:")
    a("s_endpgm")
    hdr = open(REF).read().split("; Override launch")[0] if os.path.exists(REF) else ""
    return hdr + f"""; @launch grid=(256,1,1) block=(512,1,1) lds={LDS_BYTES}
.amdgcn_target "amdgcn-amd-amdhsa--gfx950"
.text
.globl {KN}
.p2align 8
.type {KN},@function
{KN}:
""" + a.text() + f""".section .rodata,"a"
.p2align 6
.amdhsa_kernel {KN}
  .amdhsa_next_free_vgpr 256
  .amdhsa_next_free_sgpr 102
  .amdhsa_accum_offset 256
  .amdhsa_group_segment_fixed_size 0
  .amdhsa_kernarg_size 96
  .amdhsa_user_sgpr_count 2
  .amdhsa_user_sgpr_kernarg_segment_ptr 1
  .amdhsa_system_sgpr_workgroup_id_x 1
.end_amdhsa_kernel
"""

if __name__ == "__main__":
    name = sys.argv[1]
    cfg = json.loads(sys.argv[2]) if len(sys.argv) > 2 else {}
    open(name, "w").write(gen(cfg))
```

```python
import struct, sys, os, json

KN = "parallel_sum__mha_block_cached__glu_gated_glu__decode_kernel"
REF = "parallel_sum__mha_block_cached__glu_gated_glu__decode.s.ref"
LOG2E = 1.4426950408889634

def f32(x):
    return "0x%08x" % struct.unpack("<I", struct.pack("<f", x))[0]

class Asm:
    def __init__(self):
        self.lines = []
        self.vm = []
    def __call__(self, s):
        for l in s.strip("\n").split("\n"):
            self.lines.append("  " + l.strip() if not l.strip().endswith(":") else l.strip())
    def c(self, s):
        self.lines.append("  ; " + s)
    def vmem(self, s, tag):
        self(s); self.vm.append(tag)
    def wait_tag(self, tag):
        idx = max(i for i, t in enumerate(self.vm) if t == tag)
        n = len(self.vm) - 1 - idx
        self(f"s_waitcnt vmcnt({n})")
        self.vm = self.vm[idx+1:]
    def text(self):
        return "\n".join(self.lines) + "\n"

XT   = 0
QP   = 16384
GP   = QP + 4096
YG   = GP + 2048
OP   = YG + 16384
OPS  = 1040
ML   = OP + 8*OPS
CNT  = ML + 64
QFL  = CNT + 4
QL   = CNT + 64
YA   = QL + 512
LDS_BYTES = YA + 16384
SLOT = 4096
WS_CLM = 0x180000
WS_Q   = 0x1A0000

sBH = 3
sX_, sK_, sV_, sWQ_, sWO_, sBX_, sWG_, sWU_ = 4, 6, 8, 10, 12, 14, 16, 18
sWD_, sOUT_, sDBG_, sWS_ = 20, 22, 24, 26
dK, dV, dWQ, dGU, dX, dWO, dWD, dWS = 28, 32, 36, 40, 44, 48, 52, 56
sW, sB, sH, sS, sJ, sIT, sOFF, sT0, sT1, sMASK, sT2, sT3 = 60, 61, 62, 63, 64, 65, 66, 67, 68, 69, 70, 71
sP = 72
sO1, sO2, sO3 = 88, 89, 90
sOB, sVALID, sCNT = 88, 89, 90
sJO, sIDX, sPL, sPH, sSLOT = 91, 92, 93, 94, 95
sST = 92
sPR = 74
sNL, sNH = 72, 73
vLANE, vL16, vWQO, vGUO, vA0, vA1 = 1, 2, 3, 4, 5, 6
vCLM, vCHK = 3, 4
vQ = 8
vO = 12
vM, vL = 20, 21
STG = 48
KA, VA, KB, VB = 64, 80, 96, 112
W = 128
KC, VC, KD, VD = 128, 144, 160, 176
GUR = 192

def srd(a, d, base, off_s, nrec):
    if off_s is None:
        a(f"s_mov_b32 s{d}, s{base}")
        a(f"s_mov_b32 s{d+1}, s{base+1}")
    else:
        a(f"s_add_u32 s{d}, s{base}, {off_s}")
        a(f"s_addc_u32 s{d+1}, s{base+1}, 0")
    a(f"s_mov_b32 s{d+2}, {nrec}")
    a(f"s_mov_b32 s{d+3}, 0x00020000")

def dpp(op, d, s0, s1, ctrl, rm="0xf", bm="0xf"):
    return f"{op}_dpp v{d}, v{s0}, v{s1} {ctrl} row_mask:{rm} bank_mask:{bm}"

def reduce64(a, op, v, sdst):
    for ctrl, rm in (("quad_perm:[1,0,3,2]", "0xf"), ("quad_perm:[2,3,0,1]", "0xf"), ("row_half_mirror", "0xf"),
                     ("row_mirror", "0xf"), ("row_bcast:15", "0xa"), ("row_bcast:31", "0xc")):
        a("s_nop 1")
        a(dpp(op, v, v, v, ctrl, rm))
    a("s_nop 0")
    a(f"v_readlane_b32 s{sdst}, v{v}, 63")

def bsel(m):
    return "op_sel:[0,1,0] op_sel_hi:[1,1,1]" if m & 1 else "op_sel_hi:[1,0,1]"

def pkfma_bcast(acc, u, m, sgpr=False):
    r = "s" if sgpr else "v"
    base = m & ~1
    return f"v_pk_fma_f32 v[{acc}:{acc+1}], v[{u}:{u+1}], {r}[{base}:{base+1}], v[{acc}:{acc+1}] {bsel(m)}"

def unpack(a, data, tmp):
    for k in range(4):
        a(f"v_lshlrev_b32 v{tmp+2*k}, 16, v{data+k}")
        a(f"v_and_b32 v{tmp+2*k+1}, s{sMASK}, v{data+k}")

def axpy_row(a, acc, data, m, tmp, sgpr=False):
    unpack(a, data, tmp)
    for k in range(4):
        a(pkfma_bcast(acc+2*k, tmp+2*k, m, sgpr))

def bf16_round(a, v):
    a(f"v_cvt_pk_bf16_f32 v{v}, v{v}, v{v}")
    a(f"v_and_b32 v{v}, s{sMASK}, v{v}")

def stamp(a, cfg, idx):
    if cfg.get("stamps"):
        a("s_memrealtime s[96:97]")
        a("s_waitcnt lgkmcnt(0)")
        a(f"v_writelane_b32 v7, s96, {idx}")

def gen(cfg):
    KVF = cfg.get("kvflags", "nt")
    WF = cfg.get("wflags", "")
    SLEEP = cfg.get("sleep", 4)
    VW = cfg.get("vw", 12)
    PACE = cfg.get("pace", 3)
    SI = cfg.get("si", 11)
    NST = 4 + 2*SI
    NDYN = (512 - 16*NST)//2
    SPIN = 0x200000
    a = Asm()
    a("s_cmp_ge_u32 s2, 256")
    a("s_cbranch_scc1 L_end")
    a("s_load_dwordx16 s[4:19], s[0:1], 0")
    a("s_load_dwordx8 s[20:27], s[0:1], 64")
    if cfg.get("stamps"):
        a("v_mov_b32 v7, 0")
        a("s_memrealtime s[98:99]")
    a(f"v_and_b32 v{vLANE}, 63, v0")
    a(f"v_lshrrev_b32 v{vA0}, 6, v0")
    a(f"v_lshlrev_b32 v{vL16}, 4, v{vLANE}")
    a(f"v_readfirstlane_b32 s{sW}, v{vA0}")
    a.c("decode workgroup id: xcd=g&7, e=(g>>3)&1, s=(g>>4)&1, b=g>>5; the two key halves of a head sit on xcd i and i+1+2e")
    a(f"s_and_b32 s{sT0}, s2, 7")
    a(f"s_bfe_u32 s{sT1}, s2, 0x10003")
    a(f"s_bfe_u32 s{sS}, s2, 0x10004")
    a(f"s_lshr_b32 s{sB}, s2, 5")
    if cfg.get("pair", "xor") == "k44":
        a(f"s_lshl_b32 s{sT2}, s{sT1}, 1")
        a(f"s_add_u32 s{sT2}, s{sT2}, 1")
        a(f"s_mul_i32 s{sT2}, s{sT2}, s{sS}")
        a(f"s_sub_u32 s{sT0}, s{sT0}, s{sT2}")
        a(f"s_and_b32 s{sT0}, s{sT0}, 7")
    elif cfg.get("pair", "xor") == "xor":
        a(f"s_lshl_b32 s{sT2}, s{sT1}, 1")
        a(f"s_add_u32 s{sT2}, s{sT2}, 3")
        a(f"s_mul_i32 s{sT2}, s{sT2}, s{sS}")
        a(f"s_xor_b32 s{sT0}, s{sT0}, s{sT2}")
    a(f"s_lshl_b32 s{sH}, s{sT0}, 1")
    a(f"s_add_u32 s{sH}, s{sH}, s{sT1}")
    a(f"s_lshl_b32 s{sJ}, s{sH}, 1")
    a(f"s_add_u32 s{sJ}, s{sJ}, s{sS}")
    a(f"s_mov_b32 s{sMASK}, 0xffff0000")
    a.c("wq slice voffset = (lane>>1)*8192 + (lane&1)*16")
    a(f"v_lshrrev_b32 v{vA0}, 1, v{vLANE}")
    a(f"v_and_b32 v{vA1}, 1, v{vLANE}")
    a(f"v_lshlrev_b32 v{vWQO}, 13, v{vA0}")
    a(f"v_lshl_add_u32 v{vWQO}, v{vA1}, 4, v{vWQO}")
    a(f"s_lshl_b32 s{sBH}, s{sB}, 4")
    a(f"s_add_u32 s{sBH}, s{sBH}, s{sH}")
    a(f"s_lshl_b32 s{sT0}, s{sBH}, 21")
    a(f"s_mul_i32 s{sT1}, s{sW}, 896")
    a.c("p = s*8 + b ; flag byte index = h*16 + p ; wq column byte offset = h*512 + p*32")
    a(f"s_lshl_b32 s{sPL}, s{sS}, 3")
    a(f"s_add_u32 s{sPL}, s{sPL}, s{sB}")
    a(f"s_lshl_b32 s{sPH}, s{sH}, 4")
    a(f"s_add_u32 s{sPH}, s{sPH}, s{sPL}")
    a(f"s_lshl_b32 s{sT2}, s{sPH}, 5")
    a(f"s_sub_u32 s{sT3}, {448*8192}, s{sT2}")
    a(f"s_lshl_b32 s{sOFF}, s{sW}, 12")
    a(f"s_mul_i32 s{sO1}, s{sS}, {NST*8*4096}")
    a(f"s_add_u32 s{sOFF}, s{sOFF}, s{sO1}")
    a(f"s_sub_u32 s{sPR}, 7, s{sW}")
    a(f"s_lshl_b32 s{sIT}, s{sPR}, 19")
    a(f"s_add_u32 s{sJO}, s{sIT}, 0x40000")
    a(f"s_add_u32 s{sO1}, s{sOFF}, 0x8000")
    a(f"s_add_u32 s{sO2}, s{sOFF}, 0x10000")
    a(f"s_add_u32 s{sO3}, s{sOFF}, 0x18000")
    a("s_waitcnt lgkmcnt(0)")
    X4 = 24; WQ0 = 56; WQ1 = 60
    srd(a, dX, sX_, f"s{sT1}", 896)
    a.vmem(f"buffer_load_dwordx4 v[{X4}:{X4+3}], v{vL16}, s[{dX}:{dX+3}], 0 offen", "x")
    srd(a, dWQ, sWQ_, f"s{sT2}", f"s{sT3}")
    a.vmem(f"buffer_load_dwordx4 v[{WQ0}:{WQ0+3}], v{vWQO}, s[{dWQ}:{dWQ+3}], s{sIT} offen {WF}", "wq0")
    a.vmem(f"buffer_load_dwordx4 v[{WQ1}:{WQ1+3}], v{vWQO}, s[{dWQ}:{dWQ+3}], s{sJO} offen {WF}", "wq1")
    a.c("launch nonce of this head: first arriver's clock value, agreed through a compare-swap on zeroed d_debug")
    NON = 20
    a(f"s_cmp_lg_u32 s{sW}, 0")
    a("s_cbranch_scc1 L_nonon")
    a("s_memrealtime s[100:101]")
    a(f"s_lshl_b32 s{sT1}, s{sH}, 3")
    a(f"v_mov_b32 v{vA0}, s{sT1}")
    a(f"v_mov_b32 v{NON+1}, 0")
    a("s_waitcnt lgkmcnt(0)")
    a("s_or_b32 s100, s100, 1")
    a(f"v_mov_b32 v{NON}, s100")
    a("s_mov_b64 exec, 1")
    a(f"global_atomic_cmpswap v{NON}, v{vA0}, v[{NON}:{NON+1}], s[{sDBG_}:{sDBG_+1}] sc0 sc1")
    a("s_mov_b64 exec, -1")
    a("L_nonon:")
    srd(a, dK, sK_, f"s{sT0}", 0x200000)
    srd(a, dV, sV_, f"s{sT0}", 0x200000)
    a("s_barrier")
    kv = []
    for (K, V, so) in ((KA, VA, sOFF), (KB, VB, sO1), (KC, VC, sO2), (KD, VD, sO3)):
        kv += [(K, dK, so, i) for i in range(4)] + [(V, dV, so, i) for i in range(4)]
    def kvone():
        base, d, so, i = kv.pop(0)
        a.vmem(f"buffer_load_dwordx4 v[{base+4*i}:{base+4*i+3}], v{vL16}, s[{d}:{d+3}], s{so} offen offset:{i*1024} {KVF}", "kv")
    def sprinkle(start, every, count):
        body = a.lines[start:]
        del a.lines[start:]
        k = 0
        for n_, l in enumerate(body):
            a.lines.append(l)
            if k < count and n_ % every == every-1 and not l.strip().startswith(("s_waitcnt vmcnt", ";")):
                kvone(); k += 1
        while k < count:
            kvone(); k += 1
    def kvgroup(paced):
        for _ in range(4):
            base, d, so, i = kv.pop(0)
            a.vmem(f"buffer_load_dwordx4 v[{base+4*i}:{base+4*i+3}], v{vL16}, s[{d}:{d+3}], s{so} offen offset:{i*1024} {KVF}", "kv")
            if paced:
                a(f"s_waitcnt vmcnt({PACE})")
    kvgroup(False)
    stamp(a, cfg, 1)
    srd(a, dWS, sWS_, None, 0x400000)
    a(f"s_lshl_b32 s{sSLOT}, s{sB}, 5")
    a(f"s_add_u32 s{sSLOT}, s{sSLOT}, s{sJ}")
    a(f"s_lshl_b32 s{sSLOT}, s{sSLOT}, 12")
    for k in range(8):
        a(f"v_mov_b32 v{vO+k}, 0")
    a(f"s_cmp_lt_u32 s{sW}, 4")
    a(f"s_cselect_b32 s{dGU}, s{sWG_}, s{sWU_}")
    a(f"s_cselect_b32 s{dGU+1}, s{sWG_+1}, s{sWU_+1}")
    a(f"s_mov_b32 s{dGU+2}, {448*3584}")
    a(f"s_mov_b32 s{dGU+3}, 0x00020000")
    srd(a, dWO, sWO_, None, 4096*896)
    srd(a, dWD, sWD_, None, 1792*896)
    a(f"v_cmp_gt_u32 vcc, 56, v{vLANE}")
    a(f"v_mov_b32 v{vA0}, {CNT}")
    a(f"ds_write_b64 v{vA0}, v[{vO}:{vO+1}]")
    a.c("LayerNorm: wave w normalises x[w]")
    E = 28; S0 = 36
    a.wait_tag("x")
    ln0 = len(a.lines)
    unpack(a, X4, E)
    a(f"v_add_f32 v{S0}, v{E}, v{E+1}")
    a(f"v_add_f32 v{S0+1}, v{E+2}, v{E+3}")
    a(f"v_add_f32 v{S0+2}, v{E+4}, v{E+5}")
    a(f"v_add_f32 v{S0+3}, v{E+6}, v{E+7}")
    a(f"v_add_f32 v{S0}, v{S0}, v{S0+1}")
    a(f"v_add_f32 v{S0+2}, v{S0+2}, v{S0+3}")
    a(f"v_add_f32 v{S0}, v{S0}, v{S0+2}")
    reduce64(a, "v_add_f32", S0, sT0)
    MEAN = S0+1; ACC = S0+2; D = S0+4
    a("s_nop 1")
    a(f"v_mov_b32 v{MEAN}, s{sT0}")
    a(f"v_mul_f32 v{MEAN}, {f32(1.0/448)}, v{MEAN}")
    for k in range(8):
        a(f"v_sub_f32 v{D+k}, v{E+k}, v{MEAN}")
    a(f"v_mul_f32 v{ACC}, v{D}, v{D}")
    for k in range(1, 8):
        a(f"v_fmac_f32 v{ACC}, v{D+k}, v{D+k}")
    a(f"v_cndmask_b32 v{ACC}, 0, v{ACC}, vcc")
    reduce64(a, "v_add_f32", ACC, sT0)
    bf16_round(a, MEAN)
    a(f"v_mov_b32 v{ACC}, s{sT0}")
    a(f"v_mul_f32 v{ACC}, {f32(1.0/448)}, v{ACC}")
    bf16_round(a, ACC)
    a(f"v_add_f32 v{ACC}, {f32(1e-5)}, v{ACC}")
    bf16_round(a, ACC)
    a(f"v_sqrt_f32 v{ACC}, v{ACC}")
    for k in range(8):
        a(f"v_sub_f32 v{D+k}, v{E+k}, v{MEAN}")
    bf16_round(a, ACC)
    a(f"v_rcp_f32 v{ACC}, v{ACC}")
    for k in range(4):
        a(f"v_cvt_pk_bf16_f32 v{X4+k}, v{D+2*k}, v{D+2*k+1}")
    unpack(a, X4, D)
    for k in range(8):
        a(f"v_mul_f32 v{D+k}, v{D+k}, v{ACC}")
    for k in range(4):
        a(f"v_cvt_pk_bf16_f32 v{X4+k}, v{D+2*k}, v{D+2*k+1}")
    unpack(a, X4, E)
    a(f"v_lshlrev_b32 v{vA0}, 5, v{vLANE}")
    a(f"s_lshl_b32 s{sT0}, s{sW}, 11")
    a(f"v_add_u32 v{vA0}, s{sT0}, v{vA0}")
    a(f"ds_write_b128 v{vA0}, v[{E}:{E+3}] offset:{XT}")
    a(f"ds_write_b128 v{vA0}, v[{E+4}:{E+7}] offset:{XT+16}")
    a.c("multiplier addresses: row (64w + 32i + lane>>1) * 4")
    a(f"v_lshrrev_b32 v{vA0}, 1, v{vLANE}")
    a(f"v_lshlrev_b32 v{vA0}, 2, v{vA0}")
    a(f"s_lshl_b32 s{sT0}, s{sPR}, 8")
    a(f"v_add_u32 v{vA0}, s{sT0}, v{vA0}")
    a(f"v_add_u32 v{vA1}, 128, v{vA0}")
    sprinkle(ln0, cfg.get("spr1", 30), cfg.get("n1", 4))
    a("s_waitcnt lgkmcnt(0)")
    a("s_barrier")
    stamp(a, cfg, 2)
    XM = 24
    for k in range(4):
        a(f"ds_read2st64_b32 v[{XM+2*k}:{XM+2*k+1}], v{vA0} offset0:{XT//256+16*k} offset1:{XT//256+16*k+8}")
    for k in range(4):
        a(f"ds_read2st64_b32 v[{XM+8+2*k}:{XM+8+2*k+1}], v{vA1} offset0:{XT//256+16*k} offset1:{XT//256+16*k+8}")
    U0 = 40; U1 = 48
    a.wait_tag("wq1")
    fm0 = len(a.lines)
    unpack(a, WQ0, U0)
    unpack(a, WQ1, U1)
    QA = GUR
    a("s_waitcnt lgkmcnt(4)")
    for b in range(8):
        for k in range(4):
            m = XM + b
            sel = "op_sel:[0,1] op_sel_hi:[1,1]" if m & 1 else "op_sel_hi:[1,0]"
            a(f"v_pk_mul_f32 v[{QA+8*b+2*k}:{QA+8*b+2*k+1}], v[{U0+2*k}:{U0+2*k+1}], v[{m&~1}:{(m&~1)+1}] {sel}")
    a("s_waitcnt lgkmcnt(0)")
    for b in range(8):
        for k in range(4):
            a(pkfma_bcast(QA+8*b+2*k, U1+2*k, XM+8+b))
    a.c("transposing reduction over lane bits 5,4,3,2 then all-reduce over bit 1")
    for r in range(32):
        a(f"v_permlane32_swap_b32 v{QA+r}, v{QA+32+r}")
    for r in range(0, 32, 2):
        a(f"v_pk_add_f32 v[{QA+r}:{QA+r+1}], v[{QA+r}:{QA+r+1}], v[{QA+32+r}:{QA+32+r+1}]")
    for r in range(16):
        a(f"v_permlane16_swap_b32 v{QA+r}, v{QA+16+r}")
    for r in range(0, 16, 2):
        a(f"v_pk_add_f32 v[{QA+r}:{QA+r+1}], v[{QA+r}:{QA+r+1}], v[{QA+16+r}:{QA+16+r+1}]")
    R3 = QA + 32
    for r in range(8):
        a(dpp("v_add_f32", R3+r, QA+r, QA+r, "row_ror:8", bm="0x3"))
    for r in range(8):
        a(dpp("v_add_f32", R3+r, QA+8+r, QA+8+r, "row_ror:8", bm="0xc"))
    R4 = QA + 48
    for r in range(4):
        a(dpp("v_add_f32", R4+r, R3+r, R3+r, "row_shl:4", bm="0x5"))
    for r in range(4):
        a(dpp("v_add_f32", R4+r, R3+4+r, R3+4+r, "row_shr:4", bm="0xa"))
    a.c("LDS addr = QP + w*512 + (lane>>3)*64 + (lane&1)*32 + ((lane>>2)&1)*16")
    a(f"v_lshrrev_b32 v{vA0}, 3, v{vLANE}")
    a(f"v_lshlrev_b32 v{vA0}, 6, v{vA0}")
    a(f"v_and_b32 v{vA1}, 1, v{vLANE}")
    a(f"v_lshl_add_u32 v{vA0}, v{vA1}, 5, v{vA0}")
    a(f"v_and_b32 v{vA1}, 4, v{vLANE}")
    a(f"v_lshl_add_u32 v{vA0}, v{vA1}, 2, v{vA0}")
    for r in range(4):
        a(dpp("v_add_f32", R4+r, R4+r, R4+r, "quad_perm:[2,3,0,1]"))
    a(f"s_lshl_b32 s{sT0}, s{sPR}, 9")
    a(f"v_add_u32 v{vA0}, s{sT0}, v{vA0}")
    a(f"ds_write_b128 v{vA0}, v[{R4}:{R4+3}] offset:{QP}")
    sprinkle(fm0, cfg.get("spr2", 40), cfg.get("n2", 4))
    QD = 40
    VQA = 39
    a(f"v_and_b32 v{VQA}, 31, v{vLANE}")
    a(f"v_lshlrev_b32 v{VQA}, 5, v{VQA}")
    a(f"s_lshl_b32 s{sT3}, s{sBH}, 10")
    a(f"s_add_u32 s{sT3}, s{sT3}, {WS_Q}")
    a("s_waitcnt lgkmcnt(0)")
    a("s_barrier")
    a(f"s_cmp_lg_u32 s{sW}, 0")
    a("s_cbranch_scc1 L_nopub")
    a.c("wave 0: lanes 0..15 = (b, half): sum 7 partials, publish 8 tagged columns each, then poll for this WG's q")
    a(f"v_lshlrev_b32 v{vA0}, 5, v{vLANE}")
    a("s_mov_b64 exec, 0xffff")
    PR = GUR
    for w2 in range(7):
        a(f"ds_read_b128 v[{PR+8*w2}:{PR+8*w2+3}], v{vA0} offset:{QP+512*w2}")
        a(f"ds_read_b128 v[{PR+8*w2+4}:{PR+8*w2+7}], v{vA0} offset:{QP+512*w2+16}")
    a(f"v_lshrrev_b32 v{vA1}, 1, v{vLANE}")
    a(f"v_lshlrev_b32 v{vA1}, 14, v{vA1}")
    a(f"v_and_b32 v{vA0}, 1, v{vLANE}")
    a(f"v_lshl_add_u32 v{vA1}, v{vA0}, 5, v{vA1}")
    a(f"s_lshl_b32 s{sT0}, s{sPH}, 6")
    a(f"s_add_u32 s{sT0}, s{sT0}, {WS_Q}")
    a.c("nonce = returned old value, or our own proposal if the word was still zero")
    a(f"v_readfirstlane_b32 s{sT1}, v{NON}")
    a(f"s_cmp_eq_u32 s{sT1}, 0")
    a(f"s_cselect_b32 s{sT1}, s100, s{sT1}")
    a(f"s_and_b32 s{sNL}, s{sT1}, 0xffff")
    a(f"s_lshr_b32 s{sNH}, s{sT1}, 16")
    a(f"v_mov_b32 v{QD}, s{sNL}")
    a(f"v_mov_b32 v{QD+1}, s{sNH}")
    for w2 in range(1, 7):
        a(f"s_waitcnt lgkmcnt({12-2*w2})")
        for k in range(4):
            a(f"v_pk_add_f32 v[{PR+2*k}:{PR+2*k+1}], v[{PR+2*k}:{PR+2*k+1}], v[{PR+8*w2+2*k}:{PR+8*w2+2*k+1}]")
    for k in range(8):
        a(f"v_cvt_pk_bf16_f32 v{PR+k}, v{PR+k}, v{PR+k}")
    for k in range(8):
        a(f"v_and_or_b32 v{PR+56+k}, v{PR+k}, s{sMASK}, v{QD+(k&1)}")
    a(f"buffer_store_dwordx4 v[{PR+56}:{PR+59}], v{vA1}, s[{dWS}:{dWS+3}], s{sT0} offen sc1")
    a(f"buffer_store_dwordx4 v[{PR+60}:{PR+63}], v{vA1}, s[{dWS}:{dWS+3}], s{sT0} offen offset:16 sc1")
    a("s_mov_b64 exec, -1")
    stamp(a, cfg, 13)
    a(f"s_mov_b32 s{sIT}, 0")
    TX = 24
    a("L_qpoll:")
    a(f"buffer_load_dwordx4 v[{QD}:{QD+3}], v{VQA}, s[{dWS}:{dWS+3}], s{sT3} offen sc1")
    a(f"buffer_load_dwordx4 v[{QD+4}:{QD+7}], v{VQA}, s[{dWS}:{dWS+3}], s{sT3} offen offset:16 sc1")
    a(f"s_add_u32 s{sIT}, s{sIT}, 1")
    a("s_waitcnt vmcnt(0)")
    for k in range(8):
        a(f"v_xor_b32 v{TX+k}, s{sNH if k & 1 else sNL}, v{QD+k}")
    a(f"v_or3_b32 v{TX}, v{TX}, v{TX+1}, v{TX+2}")
    a(f"v_or3_b32 v{TX+3}, v{TX+3}, v{TX+4}, v{TX+5}")
    a(f"v_or3_b32 v{TX}, v{TX}, v{TX+6}, v{TX+7}")
    a(f"v_or_b32 v{TX}, v{TX}, v{TX+3}")
    a(f"v_and_b32 v{TX}, 0xffff, v{TX}")
    a(f"v_cmp_ne_u32 vcc, 0, v{TX}")
    a("s_cbranch_vccz L_qgot")
    a(f"s_cmp_lt_u32 s{sIT}, {SPIN}")
    a("s_cbranch_scc1 L_qpoll")
    a("L_qgot:")
    a(f"s_mov_b32 s{sT0}, 0x07060302")
    for k in range(4):
        a(f"v_perm_b32 v{TX+k}, v{QD+2*k+1}, v{QD+2*k}, s{sT0}")
    a(f"v_lshrrev_b32 v{TX+4}, 1, v{VQA}")
    a(f"ds_write_b128 v{TX+4}, v[{TX}:{TX+3}] offset:{QL}")
    a(f"v_mov_b32 v{TX+5}, {QFL}")
    a(f"v_mov_b32 v{TX+6}, 1")
    a("s_waitcnt lgkmcnt(0)")
    a(f"ds_write_b32 v{TX+5}, v{TX+6}")
    stamp(a, cfg, 14)
    if cfg.get("stamps"):
        a(f"v_writelane_b32 v7, s{sIT}, 15")
    a("L_nopub:")
    a.c("wave 5 clears this workgroup's slot with the sentinel; in half 0 it also zeroes the pair's claim counter")
    a(f"s_cmp_lg_u32 s{sW}, 5")
    a("s_cbranch_scc1 L_noclr")
    for k in range(4):
        a(f"v_mov_b32 v{STG+k}, -1")
    for k in range(4):
        a(f"buffer_store_dwordx4 v[{STG}:{STG+3}], v{vL16}, s[{dWS}:{dWS+3}], s{sSLOT} offen offset:{1024*k} sc1")
    a(f"s_cmp_lg_u32 s{sS}, 0")
    a("s_cbranch_scc1 L_noclr")
    a(f"s_lshl_b32 s{sT0}, s{sBH}, 8")
    a(f"s_add_u32 s{sT0}, s{sT0}, {WS_CLM}")
    a("s_mov_b64 exec, 1")
    a(f"buffer_store_dword v{vO}, v{vO}, s[{dWS}:{dWS+3}], s{sT0} offen sc1")
    a("s_mov_b64 exec, -1")
    a("L_noclr:")
    a.c("gu voffset = (lane>>3)*3584 + (lane&7)*16 ; gu soffset = (112*(w&3))*3584 + j*112")
    a(f"v_lshrrev_b32 v{vA0}, 3, v{vLANE}")
    a(f"v_and_b32 v{vA1}, 7, v{vLANE}")
    a(f"v_mul_u32_u24 v{vGUO}, 3584, v{vA0}")
    a(f"v_lshl_add_u32 v{vGUO}, v{vA1}, 4, v{vGUO}")
    a(f"s_and_b32 s{sT0}, s{sW}, 3")
    a(f"s_mul_i32 s{sJO}, s{sT0}, {112*3584}")
    a(f"s_mul_i32 s{sT1}, s{sJ}, 112")
    a(f"s_add_u32 s{sJO}, s{sJO}, s{sT1}")
    while len(kv) > cfg.get("gupos", 16):
        kvone()
    for g in range(14):
        a(f"buffer_load_dwordx4 v[{GUR+4*g}:{GUR+4*g+3}], v{vGUO}, s[{dGU}:{dGU+3}], s{sJO} offen {WF}")
        a(f"s_add_u32 s{sJO}, s{sJO}, {8*3584}")
        if cfg.get("guilv", 1) and kv:
            kvone()
    while kv:
        kvone()
    a(f"s_mov_b32 s{sIT}, 0")
    a(f"v_mov_b32 v{vA0}, {QFL}")
    a(f"v_lshrrev_b32 v{vA1}, 1, v{VQA}")
    a("L_qwait:")
    a(f"ds_read_b32 v24, v{vA0}")
    a(f"ds_read_b128 v[{vQ}:{vQ+3}], v{vA1} offset:{QL}")
    a("s_waitcnt lgkmcnt(0)")
    a(f"v_readfirstlane_b32 s{sT0}, v24")
    a(f"s_cmp_lg_u32 s{sT0}, 0")
    a("s_cbranch_scc1 L_qok")
    a("s_sleep 1")
    a(f"s_add_u32 s{sIT}, s{sIT}, 1")
    a(f"s_cmp_lt_u32 s{sIT}, {SPIN}")
    a("s_cbranch_scc1 L_qwait")
    a("L_qok:")
    a(f"v_and_b32 v{vA1}, 31, v{vLANE}")
    a(f"v_lshlrev_b32 v{vA1}, 5, v{vA1}")
    a(f"v_lshrrev_b32 v{vA0}, 5, v{vLANE}")
    a(f"v_lshl_add_u32 v{vA1}, v{vA0}, 4, v{vA1}")
    a(f"v_mov_b32 v{vM}, {f32(-1e30)}")
    a(f"v_mov_b32 v{vL}, 0")
    a(f"s_mov_b32 s{sIT}, 0")
    a(f"s_mov_b32 s{sPL}, 0x05040100")
    a(f"s_mov_b32 s{sPH}, 0x07060302")
    a(f"s_add_u32 s{sOFF}, s{sOFF}, 0x20000")
    a(f"s_add_u32 s{sOB}, s{sOFF}, 0x8000")
    a(f"s_lshl_b32 s{sCNT}, s{sBH}, 8")
    a(f"s_add_u32 s{sCNT}, s{sCNT}, {WS_CLM}")
    stamp(a, cfg, 3)
    CZ = f32(0.0625*LOG2E)
    A = 22; Z = 26; P = 27; T = 28; PB = 30; U = 34
    def tile(K, V, lab, refill=True, so=None):
        if refill:
            a(f"s_waitcnt vmcnt({VW})")
        for jj in range(4):
            for i in range(4):
                if jj == 0:
                    a(f"v_dot2_f32_bf16 v{A+i}, v{K+4*i}, v{vQ}, 0")
                else:
                    a(f"v_dot2c_f32_bf16 v{A+i}, v{K+4*i+jj}, v{vQ+jj}")
        if refill:
            for i in range(4):
                a(f"buffer_load_dwordx4 v[{K+4*i}:{K+4*i+3}], v{vL16}, s[{dK}:{dK+3}], s{so} offen offset:{i*1024} {KVF}")
        else:
            a("s_nop 2")
        a(f"v_permlane16_swap_b32 v{A}, v{A+1}")
        a(f"v_permlane16_swap_b32 v{A+2}, v{A+3}")
        a("s_nop 0")
        a(f"v_add_f32 v{A}, v{A}, v{A+1}")
        a(f"v_add_f32 v{A+2}, v{A+2}, v{A+3}")
        a("s_nop 0")
        a(dpp("v_add_f32", Z, A, A, "row_ror:8", bm="0x3"))
        a(dpp("v_add_f32", Z, A+2, A+2, "row_ror:8", bm="0xc"))
        for ctrl in ("quad_perm:[1,0,3,2]", "quad_perm:[2,3,0,1]", "row_half_mirror"):
            a("s_nop 1")
            a(dpp("v_add_f32", Z, Z, Z, ctrl))
        a(f"v_cvt_pk_bf16_f32 v{Z}, v{Z}, v{Z}")
        a(f"v_and_b32 v{Z}, s{sMASK}, v{Z}")
        a(f"v_mul_f32 v{Z}, {CZ}, v{Z}")
        a(f"v_cmp_gt_f32 vcc, v{Z}, v{vM}")
        a(f"s_cbranch_vccnz L_resc{lab}")
        a(f"L_back{lab}:")
        a(f"v_sub_f32 v{P}, v{Z}, v{vM}")
        a(f"v_exp_f32 v{P}, v{P}")
        a("s_nop 0")
        a(f"v_add_f32 v{vL}, v{vL}, v{P}")
        a(f"v_mov_b32 v{T}, v{P}")
        a("s_nop 1")
        a(f"v_permlane16_swap_b32 v{P}, v{T}")
        a("s_nop 1")
        a(f"v_mov_b32_dpp v{PB}, v{P} row_newbcast:0 row_mask:0xf bank_mask:0xf")
        a(f"v_mov_b32_dpp v{PB+1}, v{T} row_newbcast:0 row_mask:0xf bank_mask:0xf")
        a(f"v_mov_b32_dpp v{PB+2}, v{P} row_newbcast:8 row_mask:0xf bank_mask:0xf")
        a(f"v_mov_b32_dpp v{PB+3}, v{T} row_newbcast:8 row_mask:0xf bank_mask:0xf")
        if refill:
            a(f"s_waitcnt vmcnt({VW})")
        for i in range(4):
            axpy_row(a, vO, V+4*i, PB+i, U)
        if refill:
            for i in range(4):
                a(f"buffer_load_dwordx4 v[{V+4*i}:{V+4*i+3}], v{vL16}, s[{dV}:{dV+3}], s{so} offen offset:{i*1024} {KVF}")
    def claim():
        a(f"v_mov_b32 v{vCLM}, 1")
        a(f"v_mov_b32 v{vCHK}, 0")
        a("s_mov_b64 exec, 1")
        a(f"buffer_atomic_add v{vCLM}, v{vCHK}, s[{dWS}:{dWS+3}], s{sCNT} offen sc0 sc1")
        a("s_mov_b64 exec, -1")
    def resc(lab):
        a(f"L_resc{lab}:")
        a(f"v_max_f32 v{T}, v{Z}, v{vM}")
        for ctrl, rm in (("row_ror:8", "0xf"), ("row_bcast:15", "0xa"), ("row_bcast:31", "0xc")):
            a("s_nop 1")
            a(dpp("v_max_f32", T, T, T, ctrl, rm))
        a("s_nop 0")
        a(f"v_readlane_b32 s{sT0}, v{T}, 63")
        a("s_nop 1")
        a(f"v_subrev_f32 v{T}, s{sT0}, v{vM}")
        a(f"v_exp_f32 v{T}, v{T}")
        a(f"v_mov_b32 v{vM}, s{sT0}")
        a(f"v_mul_f32 v{vL}, v{vL}, v{T}")
        for k in range(4):
            a(f"v_pk_mul_f32 v[{vO+2*k}:{vO+2*k+1}], v[{vO+2*k}:{vO+2*k+1}], v[{T}:{T+1}] op_sel_hi:[1,0]")
        a(f"s_branch L_back{lab}")
    a(".p2align 6")
    a("L_loop:")
    tile(KA, VA, "A", so=sOFF)
    tile(KB, VB, "B", so=sOB)
    if cfg.get("stamps"):
        for n2, itv in ((9, 2), (10, 5), (11, 8), (12, SI-1)):
            a(f"s_cmp_lg_u32 s{sIT}, {itv}")
            a(f"s_cbranch_scc1 L_nost{n2}")
            stamp(a, cfg, n2)
            a(f"L_nost{n2}:")
    a(f"s_cmp_ge_u32 s{sIT}, {SI}")
    a("s_cbranch_scc1 L_dyn")
    a(f"s_cmp_lt_u32 s{sIT}, 11")
    a("s_cbranch_scc1 L_job")
    a("L_jobret:")
    a(f"s_add_u32 s{sIT}, s{sIT}, 1")
    a(f"s_add_u32 s{sOFF}, s{sOFF}, 0x10000")
    a(f"s_add_u32 s{sOB}, s{sOB}, 0x10000")
    a(f"s_cmp_lt_u32 s{sIT}, {SI-2}")
    a("s_cbranch_scc1 L_loop")
    a(f"s_cmp_eq_u32 s{sIT}, {SI}")
    a("s_cbranch_scc1 L_dyn0")
    a(f"s_cmp_eq_u32 s{sIT}, {SI-1}")
    a("s_cbranch_scc1 L_clm0")
    a.c("two iterations before the dynamic phase: fetch the per-batch 'slots cleared' counter")
    a(f"s_lshl_b32 s{sT0}, s{sB}, 4")
    a(f"s_add_u32 s{sT0}, s{sT0}, 128")
    a(f"v_mov_b32 v{vCHK}, s{sT0}")
    a(f"global_load_dword v{vCHK}, v{vCHK}, s[{sDBG_}:{sDBG_+1}] sc1")
    a("s_branch L_loop")
    a("L_clm0:")
    a.c("claims are allowed only once the counter's initialisation is known complete")
    a(f"v_readfirstlane_b32 s{sT0}, v{vCHK}")
    a(f"v_mov_b32 v{vCLM}, {NDYN}")
    a(f"s_cmp_lt_u32 s{sT0}, 32")
    a("s_cbranch_scc1 L_noclm")
    claim()
    a("s_branch L_loop")
    a("L_dyn0:")
    a(f"s_mov_b32 s{sVALID}, 1")
    if cfg.get("dynbar", 1):
        a("s_barrier")
    a("L_dyn:")
    a(f"s_cmp_eq_u32 s{sVALID}, 0")
    a("s_cbranch_scc1 L_epi")
    a(f"v_readfirstlane_b32 s{sT0}, v{vCLM}")
    a(f"s_min_u32 s{sT0}, s{sT0}, {NDYN}")
    a(f"s_lshl_b32 s{sOFF}, s{sT0}, 13")
    a(f"s_add_u32 s{sOFF}, s{sOFF}, {16*NST*4096}")
    a(f"s_add_u32 s{sOB}, s{sOFF}, 0x1000")
    a(f"s_cmp_lt_u32 s{sT0}, {NDYN}")
    a(f"s_cselect_b32 s{sVALID}, 1, 0")
    a("s_cbranch_scc0 L_loop")
    claim()
    a("s_branch L_loop")
    a("L_noclm:")
    a(f"s_cmp_eq_u32 s{sS}, 1")
    a("s_cbranch_scc1 L_loop")
    a.c("half 0 owns the counter: only its own wave 5's init matters; wait for wave 5's gu signal (LDS count 8)")
    a(f"v_mov_b32 v{vCHK}, {CNT}")
    a("L_nocl2:")
    a(f"ds_read_b32 v{vCLM}, v{vCHK}")
    a("s_waitcnt lgkmcnt(0)")
    a(f"v_readfirstlane_b32 s{sT0}, v{vCLM}")
    a(f"s_cmp_lt_u32 s{sT0}, 8")
    a("s_cbranch_scc1 L_nocl2")
    claim()
    a("s_branch L_loop")
    for lab in "ABCD":
        resc(lab)
    def wo_issue():
        for i in range(4):
            a(f"buffer_load_dwordx4 v[{STG+4*i}:{STG+4*i+3}], v{vL16}, s[{dWO}:{dWO+3}], s{sJO} offen offset:{i*896} {WF}")
        a(f"s_add_u32 s{sJO}, s{sJO}, {4*896}")
    a("L_job:")
    a(f"s_cmp_eq_u32 s{sIT}, 0")
    a("s_cbranch_scc1 L_job0")
    a(f"s_cmp_gt_u32 s{sIT}, 8")
    a("s_cbranch_scc1 L_jobwd")
    a.c("slots 1..8: interleave two staged wo row pairs into W + idx")
    a(f"s_set_gpr_idx_on s{sIDX}, 0x8")
    a("s_nop 0")
    for pr in range(2):
        for e in range(4):
            r0 = STG + 8*pr + e; r1 = r0 + 4
            a(f"v_perm_b32 v{W+8*pr+2*e}, v{r1}, v{r0}, s{sPL}")
            a(f"v_perm_b32 v{W+8*pr+2*e+1}, v{r1}, v{r0}, s{sPH}")
    a("s_set_gpr_idx_off")
    a(f"s_add_u32 s{sIDX}, s{sIDX}, 16")
    a(f"s_cmp_eq_u32 s{sIT}, 8")
    a("s_cbranch_scc1 L_job8")
    wo_issue()
    a("s_branch L_jobret")
    a("L_job8:")
    a.c("w_down rows 56j+7w+i")
    a(f"s_mul_i32 s{sT0}, s{sJ}, 56")
    a(f"s_mul_i32 s{sT1}, s{sW}, 7")
    a(f"s_add_u32 s{sT0}, s{sT0}, s{sT1}")
    a(f"s_mul_i32 s{sJO}, s{sT0}, 896")
    for i in range(4):
        a(f"buffer_load_dwordx4 v[{STG+4*i}:{STG+4*i+3}], v{vL16}, s[{dWD}:{dWD+3}], s{sJO} offen offset:{i*896} {WF}")
    a(f"s_add_u32 s{sJO}, s{sJO}, {4*896}")
    a("s_branch L_jobret")
    a("L_job0:")
    G = 40; XG = 22; UG = STG
    a.c("multipliers xn[b][112*(w&3) + 8i + (lane>>3)]")
    a(f"v_lshrrev_b32 v{vA0}, 3, v{vLANE}")
    a(f"v_lshlrev_b32 v{vA0}, 2, v{vA0}")
    a(f"s_and_b32 s{sT0}, s{sW}, 3")
    a(f"s_mul_i32 s{sT0}, s{sT0}, 448")
    a(f"s_lshl_b32 s{sT1}, s{sB}, 11")
    a(f"s_add_u32 s{sT0}, s{sT0}, s{sT1}")
    a(f"v_add_u32 v{vA0}, s{sT0}, v{vA0}")
    for k in range(7):
        a(f"ds_read2_b32 v[{XG+2*k}:{XG+2*k+1}], v{vA0} offset0:{XT//4+16*k} offset1:{XT//4+16*k+8}")
    for k in range(8):
        a(f"v_mov_b32 v{G+k}, 0")
    a("s_waitcnt vmcnt(16) lgkmcnt(0)")
    a.c("wave 5: its clearing stores are complete (older than everything waited for) -> count them")
    a(f"s_cmp_lg_u32 s{sW}, 5")
    a("s_cbranch_scc1 L_nocnt")
    a(f"s_lshl_b32 s{sT0}, s{sB}, 4")
    a(f"s_add_u32 s{sT0}, s{sT0}, 128")
    a(f"v_mov_b32 v{UG}, s{sT0}")
    a(f"v_mov_b32 v{UG+1}, 1")
    a("s_mov_b64 exec, 1")
    a(f"global_atomic_add v{UG}, v{UG+1}, s[{sDBG_}:{sDBG_+1}] sc1")
    a("s_mov_b64 exec, -1")
    a("s_nop 0")
    a("L_nocnt:")
    for i in range(14):
        axpy_row(a, G, GUR+4*i, XG+i, UG)
    a("s_nop 0")
    for k in range(4):
        a(f"v_permlane32_swap_b32 v{G+k}, v{G+4+k}")
    a("s_nop 0")
    for k in range(4):
        a(f"v_add_f32 v{G+k}, v{G+k}, v{G+4+k}")
    a("s_nop 0")
    a(f"v_permlane16_swap_b32 v{G}, v{G+2}")
    a(f"v_permlane16_swap_b32 v{G+1}, v{G+3}")
    a("s_nop 0")
    a(f"v_add_f32 v{G}, v{G}, v{G+2}")
    a(f"v_add_f32 v{G+1}, v{G+1}, v{G+3}")
    a.c("LDS addr = GP + w*256 + ((lane&7)*8 + (lane>>3))*4")
    a(f"v_and_b32 v{XG}, 7, v{vLANE}")
    a(f"v_lshrrev_b32 v{XG+1}, 3, v{vLANE}")
    a(dpp("v_add_f32", G+4, G, G, "row_ror:8", bm="0x3"))
    a(dpp("v_add_f32", G+4, G+1, G+1, "row_ror:8", bm="0xc"))
    a(f"v_lshl_add_u32 v{XG}, v{XG}, 3, v{XG+1}")
    a(f"v_lshlrev_b32 v{XG}, 2, v{XG}")
    a(f"s_lshl_b32 s{sT0}, s{sW}, 8")
    a(f"v_add_u32 v{XG}, s{sT0}, v{XG}")
    a(f"ds_write_b32 v{XG}, v{G+4} offset:{GP}")
    a.c("wo rows h*256+32w+i")
    a(f"s_lshl_b32 s{sT0}, s{sH}, 8")
    a(f"s_lshl_b32 s{sT1}, s{sW}, 5")
    a(f"s_add_u32 s{sT0}, s{sT0}, s{sT1}")
    a(f"s_mul_i32 s{sJO}, s{sT0}, 896")
    a(f"s_mov_b32 s{sIDX}, 0")
    wo_issue()
    a(f"v_mov_b32 v{XG}, {CNT}")
    a(f"v_mov_b32 v{XG+1}, 1")
    a("s_waitcnt lgkmcnt(0)")
    a("s_mov_b64 exec, 1")
    a(f"ds_add_u32 v{XG}, v{XG+1}")
    a("s_mov_b64 exec, -1")
    a.c("tiles C and D (prefetched in the prologue; older than the gu loads waited for above)")
    tile(KC, VC, "C", refill=False)
    tile(KD, VD, "D", refill=False)
    a("s_branch L_jobret")
    a("L_jobwd:")
    a(f"v_lshlrev_b32 v{vA0}, 5, v{vLANE}")
    a(f"s_lshl_b32 s{sT0}, s{sW}, 11")
    a(f"v_add_u32 v{vA0}, s{sT0}, v{vA0}")
    a(f"s_cmp_eq_u32 s{sIT}, 10")
    a("s_cbranch_scc1 L_job10")
    a(f"v_mov_b32 v{XG}, {CNT}")
    a("L_cntspin:")
    a(f"ds_read_b32 v{XG+1}, v{XG}")
    a("s_waitcnt lgkmcnt(0)")
    a(f"v_readfirstlane_b32 s{sT0}, v{XG+1}")
    a(f"s_cmp_ge_u32 s{sT0}, 8")
    a("s_cbranch_scc1 L_cntok")
    a("s_sleep 16")
    a("s_branch L_cntspin")
    a("L_cntok:")
    a(f"v_lshlrev_b32 v{XG+8}, 2, v{vLANE}")
    a(f"v_add_u32 v{XG+8}, {GP}, v{XG+8}")
    for k in range(4):
        a(f"ds_read2st64_b32 v[{XG+2*k}:{XG+2*k+1}], v{XG+8} offset0:{2*k} offset1:{2*k+1}")
    for k in range(8):
        a(f"v_mov_b32 v{G+k}, 0")
    a(f"s_mul_i32 s{sT0}, s{sW}, 7")
    a("s_waitcnt lgkmcnt(0)")
    a(f"v_add_f32 v{XG}, v{XG}, v{XG+1}")
    a(f"v_add_f32 v{XG+2}, v{XG+2}, v{XG+3}")
    a(f"v_add_f32 v{XG+4}, v{XG+4}, v{XG+5}")
    a(f"v_add_f32 v{XG+6}, v{XG+6}, v{XG+7}")
    a(f"v_add_f32 v{XG}, v{XG}, v{XG+2}")
    a(f"v_add_f32 v{XG+4}, v{XG+4}, v{XG+6}")
    bf16_round(a, XG)
    bf16_round(a, XG+4)
    a(f"v_mul_f32 v{XG}, {f32(-LOG2E)}, v{XG}")
    a(f"v_exp_f32 v{XG}, v{XG}")
    a("s_nop 0")
    a(f"v_add_f32 v{XG}, 1.0, v{XG}")
    a(f"v_rcp_f32 v{XG}, v{XG}")
    a("s_nop 0")
    bf16_round(a, XG)
    a(f"v_mul_f32 v{XG}, v{XG}, v{XG+4}")
    bf16_round(a, XG)
    a("s_nop 0")
    for i in range(7):
        a(f"v_readlane_b32 s{sP+i}, v{XG}, s{sT0}")
        a(f"s_add_u32 s{sT0}, s{sT0}, 1")
    a("s_nop 0")
    UW = 32
    for i in range(4):
        axpy_row(a, G, STG+4*i, sP+i, UW, sgpr=True)
    for i in range(3):
        a(f"buffer_load_dwordx4 v[{STG+4*i}:{STG+4*i+3}], v{vL16}, s[{dWD}:{dWD+3}], s{sJO} offen offset:{i*896} {WF}")
    a(f"ds_write_b128 v{vA0}, v[{G}:{G+3}] offset:{YG}")
    a(f"ds_write_b128 v{vA0}, v[{G+4}:{G+7}] offset:{YG+16}")
    a("s_branch L_jobret")
    a("L_job10:")
    a(f"ds_read_b128 v[{G}:{G+3}], v{vA0} offset:{YG}")
    a(f"ds_read_b128 v[{G+4}:{G+7}], v{vA0} offset:{YG+16}")
    a("s_waitcnt lgkmcnt(0)")
    for i in range(3):
        axpy_row(a, G, STG+4*i, sP+4+i, UW, sgpr=True)
    a(f"ds_write_b128 v{vA0}, v[{G}:{G+3}] offset:{YG}")
    a(f"ds_write_b128 v{vA0}, v[{G+4}:{G+7}] offset:{YG+16}")
    a("s_branch L_jobret")
    a("L_epi:")
    stamp(a, cfg, 4)
    CW = 5
    CL = STG; XR = STG+2
    a(f"s_cmp_lg_u32 s{sW}, {CW}")
    a("s_cbranch_scc1 L_epi1")
    a.c("consumer wave: 'slots cleared' counter of batch b, x for the residual")
    a(f"s_lshl_b32 s{sT0}, s{sB}, 4")
    a(f"s_add_u32 s{sT0}, s{sT0}, 128")
    a(f"v_mov_b32 v{CL+1}, s{sT0}")
    a(f"global_load_dword v{CL}, v{CL+1}, s[{sDBG_}:{sDBG_+1}] sc1")
    a(f"v_and_b32 v{CL+4}, 3, v{vLANE}")
    a(f"v_lshlrev_b32 v{CL+4}, 3, v{CL+4}")
    a(f"s_mul_i32 s{sT1}, s{sB}, 896")
    srd(a, dX, sX_, f"s{sT1}", 896)
    a(f"s_lshl_b32 s{sT0}, s{sJ}, 5")
    a(f"buffer_load_dwordx2 v[{XR}:{XR+1}], v{CL+4}, s[{dX}:{dX+3}], s{sT0} offen")
    a("L_epi1:")
    a(dpp("v_add_f32", vL, vL, vL, "row_ror:8"))
    for k in range(4):
        a(f"v_permlane32_swap_b32 v{vO+k}, v{vO+4+k}")
    a(dpp("v_add_f32", vL, vL, vL, "row_bcast:15", "0xa"))
    for k in range(4):
        a(f"v_add_f32 v{vO+k}, v{vO+k}, v{vO+4+k}")
    a(dpp("v_add_f32", vL, vL, vL, "row_bcast:31", "0xc"))
    a(f"s_mul_i32 s{sT0}, s{sW}, {OPS}")
    a(f"v_add_u32 v{vA0}, s{sT0}, v{vA1}")
    a(f"ds_write_b128 v{vA0}, v[{vO}:{vO+3}] offset:{OP}")
    a(f"s_lshl_b32 s{sT0}, s{sW}, 3")
    a(f"v_mov_b32 v{vA0}, s{sT0}")
    a("s_lshl_b64 exec, 1, 63")
    a(f"ds_write_b64 v{vA0}, v[{vM}:{vL}] offset:{ML}")
    a("s_mov_b64 exec, -1")
    R = 22
    a(f"v_and_b32 v{R}, 7, v{vLANE}")
    a(f"v_lshlrev_b32 v{vA0}, 3, v{R}")
    a(f"v_mul_u32_u24 v{R}, {OPS}, v{R}")
    a(f"v_lshrrev_b32 v{R+1}, 3, v{vLANE}")
    a(f"v_lshl_add_u32 v{R}, v{R+1}, 4, v{R}")
    a(f"s_lshl_b32 s{sT0}, s{sW}, 7")
    a(f"v_add_u32 v{R}, s{sT0}, v{R}")
    a("s_waitcnt lgkmcnt(0)")
    a("s_barrier")
    MX = 24; O4 = 28; MM = 26; Y = 32
    a(f"ds_read_b64 v[{MX}:{MX+1}], v{vA0} offset:{ML}")
    a(f"ds_read_b128 v[{O4}:{O4+3}], v{R} offset:{OP}")
    for k in range(8):
        a(f"v_mov_b32 v{Y+k}, 0")
    a("s_waitcnt lgkmcnt(1)")
    a(dpp("v_max_f32", MM, MX, MX, "quad_perm:[1,0,3,2]"))
    a("s_nop 1")
    a(dpp("v_max_f32", MM, MM, MM, "quad_perm:[2,3,0,1]"))
    a("s_nop 1")
    a(dpp("v_max_f32", MM, MM, MM, "row_half_mirror"))
    a(f"v_sub_f32 v{MX}, v{MX}, v{MM}")
    a(f"v_exp_f32 v{MX}, v{MX}")
    a("s_waitcnt lgkmcnt(0)")
    a(f"v_mul_f32 v{MM+1}, v{MX+1}, v{MX}")
    for k in range(4):
        a(f"v_mul_f32 v{O4+k}, v{O4+k}, v{MX}")
    for ctrl in ("quad_perm:[1,0,3,2]", "quad_perm:[2,3,0,1]", "row_half_mirror"):
        a(dpp("v_add_f32", MM+1, MM+1, MM+1, ctrl))
        for k in range(4):
            a(dpp("v_add_f32", O4+k, O4+k, O4+k, ctrl))
    a(f"v_cvt_pk_bf16_f32 v{O4}, v{O4}, v{O4+1}")
    a(f"v_cvt_pk_bf16_f32 v{O4+1}, v{O4+2}, v{O4+3}")
    a("s_nop 0")
    for dq in range(8):
        a(f"v_readlane_b32 s{sP+2*dq}, v{O4}, {8*dq}")
        a(f"v_readlane_b32 s{sP+2*dq+1}, v{O4+1}, {8*dq}")
    a(f"v_lshlrev_b32 v{vA0}, 5, v{vLANE}")
    a(f"s_lshl_b32 s{sT0}, s{sW}, 11")
    a(f"v_add_u32 v{vA0}, s{sT0}, v{vA0}")
    for k in range(16):
        for e in range(8):
            a(f"v_dot2c_f32_bf16 v{Y+e}, s{sP+k}, v{W+8*k+e}")
    a("s_nop 3")
    a(f"ds_write_b128 v{vA0}, v[{Y}:{Y+3}] offset:{YA}")
    a(f"ds_write_b128 v{vA0}, v[{Y+4}:{Y+7}] offset:{YA+16}")
    a("s_waitcnt lgkmcnt(0)")
    a("s_barrier")
    stamp(a, cfg, 5)
    a(f"s_cmp_eq_u32 s{sW}, {CW}")
    a("s_cbranch_scc1 L_cons")
    a(f"s_cmp_gt_u32 s{sW}, 4")
    a("s_cbranch_scc1 L_fin")
    a(f"s_cmp_eq_u32 s{sW}, 4")
    a("s_cbranch_scc1 L_stml")
    a.c("waves 0,1: YA ; waves 2,3: YG ; n = (w&1)*64 + lane < 112")
    a(f"s_and_b32 s{sT0}, s{sW}, 1")
    a(f"s_lshl_b32 s{sT0}, s{sT0}, 10")
    a(f"v_add_u32 v{vA0}, s{sT0}, v{vL16}")
    a(f"s_lshr_b32 s{sT1}, s{sW}, 1")
    a(f"s_mov_b32 s{sT0}, {YA}")
    a(f"s_cmp_eq_u32 s{sT1}, 0")
    a(f"s_cselect_b32 s{sT0}, s{sT0}, {YG}")
    a(f"v_add_u32 v{R}, s{sT0}, v{vA0}")
    rds = [24, 28, 32, 36, 40, 44, 48, 52]
    for w2 in range(8):
        a(f"ds_read_b128 v[{rds[w2]}:{rds[w2]+3}], v{R} offset:{2048*w2}")
    a(f"s_mul_i32 s{sT1}, s{sT1}, 1792")
    a(f"s_add_u32 s{sT0}, s{sSLOT}, s{sT1}")
    a(f"v_cmp_gt_u32 vcc, 1792, v{vA0}")
    RD = rds[0]
    for w2 in range(1, 8):
        a(f"s_waitcnt lgkmcnt({7-w2})")
        a(f"v_pk_add_f32 v[{RD}:{RD+1}], v[{RD}:{RD+1}], v[{rds[w2]}:{rds[w2]+1}]")
        a(f"v_pk_add_f32 v[{RD+2}:{RD+3}], v[{RD+2}:{RD+3}], v[{rds[w2]+2}:{rds[w2]+3}]")
    a("s_and_saveexec_b64 s[100:101], vcc")
    a(f"buffer_store_dwordx4 v[{RD}:{RD+3}], v{vA0}, s[{dWS}:{dWS+3}], s{sT0} offen sc1")
    a("s_mov_b64 exec, -1")
    a("s_branch L_fin")
    a("L_stml:")
    a(f"v_mov_b32 v{vA0}, 3584")
    a("s_mov_b64 exec, 1")
    a(f"buffer_store_dwordx2 v[{MM}:{MM+1}], v{vA0}, s[{dWS}:{dWS+3}], s{sSLOT} offen sc1")
    a("s_mov_b64 exec, -1")
    a("s_branch L_fin")
    a("L_cons:")
    a(f"s_cmp_ge_u32 s{sJ}, 28")
    a("s_cbranch_scc1 L_fin")
    VO_, VM_ = 22, 23
    a(f"v_lshrrev_b32 v{VM_}, 2, v{vLANE}")
    a(f"v_lshlrev_b32 v{VM_}, 12, v{VM_}")
    a(f"v_and_b32 v{VO_}, 3, v{vLANE}")
    a(f"v_lshl_add_u32 v{VO_}, v{VO_}, 4, v{VM_}")
    a(f"s_lshl_b32 s{sT0}, s{sB}, 17")
    a(f"s_lshl_b32 s{sT1}, s{sJ}, 6")
    a(f"s_add_u32 s{sT1}, s{sT1}, s{sT0}")
    a(f"s_add_u32 s{sT2}, s{sT1}, 0x10000")
    a(f"s_add_u32 s{sT3}, s{sT0}, 0x10000")
    a(f"s_mov_b32 s{sIT}, 0")
    a("s_waitcnt vmcnt(0)")
    a("L_clrchk:")
    a(f"v_cmp_gt_u32 vcc, 32, v{CL}")
    a("s_cbranch_vccz L_poll0")
    a("s_sleep 8")
    a(f"global_load_dword v{CL}, v{CL+1}, s[{sDBG_}:{sDBG_+1}] sc1")
    a(f"s_add_u32 s{sIT}, s{sIT}, 1")
    a(f"s_cmp_lt_u32 s{sIT}, {SPIN}")
    a("s_waitcnt vmcnt(0)")
    a("s_cbranch_scc1 L_clrchk")
    a("L_poll0:")
    A0, A1, G0, G1, M0, M1 = 24, 28, 32, 36, 40, 42
    loads = [
        (A0, 4, VO_, sT1, 0), (A1, 4, VO_, sT2, 0), (G0, 4, VO_, sT1, 1792), (G1, 4, VO_, sT2, 1792),
        (M0, 2, VM_, sT0, 3584), (M1, 2, VM_, sT3, 3584)]
    masks = [sP + 2*i for i in range(6)]
    for m in masks:
        a(f"s_mov_b64 s[{m}:{m+1}], -1")
    a(f"s_mov_b32 s{sIT}, 0")
    a("L_poll:")
    for n2, ((r, cnt, vo, so, off), m) in enumerate(zip(loads, masks)):
        a(f"s_mov_b64 exec, s[{m}:{m+1}]")
        a(f"s_cbranch_execz L_skip{n2}")
        a(f"buffer_load_dwordx{cnt} v[{r}:{r+cnt-1}], v{vo}, s[{dWS}:{dWS+3}], s{so} offen offset:{off} sc1")
        a(f"L_skip{n2}:")
    a("s_mov_b64 exec, -1")
    a("s_waitcnt vmcnt(0)")
    TM = 44
    for (r, cnt, vo, so, off), m in zip(loads, masks):
        if cnt == 4:
            a(f"v_max3_u32 v{TM}, v{r}, v{r+1}, v{r+2}")
            a(f"v_max_u32 v{TM}, v{TM}, v{r+3}")
        else:
            a(f"v_max_u32 v{TM}, v{r}, v{r+1}")
        a(f"v_cmp_eq_u32 s[{m}:{m+1}], -1, v{TM}")
    a("s_nop 1")
    a(f"s_or_b64 s[100:101], s[{masks[0]}:{masks[0]+1}], s[{masks[1]}:{masks[1]+1}]")
    for m in masks[2:]:
        a(f"s_or_b64 s[100:101], s[100:101], s[{m}:{m+1}]")
    a("s_cbranch_scc0 L_ready")
    a(f"s_add_u32 s{sIT}, s{sIT}, 1")
    a(f"s_cmp_lt_u32 s{sIT}, {SPIN}")
    if SLEEP:
        a(f"s_sleep {SLEEP}")
    a("s_cbranch_scc1 L_poll")
    a("L_ready:")
    stamp(a, cfg, 6)
    for M in (M0, M1):
        a(dpp("v_max_f32", TM + (M == M1), M, M, "row_half_mirror"))
    for M in (M0, M1):
        a(f"v_sub_f32 v{M}, v{M}, v{TM + (M == M1)}")
    for M in (M0, M1):
        a(f"v_exp_f32 v{M}, v{M}")
    a("s_nop 0")
    for M in (M0, M1):
        a(f"v_mul_f32 v{M+1}, v{M+1}, v{M}")
    a("s_nop 0")
    for M in (M0, M1):
        a(dpp("v_add_f32", M+1, M+1, M+1, "row_half_mirror"))
    for M in (M0, M1):
        a(f"v_rcp_f32 v{M+1}, v{M+1}")
    a(f"v_pk_add_f32 v[{G0}:{G0+1}], v[{G0}:{G0+1}], v[{G1}:{G1+1}]")
    a(f"v_pk_add_f32 v[{G0+2}:{G0+3}], v[{G0+2}:{G0+3}], v[{G1+2}:{G1+3}]")
    for M in (M0, M1):
        a(f"v_mul_f32 v{M}, v{M}, v{M+1}")
    a(f"v_pk_mul_f32 v[{A0}:{A0+1}], v[{A0}:{A0+1}], v[{M0}:{M0+1}] op_sel_hi:[1,0]")
    a(f"v_pk_mul_f32 v[{A0+2}:{A0+3}], v[{A0+2}:{A0+3}], v[{M0}:{M0+1}] op_sel_hi:[1,0]")
    a(pkfma_bcast(A0, A1, M1))
    a(pkfma_bcast(A0+2, A1+2, M1))
    regs8 = [G0, G0+1, G0+2, G0+3, A0, A0+1, A0+2, A0+3]
    for ctrl in ("row_ror:4", "row_ror:8"):
        for r in regs8:
            a(dpp("v_add_f32", r, r, r, ctrl))
    a("s_nop 0")
    for k in range(4):
        a(f"v_permlane32_swap_b32 v{A0+k}, v{G0+k}")
    a("s_nop 0")
    for k in range(4):
        a(f"v_add_f32 v{A0+k}, v{A0+k}, v{G0+k}")
    for k in range(4):
        a(f"v_mov_b32 v{G0+k}, v{A0+k}")
    a("s_nop 0")
    for k in range(4):
        a(f"v_permlane16_swap_b32 v{A0+k}, v{G0+k}")
    a("s_nop 0")
    for k in range(4):
        a(f"v_add_f32 v{A0+k}, v{A0+k}, v{G0+k}")
    for k in range(4):
        bf16_round(a, A0+k)
    for k in range(4):
        a(f"v_mov_b32 v{G0+k}, v{A0+k}")
    a(f"v_lshlrev_b32 v{A1}, 16, v{XR}")
    a(f"v_and_b32 v{A1+1}, s{sMASK}, v{XR}")
    for k in range(4):
        a(f"v_permlane32_swap_b32 v{A0+k}, v{G0+k}")
    a(f"v_lshlrev_b32 v{A1+2}, 16, v{XR+1}")
    a(f"v_and_b32 v{A1+3}, s{sMASK}, v{XR+1}")
    for k in range(4):
        a(f"v_add_f32 v{A0+k}, v{A0+k}, v{A1+k}")
    for k in range(4):
        bf16_round(a, A0+k)
    for k in range(4):
        a(f"v_add_f32 v{A0+k}, v{A0+k}, v{G0+k}")
    a(f"v_cvt_pk_bf16_f32 v{A0}, v{A0}, v{A0+1}")
    a(f"v_cvt_pk_bf16_f32 v{A0+1}, v{A0+2}, v{A0+3}")
    a(f"s_mul_i32 s{sT1}, s{sB}, 896")
    srd(a, dGU, sOUT_, f"s{sT1}", 896)
    a(f"s_lshl_b32 s{sT0}, s{sJ}, 5")
    a("s_mov_b64 exec, 15")
    a(f"buffer_store_dwordx2 v[{A0}:{A0+1}], v{CL+4}, s[{dGU}:{dGU+3}], s{sT0} offen")
    a("s_mov_b64 exec, -1")
    a("L_fin:")
    if cfg.get("stamps"):
        a("s_waitcnt vmcnt(0)")
        stamp(a, cfg, 7)
        a("v_writelane_b32 v7, s98, 0")
        a("s_getreg_b32 s96, hwreg(HW_REG_XCC_ID)")
        a("v_writelane_b32 v7, s96, 8")
        a(f"s_lshl_b32 s{sT0}, s2, 3")
        a(f"s_add_u32 s{sT0}, s{sT0}, s{sW}")
        a(f"s_lshl_b32 s{sT0}, s{sT0}, 6")
        a(f"s_add_u32 s{sT0}, s{sT0}, 0x200000")
        a(f"v_lshlrev_b32 v{vA0}, 2, v{vLANE}")
        a("s_mov_b64 exec, 0xffff")
        a(f"buffer_store_dword v7, v{vA0}, s[{dWS}:{dWS+3}], s{sT0} offen")
    a("L_end:")
    a("s_endpgm")
    hdr = open(REF).read().split("; Override launch")[0] if os.path.exists(REF) else ""
    return hdr + f"""; @launch grid=(256,1,1) block=(512,1,1) lds={LDS_BYTES}
.amdgcn_target "amdgcn-amd-amdhsa--gfx950"
.text
.globl {KN}
.p2align 8
.type {KN},@function
{KN}:
""" + a.text() + f""".section .rodata,"a"
.p2align 6
.amdhsa_kernel {KN}
  .amdhsa_next_free_vgpr 256
  .amdhsa_next_free_sgpr 102
  .amdhsa_accum_offset 256
  .amdhsa_group_segment_fixed_size 0
  .amdhsa_kernarg_size 96
  .amdhsa_user_sgpr_count 2
  .amdhsa_user_sgpr_kernarg_segment_ptr 1
  .amdhsa_system_sgpr_workgroup_id_x 1
.end_amdhsa_kernel
"""

if __name__ == "__main__":
    name = sys.argv[1]
    cfg = json.loads(sys.argv[2]) if len(sys.argv) > 2 else {}
    open(name, "w").write(gen(cfg))
```

```python
import struct, sys, os, json

KN = "parallel_sum__mha_block_cached__glu_gated_glu__decode_kernel"
REF = "parallel_sum__mha_block_cached__glu_gated_glu__decode.s.ref"
LOG2E = 1.4426950408889634

def f32(x):
    return "0x%08x" % struct.unpack("<I", struct.pack("<f", x))[0]

class Asm:
    def __init__(self):
        self.lines = []
        self.vm = []
    def __call__(self, s):
        for l in s.strip("\n").split("\n"):
            self.lines.append("  " + l.strip() if not l.strip().endswith(":") else l.strip())
    def c(self, s):
        self.lines.append("  ; " + s)
    def vmem(self, s, tag):
        self(s); self.vm.append(tag)
    def wait_tag(self, tag):
        idx = max(i for i, t in enumerate(self.vm) if t == tag)
        n = len(self.vm) - 1 - idx
        self(f"s_waitcnt vmcnt({n})")
        self.vm = self.vm[idx+1:]
    def text(self):
        return "\n".join(self.lines) + "\n"

XT   = 0
QP   = 16384
GP   = QP + 4096
YG   = GP + 2048
OP   = YG + 16384
OPS  = 1040
ML   = OP + 8*OPS
CNT  = ML + 64
QFL  = CNT + 4
QL   = CNT + 64
YA   = QL + 512
LDS_BYTES = YA + 16384
SLOT = 4096
WS_CLM = 0x180000
WS_Q   = 0x1A0000

sBH = 3
sX_, sK_, sV_, sWQ_, sWO_, sBX_, sWG_, sWU_ = 4, 6, 8, 10, 12, 14, 16, 18
sWD_, sOUT_, sDBG_, sWS_ = 20, 22, 24, 26
dK, dV, dWQ, dGU, dX, dWO, dWD, dWS = 28, 32, 36, 40, 44, 48, 52, 56
sW, sB, sH, sS, sJ, sIT, sOFF, sT0, sT1, sMASK, sT2, sT3 = 60, 61, 62, 63, 64, 65, 66, 67, 68, 69, 70, 71
sP = 72
sO1, sO2, sO3 = 88, 89, 90
sOB, sVALID, sCNT = 88, 89, 90
sJO, sIDX, sPL, sPH, sSLOT = 91, 92, 93, 94, 95
sST = 92
sPR = 74
sO4, sO5 = 75, 76
KE, VE, KF, VF = 192, 208, 224, 240
sGO = 87
sNL, sNH = 72, 73
vLANE, vL16, vWQO, vGUO, vA0, vA1 = 1, 2, 3, 4, 5, 6
vCLM, vCHK = 3, 46
vQ = 8
vO = 12
vM, vL = 20, 21
STG = 48
KA, VA, KB, VB = 64, 80, 96, 112
W = 128
KC, VC, KD, VD = 128, 144, 160, 176
GUR = 192

def srd(a, d, base, off_s, nrec):
    if off_s is None:
        a(f"s_mov_b32 s{d}, s{base}")
        a(f"s_mov_b32 s{d+1}, s{base+1}")
    else:
        a(f"s_add_u32 s{d}, s{base}, {off_s}")
        a(f"s_addc_u32 s{d+1}, s{base+1}, 0")
    a(f"s_mov_b32 s{d+2}, {nrec}")
    a(f"s_mov_b32 s{d+3}, 0x00020000")

def dpp(op, d, s0, s1, ctrl, rm="0xf", bm="0xf"):
    return f"{op}_dpp v{d}, v{s0}, v{s1} {ctrl} row_mask:{rm} bank_mask:{bm}"

def reduce64(a, op, v, sdst):
    for ctrl, rm in (("quad_perm:[1,0,3,2]", "0xf"), ("quad_perm:[2,3,0,1]", "0xf"), ("row_half_mirror", "0xf"),
                     ("row_mirror", "0xf"), ("row_bcast:15", "0xa"), ("row_bcast:31", "0xc")):
        a("s_nop 1")
        a(dpp(op, v, v, v, ctrl, rm))
    a("s_nop 0")
    a(f"v_readlane_b32 s{sdst}, v{v}, 63")

def bsel(m):
    return "op_sel:[0,1,0] op_sel_hi:[1,1,1]" if m & 1 else "op_sel_hi:[1,0,1]"

def pkfma_bcast(acc, u, m, sgpr=False):
    r = "s" if sgpr else "v"
    base = m & ~1
    return f"v_pk_fma_f32 v[{acc}:{acc+1}], v[{u}:{u+1}], {r}[{base}:{base+1}], v[{acc}:{acc+1}] {bsel(m)}"

def unpack(a, data, tmp):
    for k in range(4):
        a(f"v_lshlrev_b32 v{tmp+2*k}, 16, v{data+k}")
        a(f"v_and_b32 v{tmp+2*k+1}, s{sMASK}, v{data+k}")

def axpy_row(a, acc, data, m, tmp, sgpr=False):
    unpack(a, data, tmp)
    for k in range(4):
        a(pkfma_bcast(acc+2*k, tmp+2*k, m, sgpr))

def bf16_round(a, v):
    a(f"v_cvt_pk_bf16_f32 v{v}, v{v}, v{v}")
    a(f"v_and_b32 v{v}, s{sMASK}, v{v}")

def stamp(a, cfg, idx):
    if cfg.get("stamps"):
        a("s_memrealtime s[96:97]")
        a("s_waitcnt lgkmcnt(0)")
        a(f"v_writelane_b32 v7, s96, {idx}")

def gen(cfg):
    KVF = cfg.get("kvflags", "nt")
    WF = cfg.get("wflags", "")
    SLEEP = cfg.get("sleep", 4)
    VW = cfg.get("vw", 12)
    PACE = cfg.get("pace", 3)
    SI = cfg.get("si", 11)
    NPRE = cfg.get("npre", 4)
    NST = NPRE + 2*SI
    NDYN = (512 - 16*NST)//2
    SPIN = 0x200000
    a = Asm()
    a("s_cmp_ge_u32 s2, 256")
    a("s_cbranch_scc1 L_end")
    a("s_load_dwordx16 s[4:19], s[0:1], 0")
    a("s_load_dwordx8 s[20:27], s[0:1], 64")
    if cfg.get("stamps"):
        a("v_mov_b32 v7, 0")
        a("s_memrealtime s[98:99]")
    if cfg.get("prog"):
        a("s_memrealtime s[98:99]")
        a("s_waitcnt lgkmcnt(0)")
        a("s_mov_b32 s99, s98")
    a(f"v_and_b32 v{vLANE}, 63, v0")
    a(f"v_lshrrev_b32 v{vA0}, 6, v0")
    a(f"v_lshlrev_b32 v{vL16}, 4, v{vLANE}")
    a(f"v_readfirstlane_b32 s{sW}, v{vA0}")
    a.c("decode workgroup id: xcd=g&7, e=(g>>3)&1, s=(g>>4)&1, b=g>>5; the two key halves of a head sit on xcd i and i+1+2e")
    a(f"s_and_b32 s{sT0}, s2, 7")
    a(f"s_bfe_u32 s{sT1}, s2, 0x10003")
    a(f"s_bfe_u32 s{sS}, s2, 0x10004")
    a(f"s_lshr_b32 s{sB}, s2, 5")
    if cfg.get("pair", "xor") == "k44":
        a(f"s_lshl_b32 s{sT2}, s{sT1}, 1")
        a(f"s_add_u32 s{sT2}, s{sT2}, 1")
        a(f"s_mul_i32 s{sT2}, s{sT2}, s{sS}")
        a(f"s_sub_u32 s{sT0}, s{sT0}, s{sT2}")
        a(f"s_and_b32 s{sT0}, s{sT0}, 7")
    elif cfg.get("pair", "xor") == "xor":
        a(f"s_lshl_b32 s{sT2}, s{sT1}, 1")
        a(f"s_add_u32 s{sT2}, s{sT2}, 3")
        a(f"s_mul_i32 s{sT2}, s{sT2}, s{sS}")
        a(f"s_xor_b32 s{sT0}, s{sT0}, s{sT2}")
    a(f"s_lshl_b32 s{sH}, s{sT0}, 1")
    a(f"s_add_u32 s{sH}, s{sH}, s{sT1}")
    a(f"s_lshl_b32 s{sJ}, s{sH}, 1")
    a(f"s_add_u32 s{sJ}, s{sJ}, s{sS}")
    a(f"s_mov_b32 s{sMASK}, 0xffff0000")
    a.c("wq slice voffset = (lane>>1)*8192 + (lane&1)*16")
    a(f"v_lshrrev_b32 v{vA0}, 1, v{vLANE}")
    a(f"v_and_b32 v{vA1}, 1, v{vLANE}")
    a(f"v_lshlrev_b32 v{vWQO}, 13, v{vA0}")
    a(f"v_lshl_add_u32 v{vWQO}, v{vA1}, 4, v{vWQO}")
    a(f"s_lshl_b32 s{sBH}, s{sB}, 4")
    a(f"s_add_u32 s{sBH}, s{sBH}, s{sH}")
    a(f"s_lshl_b32 s{sT0}, s{sBH}, 21")
    a(f"s_mul_i32 s{sT1}, s{sW}, 896")
    a.c("p = s*8 + b ; flag byte index = h*16 + p ; wq column byte offset = h*512 + p*32")
    a(f"s_lshl_b32 s{sPL}, s{sS}, 3")
    a(f"s_add_u32 s{sPL}, s{sPL}, s{sB}")
    a(f"s_lshl_b32 s{sPH}, s{sH}, 4")
    a(f"s_add_u32 s{sPH}, s{sPH}, s{sPL}")
    a(f"s_lshl_b32 s{sT2}, s{sPH}, 5")
    a(f"s_sub_u32 s{sT3}, {448*8192}, s{sT2}")
    a(f"s_lshl_b32 s{sOFF}, s{sW}, 12")
    a(f"s_mul_i32 s{sO1}, s{sS}, {NST*8*4096}")
    a(f"s_add_u32 s{sOFF}, s{sOFF}, s{sO1}")
    a(f"s_sub_u32 s{sPR}, 7, s{sW}")
    a(f"s_lshl_b32 s{sIT}, s{sPR}, 19")
    a(f"s_add_u32 s{sJO}, s{sIT}, 0x40000")
    a(f"s_add_u32 s{sO1}, s{sOFF}, 0x8000")
    a(f"s_add_u32 s{sO2}, s{sOFF}, 0x10000")
    a(f"s_add_u32 s{sO3}, s{sOFF}, 0x18000")
    a(f"s_add_u32 s{sO4}, s{sOFF}, 0x20000")
    a(f"s_add_u32 s{sO5}, s{sOFF}, 0x28000")
    a("s_waitcnt lgkmcnt(0)")
    X4 = 24; WQ0 = 56; WQ1 = 60
    srd(a, dX, sX_, f"s{sT1}", 896)
    a.vmem(f"buffer_load_dwordx4 v[{X4}:{X4+3}], v{vL16}, s[{dX}:{dX+3}], 0 offen", "x")
    srd(a, dWQ, sWQ_, f"s{sT2}", f"s{sT3}")
    a.vmem(f"buffer_load_dwordx4 v[{WQ0}:{WQ0+3}], v{vWQO}, s[{dWQ}:{dWQ+3}], s{sIT} offen {WF}", "wq0")
    a.vmem(f"buffer_load_dwordx4 v[{WQ1}:{WQ1+3}], v{vWQO}, s[{dWQ}:{dWQ+3}], s{sJO} offen {WF}", "wq1")
    a.c("launch nonce of this head: first arriver's clock value, agreed through a compare-swap on zeroed d_debug")
    NON = 20
    a(f"s_cmp_lg_u32 s{sW}, 0")
    a("s_cbranch_scc1 L_nonon")
    a("s_memrealtime s[100:101]")
    a(f"s_lshl_b32 s{sT1}, s{sH}, 3")
    a(f"v_mov_b32 v{vA0}, s{sT1}")
    a(f"v_mov_b32 v{NON+1}, 0")
    a("s_waitcnt lgkmcnt(0)")
    a("s_or_b32 s100, s100, 1")
    a(f"v_mov_b32 v{NON}, s100")
    a("s_mov_b64 exec, 1")
    a(f"global_atomic_cmpswap v{NON}, v{vA0}, v[{NON}:{NON+1}], s[{sDBG_}:{sDBG_+1}] sc0 sc1")
    a("s_mov_b64 exec, -1")
    a("L_nonon:")
    srd(a, dK, sK_, f"s{sT0}", 0x200000)
    srd(a, dV, sV_, f"s{sT0}", 0x200000)
    a("s_barrier")
    kv = []
    for (K, V, so) in ((KA, VA, sOFF), (KB, VB, sO1), (KC, VC, sO2), (KD, VD, sO3), (KE, VE, sO4), (KF, VF, sO5))[:NPRE]:
        kv += [(K, dK, so, i) for i in range(4)] + [(V, dV, so, i) for i in range(4)]
    def kvone():
        base, d, so, i = kv.pop(0)
        a.vmem(f"buffer_load_dwordx4 v[{base+4*i}:{base+4*i+3}], v{vL16}, s[{d}:{d+3}], s{so} offen offset:{i*1024} {KVF}", "kv")
    def sprinkle(start, every, count):
        body = a.lines[start:]
        del a.lines[start:]
        k = 0
        for n_, l in enumerate(body):
            a.lines.append(l)
            if k < count and n_ % every == every-1 and not l.strip().startswith(("s_waitcnt vmcnt", ";")):
                kvone(); k += 1
        while k < count:
            kvone(); k += 1
    def kvgroup(paced):
        for _ in range(4):
            base, d, so, i = kv.pop(0)
            a.vmem(f"buffer_load_dwordx4 v[{base+4*i}:{base+4*i+3}], v{vL16}, s[{d}:{d+3}], s{so} offen offset:{i*1024} {KVF}", "kv")
            if paced:
                a(f"s_waitcnt vmcnt({PACE})")
    for _ in range(cfg.get("n0", 4)):
        kvone()
    stamp(a, cfg, 1)
    srd(a, dWS, sWS_, None, 0x400000)
    a(f"s_lshl_b32 s{sSLOT}, s{sB}, 5")
    a(f"s_add_u32 s{sSLOT}, s{sSLOT}, s{sJ}")
    a(f"s_lshl_b32 s{sSLOT}, s{sSLOT}, 12")
    for k in range(8):
        a(f"v_mov_b32 v{vO+k}, 0")
    a(f"s_cmp_lt_u32 s{sW}, 4")
    a(f"s_cselect_b32 s{dGU}, s{sWG_}, s{sWU_}")
    a(f"s_cselect_b32 s{dGU+1}, s{sWG_+1}, s{sWU_+1}")
    a(f"s_mov_b32 s{dGU+2}, {448*3584}")
    a(f"s_mov_b32 s{dGU+3}, 0x00020000")
    srd(a, dWO, sWO_, None, 4096*896)
    srd(a, dWD, sWD_, None, 1792*896)
    a(f"v_cmp_gt_u32 vcc, 56, v{vLANE}")
    a(f"v_mov_b32 v{vA0}, {CNT}")
    a(f"ds_write_b64 v{vA0}, v[{vO}:{vO+1}]")
    a.c("LayerNorm: wave w normalises x[w]")
    E = 28; S0 = 36
    a.wait_tag("x")
    ln0 = len(a.lines)
    unpack(a, X4, E)
    a(f"v_add_f32 v{S0}, v{E}, v{E+1}")
    a(f"v_add_f32 v{S0+1}, v{E+2}, v{E+3}")
    a(f"v_add_f32 v{S0+2}, v{E+4}, v{E+5}")
    a(f"v_add_f32 v{S0+3}, v{E+6}, v{E+7}")
    a(f"v_add_f32 v{S0}, v{S0}, v{S0+1}")
    a(f"v_add_f32 v{S0+2}, v{S0+2}, v{S0+3}")
    a(f"v_add_f32 v{S0}, v{S0}, v{S0+2}")
    reduce64(a, "v_add_f32", S0, sT0)
    MEAN = S0+1; ACC = S0+2; D = S0+4
    a("s_nop 1")
    a(f"v_mov_b32 v{MEAN}, s{sT0}")
    a(f"v_mul_f32 v{MEAN}, {f32(1.0/448)}, v{MEAN}")
    for k in range(8):
        a(f"v_sub_f32 v{D+k}, v{E+k}, v{MEAN}")
    a(f"v_mul_f32 v{ACC}, v{D}, v{D}")
    for k in range(1, 8):
        a(f"v_fmac_f32 v{ACC}, v{D+k}, v{D+k}")
    a(f"v_cndmask_b32 v{ACC}, 0, v{ACC}, vcc")
    reduce64(a, "v_add_f32", ACC, sT0)
    bf16_round(a, MEAN)
    a(f"v_mov_b32 v{ACC}, s{sT0}")
    a(f"v_mul_f32 v{ACC}, {f32(1.0/448)}, v{ACC}")
    bf16_round(a, ACC)
    a(f"v_add_f32 v{ACC}, {f32(1e-5)}, v{ACC}")
    bf16_round(a, ACC)
    a(f"v_sqrt_f32 v{ACC}, v{ACC}")
    for k in range(8):
        a(f"v_sub_f32 v{D+k}, v{E+k}, v{MEAN}")
    bf16_round(a, ACC)
    a(f"v_rcp_f32 v{ACC}, v{ACC}")
    for k in range(4):
        a(f"v_cvt_pk_bf16_f32 v{X4+k}, v{D+2*k}, v{D+2*k+1}")
    unpack(a, X4, D)
    for k in range(8):
        a(f"v_mul_f32 v{D+k}, v{D+k}, v{ACC}")
    for k in range(4):
        a(f"v_cvt_pk_bf16_f32 v{X4+k}, v{D+2*k}, v{D+2*k+1}")
    unpack(a, X4, E)
    a(f"v_lshlrev_b32 v{vA0}, 5, v{vLANE}")
    a(f"s_lshl_b32 s{sT0}, s{sW}, 11")
    a(f"v_add_u32 v{vA0}, s{sT0}, v{vA0}")
    a(f"ds_write_b128 v{vA0}, v[{E}:{E+3}] offset:{XT}")
    a(f"ds_write_b128 v{vA0}, v[{E+4}:{E+7}] offset:{XT+16}")
    a.c("multiplier addresses: row (64w + 32i + lane>>1) * 4")
    a(f"v_lshrrev_b32 v{vA0}, 1, v{vLANE}")
    a(f"v_lshlrev_b32 v{vA0}, 2, v{vA0}")
    a(f"s_lshl_b32 s{sT0}, s{sPR}, 8")
    a(f"v_add_u32 v{vA0}, s{sT0}, v{vA0}")
    a(f"v_add_u32 v{vA1}, 128, v{vA0}")
    sprinkle(ln0, cfg.get("spr1", 30), cfg.get("n1", 4))
    a("s_waitcnt lgkmcnt(0)")
    a("s_barrier")
    stamp(a, cfg, 2)
    XM = 24
    for k in range(4):
        a(f"ds_read2st64_b32 v[{XM+2*k}:{XM+2*k+1}], v{vA0} offset0:{XT//256+16*k} offset1:{XT//256+16*k+8}")
    for k in range(4):
        a(f"ds_read2st64_b32 v[{XM+8+2*k}:{XM+8+2*k+1}], v{vA1} offset0:{XT//256+16*k} offset1:{XT//256+16*k+8}")
    U0 = 40; U1 = 48
    a.wait_tag("wq1")
    fm0 = len(a.lines)
    unpack(a, WQ0, U0)
    unpack(a, WQ1, U1)
    QA = GUR
    a("s_waitcnt lgkmcnt(4)")
    for b in range(8):
        for k in range(4):
            m = XM + b
            sel = "op_sel:[0,1] op_sel_hi:[1,1]" if m & 1 else "op_sel_hi:[1,0]"
            a(f"v_pk_mul_f32 v[{QA+8*b+2*k}:{QA+8*b+2*k+1}], v[{U0+2*k}:{U0+2*k+1}], v[{m&~1}:{(m&~1)+1}] {sel}")
    a("s_waitcnt lgkmcnt(0)")
    for b in range(8):
        for k in range(4):
            a(pkfma_bcast(QA+8*b+2*k, U1+2*k, XM+8+b))
    a.c("transposing reduction over lane bits 5,4,3,2 then all-reduce over bit 1")
    for r in range(32):
        a(f"v_permlane32_swap_b32 v{QA+r}, v{QA+32+r}")
    for r in range(0, 32, 2):
        a(f"v_pk_add_f32 v[{QA+r}:{QA+r+1}], v[{QA+r}:{QA+r+1}], v[{QA+32+r}:{QA+32+r+1}]")
    for r in range(16):
        a(f"v_permlane16_swap_b32 v{QA+r}, v{QA+16+r}")
    for r in range(0, 16, 2):
        a(f"v_pk_add_f32 v[{QA+r}:{QA+r+1}], v[{QA+r}:{QA+r+1}], v[{QA+16+r}:{QA+16+r+1}]")
    R3 = QA + 32
    for r in range(8):
        a(dpp("v_add_f32", R3+r, QA+r, QA+r, "row_ror:8", bm="0x3"))
    for r in range(8):
        a(dpp("v_add_f32", R3+r, QA+8+r, QA+8+r, "row_ror:8", bm="0xc"))
    R4 = QA + 48
    for r in range(4):
        a(dpp("v_add_f32", R4+r, R3+r, R3+r, "row_shl:4", bm="0x5"))
    for r in range(4):
        a(dpp("v_add_f32", R4+r, R3+4+r, R3+4+r, "row_shr:4", bm="0xa"))
    a.c("LDS addr = QP + w*512 + (lane>>3)*64 + (lane&1)*32 + ((lane>>2)&1)*16")
    a(f"v_lshrrev_b32 v{vA0}, 3, v{vLANE}")
    a(f"v_lshlrev_b32 v{vA0}, 6, v{vA0}")
    a(f"v_and_b32 v{vA1}, 1, v{vLANE}")
    a(f"v_lshl_add_u32 v{vA0}, v{vA1}, 5, v{vA0}")
    a(f"v_and_b32 v{vA1}, 4, v{vLANE}")
    a(f"v_lshl_add_u32 v{vA0}, v{vA1}, 2, v{vA0}")
    for r in range(4):
        a(dpp("v_add_f32", R4+r, R4+r, R4+r, "quad_perm:[2,3,0,1]"))
    a(f"s_lshl_b32 s{sT0}, s{sPR}, 9")
    a(f"v_add_u32 v{vA0}, s{sT0}, v{vA0}")
    a(f"ds_write_b128 v{vA0}, v[{R4}:{R4+3}] offset:{QP}")
    sprinkle(fm0, cfg.get("spr2", 40), cfg.get("n2", 4))
    QD = 40
    VQA = 39
    a(f"v_and_b32 v{VQA}, 31, v{vLANE}")
    a(f"v_lshlrev_b32 v{VQA}, 5, v{VQA}")
    a(f"s_lshl_b32 s{sT3}, s{sBH}, 10")
    a(f"s_add_u32 s{sT3}, s{sT3}, {WS_Q}")
    a("s_waitcnt lgkmcnt(0)")
    a("s_barrier")
    a(f"s_cmp_lg_u32 s{sW}, 0")
    a("s_cbranch_scc1 L_nopub")
    a.c("wave 0: lanes 0..15 = (b, half): sum 7 partials, publish 8 tagged columns each, then poll for this WG's q")
    a(f"v_lshlrev_b32 v{vA0}, 5, v{vLANE}")
    a("s_mov_b64 exec, 0xffff")
    PR = GUR
    for w2 in range(7):
        a(f"ds_read_b128 v[{PR+8*w2}:{PR+8*w2+3}], v{vA0} offset:{QP+512*w2}")
        a(f"ds_read_b128 v[{PR+8*w2+4}:{PR+8*w2+7}], v{vA0} offset:{QP+512*w2+16}")
    a(f"v_lshrrev_b32 v{vA1}, 1, v{vLANE}")
    a(f"v_lshlrev_b32 v{vA1}, 14, v{vA1}")
    a(f"v_and_b32 v{vA0}, 1, v{vLANE}")
    a(f"v_lshl_add_u32 v{vA1}, v{vA0}, 5, v{vA1}")
    a(f"s_lshl_b32 s{sT0}, s{sPH}, 6")
    a(f"s_add_u32 s{sT0}, s{sT0}, {WS_Q}")
    a.c("nonce = returned old value, or our own proposal if the word was still zero")
    a(f"v_readfirstlane_b32 s{sT1}, v{NON}")
    a(f"s_cmp_eq_u32 s{sT1}, 0")
    a(f"s_cselect_b32 s{sT1}, s100, s{sT1}")
    a(f"s_and_b32 s{sNL}, s{sT1}, 0xffff")
    a(f"s_lshr_b32 s{sNH}, s{sT1}, 16")
    a(f"v_mov_b32 v{QD}, s{sNL}")
    a(f"v_mov_b32 v{QD+1}, s{sNH}")
    for w2 in range(1, 7):
        a(f"s_waitcnt lgkmcnt({12-2*w2})")
        for k in range(4):
            a(f"v_pk_add_f32 v[{PR+2*k}:{PR+2*k+1}], v[{PR+2*k}:{PR+2*k+1}], v[{PR+8*w2+2*k}:{PR+8*w2+2*k+1}]")
    for k in range(8):
        a(f"v_cvt_pk_bf16_f32 v{PR+k}, v{PR+k}, v{PR+k}")
    for k in range(8):
        a(f"v_and_or_b32 v{PR+56+k}, v{PR+k}, s{sMASK}, v{QD+(k&1)}")
    a(f"buffer_store_dwordx4 v[{PR+56}:{PR+59}], v{vA1}, s[{dWS}:{dWS+3}], s{sT0} offen sc1")
    a(f"buffer_store_dwordx4 v[{PR+60}:{PR+63}], v{vA1}, s[{dWS}:{dWS+3}], s{sT0} offen offset:16 sc1")
    a("s_mov_b64 exec, -1")
    stamp(a, cfg, 13)
    a(f"s_mov_b32 s{sIT}, 0")
    TX = 24
    a("L_qpoll:")
    a(f"buffer_load_dwordx4 v[{QD}:{QD+3}], v{VQA}, s[{dWS}:{dWS+3}], s{sT3} offen sc1")
    a(f"buffer_load_dwordx4 v[{QD+4}:{QD+7}], v{VQA}, s[{dWS}:{dWS+3}], s{sT3} offen offset:16 sc1")
    a(f"s_add_u32 s{sIT}, s{sIT}, 1")
    a("s_waitcnt vmcnt(0)")
    for k in range(8):
        a(f"v_xor_b32 v{TX+k}, s{sNH if k & 1 else sNL}, v{QD+k}")
    a(f"v_or3_b32 v{TX}, v{TX}, v{TX+1}, v{TX+2}")
    a(f"v_or3_b32 v{TX+3}, v{TX+3}, v{TX+4}, v{TX+5}")
    a(f"v_or3_b32 v{TX}, v{TX}, v{TX+6}, v{TX+7}")
    a(f"v_or_b32 v{TX}, v{TX}, v{TX+3}")
    a(f"v_and_b32 v{TX}, 0xffff, v{TX}")
    a(f"v_cmp_ne_u32 vcc, 0, v{TX}")
    a("s_cbranch_vccz L_qgot")
    a(f"s_cmp_lt_u32 s{sIT}, {SPIN}")
    a("s_cbranch_scc1 L_qpoll")
    a("L_qgot:")
    a(f"s_mov_b32 s{sT0}, 0x07060302")
    for k in range(4):
        a(f"v_perm_b32 v{TX+k}, v{QD+2*k+1}, v{QD+2*k}, s{sT0}")
    a(f"v_lshrrev_b32 v{TX+4}, 1, v{VQA}")
    a(f"ds_write_b128 v{TX+4}, v[{TX}:{TX+3}] offset:{QL}")
    a(f"v_mov_b32 v{TX+5}, {QFL}")
    a(f"v_mov_b32 v{TX+6}, 1")
    a("s_waitcnt lgkmcnt(0)")
    a(f"ds_write_b32 v{TX+5}, v{TX+6}")
    stamp(a, cfg, 14)
    if cfg.get("stamps"):
        a(f"v_writelane_b32 v7, s{sIT}, 15")
    a("L_nopub:")
    a.c("wave 5 clears this workgroup's slot with the sentinel; in half 0 it also zeroes the pair's claim counter")
    a(f"s_cmp_lg_u32 s{sW}, 5")
    a("s_cbranch_scc1 L_noclr")
    for k in range(4):
        a(f"v_mov_b32 v{STG+k}, -1")
    for k in range(4):
        a(f"buffer_store_dwordx4 v[{STG}:{STG+3}], v{vL16}, s[{dWS}:{dWS+3}], s{sSLOT} offen offset:{1024*k} sc1")
    a(f"s_cmp_lg_u32 s{sS}, 0")
    a("s_cbranch_scc1 L_noclr")
    a(f"s_lshl_b32 s{sT0}, s{sBH}, 8")
    a(f"s_add_u32 s{sT0}, s{sT0}, {WS_CLM}")
    a("s_mov_b64 exec, 1")
    a(f"buffer_store_dword v{vO}, v{vO}, s[{dWS}:{dWS+3}], s{sT0} offen sc1")
    a("s_mov_b64 exec, -1")
    a("L_noclr:")
    while kv:
        if PACE < 60:
            a(f"s_waitcnt vmcnt({PACE})")
        kvone()
    a.c("GLU slice j < 28: 64 columns. gu voffset = (lane>>3)*3584 + (lane&7)*16 ; soffset = 112*(w&3)*3584 + j*128")
    a(f"v_lshrrev_b32 v{vA0}, 3, v{vLANE}")
    a(f"v_and_b32 v{vA1}, 7, v{vLANE}")
    a(f"v_mul_u32_u24 v{vGUO}, 3584, v{vA0}")
    a(f"v_lshl_add_u32 v{vGUO}, v{vA1}, 4, v{vGUO}")
    a(f"s_and_b32 s{sT0}, s{sW}, 3")
    a(f"s_mul_i32 s{sGO}, s{sT0}, {112*3584}")
    a(f"s_lshl_b32 s{sT1}, s{sJ}, 7")
    a(f"s_add_u32 s{sGO}, s{sGO}, s{sT1}")
    a.c("slices j >= 28 do not exist: zero-size descriptors make their loads return 0")
    a(f"s_cmp_lt_u32 s{sJ}, 28")
    a(f"s_cselect_b32 s{dGU+2}, s{dGU+2}, 0")
    a(f"s_cselect_b32 s{dWD+2}, s{dWD+2}, 0")
    a(f"s_mov_b32 s{sIT}, 0")
    a(f"v_mov_b32 v{vA0}, {QFL}")
    a(f"v_lshrrev_b32 v{vA1}, 1, v{VQA}")
    a("L_qwait:")
    a(f"ds_read_b32 v24, v{vA0}")
    a(f"ds_read_b128 v[{vQ}:{vQ+3}], v{vA1} offset:{QL}")
    a("s_waitcnt lgkmcnt(0)")
    a(f"v_readfirstlane_b32 s{sT0}, v24")
    a(f"s_cmp_lg_u32 s{sT0}, 0")
    a("s_cbranch_scc1 L_qok")
    a("s_sleep 1")
    a(f"s_add_u32 s{sIT}, s{sIT}, 1")
    a(f"s_cmp_lt_u32 s{sIT}, {SPIN}")
    a("s_cbranch_scc1 L_qwait")
    a("L_qok:")
    a(f"v_and_b32 v{vA1}, 31, v{vLANE}")
    a(f"v_lshlrev_b32 v{vA1}, 5, v{vA1}")
    a(f"v_lshrrev_b32 v{vA0}, 5, v{vLANE}")
    a(f"v_lshl_add_u32 v{vA1}, v{vA0}, 4, v{vA1}")
    a(f"v_mov_b32 v{vM}, {f32(-1e30)}")
    a(f"v_mov_b32 v{vL}, 0")
    a(f"s_mov_b32 s{sIT}, 0")
    a(f"s_mov_b32 s{sPL}, 0x05040100")
    a(f"s_mov_b32 s{sPH}, 0x07060302")
    a(f"s_add_u32 s{sOFF}, s{sOFF}, {NPRE*0x8000}")
    a(f"s_add_u32 s{sOB}, s{sOFF}, 0x8000")
    a(f"s_lshl_b32 s{sCNT}, s{sBH}, 8")
    a(f"s_add_u32 s{sCNT}, s{sCNT}, {WS_CLM}")
    stamp(a, cfg, 3)
    if cfg.get("prog"):
        a("s_lshl_b32 s98, s2, 3")
        a(f"s_add_u32 s98, s98, s{sW}")
        a("s_lshl_b32 s98, s98, 8")
        a("s_add_u32 s98, s98, 0x200000")
        a("v_mov_b32 v22, s99")
        a("v_mov_b32 v23, 0")
        a("s_mov_b64 exec, 1")
        a(f"buffer_store_dword v22, v23, s[{dWS}:{dWS+3}], s98 offen")
        a("s_mov_b64 exec, -1")
        a("s_add_u32 s98, s98, 4")
    CZ = f32(0.0625*LOG2E)
    A = 22; Z = 26; P = 27; T = 28; PB = 30; U = 34
    def tile(K, V, lab, refill=True, so=None):
        if refill:
            a(f"s_waitcnt vmcnt({VW})")
        for jj in range(4):
            for i in range(4):
                if jj == 0:
                    a(f"v_dot2_f32_bf16 v{A+i}, v{K+4*i}, v{vQ}, 0")
                else:
                    a(f"v_dot2c_f32_bf16 v{A+i}, v{K+4*i+jj}, v{vQ+jj}")
        if refill:
            for i in range(4):
                a(f"buffer_load_dwordx4 v[{K+4*i}:{K+4*i+3}], v{vL16}, s[{dK}:{dK+3}], s{so} offen offset:{i*1024} {KVF}")
        else:
            a("s_nop 2")
        a(f"v_permlane16_swap_b32 v{A}, v{A+1}")
        a(f"v_permlane16_swap_b32 v{A+2}, v{A+3}")
        a("s_nop 0")
        a(f"v_add_f32 v{A}, v{A}, v{A+1}")
        a(f"v_add_f32 v{A+2}, v{A+2}, v{A+3}")
        a("s_nop 0")
        a(dpp("v_add_f32", Z, A, A, "row_ror:8", bm="0x3"))
        a(dpp("v_add_f32", Z, A+2, A+2, "row_ror:8", bm="0xc"))
        for ctrl in ("quad_perm:[1,0,3,2]", "quad_perm:[2,3,0,1]", "row_half_mirror"):
            a("s_nop 1")
            a(dpp("v_add_f32", Z, Z, Z, ctrl))
        a(f"v_cvt_pk_bf16_f32 v{Z}, v{Z}, v{Z}")
        a(f"v_and_b32 v{Z}, s{sMASK}, v{Z}")
        a(f"v_mul_f32 v{Z}, {CZ}, v{Z}")
        a(f"v_cmp_gt_f32 vcc, v{Z}, v{vM}")
        a(f"s_cbranch_vccnz L_resc{lab}")
        a(f"L_back{lab}:")
        a(f"v_sub_f32 v{P}, v{Z}, v{vM}")
        a(f"v_exp_f32 v{P}, v{P}")
        a("s_nop 0")
        a(f"v_add_f32 v{vL}, v{vL}, v{P}")
        a(f"v_mov_b32 v{T}, v{P}")
        a("s_nop 1")
        a(f"v_permlane16_swap_b32 v{P}, v{T}")
        a("s_nop 1")
        a(f"v_mov_b32_dpp v{PB}, v{P} row_newbcast:0 row_mask:0xf bank_mask:0xf")
        a(f"v_mov_b32_dpp v{PB+1}, v{T} row_newbcast:0 row_mask:0xf bank_mask:0xf")
        a(f"v_mov_b32_dpp v{PB+2}, v{P} row_newbcast:8 row_mask:0xf bank_mask:0xf")
        a(f"v_mov_b32_dpp v{PB+3}, v{T} row_newbcast:8 row_mask:0xf bank_mask:0xf")
        if refill:
            a(f"s_waitcnt vmcnt({VW})")
        for i in range(4):
            axpy_row(a, vO, V+4*i, PB+i, U)
        if refill:
            for i in range(4):
                a(f"buffer_load_dwordx4 v[{V+4*i}:{V+4*i+3}], v{vL16}, s[{dV}:{dV+3}], s{so} offen offset:{i*1024} {KVF}")
    def claim():
        a(f"v_mov_b32 v{vCLM}, 1")
        a(f"v_mov_b32 v{vCHK}, 0")
        a("s_mov_b64 exec, 1")
        a(f"buffer_atomic_add v{vCLM}, v{vCHK}, s[{dWS}:{dWS+3}], s{sCNT} offen sc0 sc1")
        a("s_mov_b64 exec, -1")
    def resc(lab):
        a(f"L_resc{lab}:")
        a(f"v_max_f32 v{T}, v{Z}, v{vM}")
        for ctrl, rm in (("row_ror:8", "0xf"), ("row_bcast:15", "0xa"), ("row_bcast:31", "0xc")):
            a("s_nop 1")
            a(dpp("v_max_f32", T, T, T, ctrl, rm))
        a("s_nop 0")
        a(f"v_readlane_b32 s{sT0}, v{T}, 63")
        a("s_nop 1")
        a(f"v_subrev_f32 v{T}, s{sT0}, v{vM}")
        a(f"v_exp_f32 v{T}, v{T}")
        a(f"v_mov_b32 v{vM}, s{sT0}")
        a(f"v_mul_f32 v{vL}, v{vL}, v{T}")
        for k in range(4):
            a(f"v_pk_mul_f32 v[{vO+2*k}:{vO+2*k+1}], v[{vO+2*k}:{vO+2*k+1}], v[{T}:{T+1}] op_sel_hi:[1,0]")
        a(f"s_branch L_back{lab}")
    a(".p2align 6")
    a("L_loop:")
    tile(KA, VA, "A", so=sOFF)
    tile(KB, VB, "B", so=sOB)
    if cfg.get("stamps"):
        for n2, itv in ((9, 2), (10, 5), (11, 8), (12, SI-1)):
            a(f"s_cmp_lg_u32 s{sIT}, {itv}")
            a(f"s_cbranch_scc1 L_nost{n2}")
            stamp(a, cfg, n2)
            a(f"L_nost{n2}:")
    if cfg.get("prog"):
        a("s_memrealtime s[96:97]")
        a("s_waitcnt lgkmcnt(0)")
        a("v_mov_b32 v22, s96")
        a("v_mov_b32 v23, 0")
        a("s_mov_b64 exec, 1")
        a(f"buffer_store_dword v22, v23, s[{dWS}:{dWS+3}], s98 offen")
        a("s_mov_b64 exec, -1")
        a("s_add_u32 s98, s98, 4")
    a(f"s_cmp_ge_u32 s{sIT}, {SI}")
    a("s_cbranch_scc1 L_dyn")
    a(f"s_cmp_lt_u32 s{sIT}, 11")
    a("s_cbranch_scc1 L_job")
    a("L_jobret:")
    a(f"s_add_u32 s{sIT}, s{sIT}, 1")
    a(f"s_add_u32 s{sOFF}, s{sOFF}, 0x10000")
    a(f"s_add_u32 s{sOB}, s{sOB}, 0x10000")
    a(f"s_cmp_lt_u32 s{sIT}, {SI-2}")
    a("s_cbranch_scc1 L_loop")
    a(f"s_cmp_eq_u32 s{sIT}, {SI}")
    a("s_cbranch_scc1 L_dyn0")
    a(f"s_cmp_eq_u32 s{sIT}, {SI-1}")
    a("s_cbranch_scc1 L_clm0")
    a.c("two iterations before the dynamic phase: fetch the per-batch 'slots cleared' counter")
    a(f"s_lshl_b32 s{sT0}, s{sB}, 4")
    a(f"s_add_u32 s{sT0}, s{sT0}, 128")
    a(f"v_mov_b32 v{vCHK}, s{sT0}")
    a(f"global_load_dword v{vCHK}, v{vCHK}, s[{sDBG_}:{sDBG_+1}] sc1")
    a("s_branch L_loop")
    a("L_clm0:")
    a.c("claims are allowed only once the counter's initialisation is known complete")
    a(f"v_readfirstlane_b32 s{sT0}, v{vCHK}")
    a(f"v_mov_b32 v{vCLM}, {NDYN}")
    if cfg.get("dynw", 8) < 8:
        a(f"s_cmp_ge_u32 s{sW}, {cfg['dynw']}")
        a("s_cbranch_scc1 L_loop")
    a(f"s_cmp_lt_u32 s{sT0}, 32")
    a("s_cbranch_scc1 L_noclm")
    claim()
    a("s_branch L_loop")
    a("L_dyn0:")
    a(f"s_mov_b32 s{sVALID}, 1")
    if cfg.get("dynbar", 1):
        a("s_barrier")
    a("L_dyn:")
    a(f"s_cmp_eq_u32 s{sVALID}, 0")
    a("s_cbranch_scc1 L_epi")
    a(f"v_readfirstlane_b32 s{sT0}, v{vCLM}")
    a(f"s_min_u32 s{sT0}, s{sT0}, {NDYN}")
    a(f"s_lshl_b32 s{sOFF}, s{sT0}, 13")
    a(f"s_add_u32 s{sOFF}, s{sOFF}, {16*NST*4096}")
    a(f"s_add_u32 s{sOB}, s{sOFF}, 0x1000")
    a(f"s_cmp_lt_u32 s{sT0}, {NDYN}")
    a(f"s_cselect_b32 s{sVALID}, 1, 0")
    a("s_cbranch_scc0 L_loop")
    claim()
    a("s_branch L_loop")
    a("L_noclm:")
    a(f"s_cmp_eq_u32 s{sS}, 1")
    a("s_cbranch_scc1 L_loop")
    a.c("half 0 owns the counter: only its own wave 5's init matters; wait for wave 5's gu signal (LDS count 8)")
    a(f"v_mov_b32 v{vCHK}, {CNT}")
    a("L_nocl2:")
    a(f"ds_read_b32 v{vCLM}, v{vCHK}")
    a("s_waitcnt lgkmcnt(0)")
    a(f"v_readfirstlane_b32 s{sT0}, v{vCLM}")
    a(f"s_cmp_lt_u32 s{sT0}, 8")
    a("s_cbranch_scc1 L_nocl2")
    claim()
    a("s_branch L_loop")
    for lab in "ABCDEF"[:NPRE]:
        resc(lab)
    def wo_issue():
        for i in range(4):
            a(f"buffer_load_dwordx4 v[{STG+4*i}:{STG+4*i+3}], v{vL16}, s[{dWO}:{dWO+3}], s{sJO} offen offset:{i*896} {WF}")
        a(f"s_add_u32 s{sJO}, s{sJO}, {4*896}")
    def gu_issue(g0, g1):
        for g in range(g0, g1):
            a(f"buffer_load_dwordx4 v[{GUR+4*g}:{GUR+4*g+3}], v{vGUO}, s[{dGU}:{dGU+3}], s{sGO} offen {WF}")
            a(f"s_add_u32 s{sGO}, s{sGO}, {8*3584}")
    G = 38; XG = 22; UG = STG
    a("L_job:")
    a(f"s_cmp_eq_u32 s{sIT}, 0")
    a("s_cbranch_scc1 L_job0")
    a(f"s_cmp_gt_u32 s{sIT}, 8")
    a("s_cbranch_scc1 L_jobwd")
    a.c("slots 1..8: interleave two staged wo row pairs into W + idx")
    a(f"s_set_gpr_idx_on s{sIDX}, 0x8")
    a("s_nop 0")
    for pr in range(2):
        for e in range(4):
            r0 = STG + 8*pr + e; r1 = r0 + 4
            a(f"v_perm_b32 v{W+8*pr+2*e}, v{r1}, v{r0}, s{sPL}")
            a(f"v_perm_b32 v{W+8*pr+2*e+1}, v{r1}, v{r0}, s{sPH}")
    a("s_set_gpr_idx_off")
    a(f"s_add_u32 s{sIDX}, s{sIDX}, 16")
    a(f"s_cmp_eq_u32 s{sIT}, 8")
    a("s_cbranch_scc1 L_job8")
    a(f"s_cmp_eq_u32 s{sIT}, 4")
    a("s_cbranch_scc1 L_job4")
    wo_issue()
    a(f"s_cmp_gt_u32 s{sIT}, 3")
    a("s_cbranch_scc1 L_jobret")
    a(f"s_cmp_eq_u32 s{sIT}, 2")
    a("s_cbranch_scc1 L_job2")
    a(f"s_cmp_eq_u32 s{sIT}, 3")
    a("s_cbranch_scc1 L_job3")
    gu_issue(4, 8)
    a("s_branch L_jobret")
    a("L_job2:")
    gu_issue(8, 11)
    a("s_branch L_jobret")
    a("L_job3:")
    gu_issue(11, 14)
    a("s_branch L_jobret")
    a("L_job8:")
    a.c("w_down rows 64j+8w+i")
    a(f"s_lshl_b32 s{sT0}, s{sJ}, 6")
    a(f"s_lshl_b32 s{sT1}, s{sW}, 3")
    a(f"s_add_u32 s{sT0}, s{sT0}, s{sT1}")
    a(f"s_mul_i32 s{sJO}, s{sT0}, 896")
    for i in range(4):
        a(f"buffer_load_dwordx4 v[{STG+4*i}:{STG+4*i+3}], v{vL16}, s[{dWD}:{dWD+3}], s{sJO} offen offset:{i*896} {WF}")
    a(f"s_add_u32 s{sJO}, s{sJO}, {4*896}")
    a("s_branch L_jobret")
    a("L_job0:")
    a("s_waitcnt vmcnt(16)")
    a.c("wave 5: its clearing stores are complete (older than everything waited for) -> count them")
    a(f"s_cmp_lg_u32 s{sW}, 5")
    a("s_cbranch_scc1 L_nocnt")
    a(f"s_lshl_b32 s{sT0}, s{sB}, 4")
    a(f"s_add_u32 s{sT0}, s{sT0}, 128")
    a(f"v_mov_b32 v{XG}, s{sT0}")
    a(f"v_mov_b32 v{XG+1}, 1")
    a("s_mov_b64 exec, 1")
    a(f"global_atomic_add v{XG}, v{XG+1}, s[{sDBG_}:{sDBG_+1}] sc1")
    a("s_mov_b64 exec, -1")
    a("L_nocnt:")
    a.c("wo rows h*256+32w+i")
    a(f"s_lshl_b32 s{sT0}, s{sH}, 8")
    a(f"s_lshl_b32 s{sT1}, s{sW}, 5")
    a(f"s_add_u32 s{sT0}, s{sT0}, s{sT1}")
    a(f"s_mul_i32 s{sJO}, s{sT0}, 896")
    a(f"s_mov_b32 s{sIDX}, 0")
    wo_issue()
    if NPRE == 6:
        tile(KE, VE, "E", refill=False)
        tile(KF, VF, "F", refill=False)
    gu_issue(0, 4)
    a.c("tiles C and D (prefetched in the prologue)")
    tile(KC, VC, "C", refill=False)
    tile(KD, VD, "D", refill=False)
    a("s_branch L_jobret")
    a("L_job4:")
    a.c("gate/up partial sums; multipliers xn[b][112*(w&3) + 8i + (lane>>3)]")
    a(f"v_lshrrev_b32 v{vA0}, 3, v{vLANE}")
    a(f"v_lshlrev_b32 v{vA0}, 2, v{vA0}")
    a(f"s_and_b32 s{sT0}, s{sW}, 3")
    a(f"s_mul_i32 s{sT0}, s{sT0}, 448")
    a(f"s_lshl_b32 s{sT1}, s{sB}, 11")
    a(f"s_add_u32 s{sT0}, s{sT0}, s{sT1}")
    a(f"v_add_u32 v{vA0}, s{sT0}, v{vA0}")
    for k in range(7):
        a(f"ds_read2_b32 v[{XG+2*k}:{XG+2*k+1}], v{vA0} offset0:{XT//4+16*k} offset1:{XT//4+16*k+8}")
    for k in range(8):
        a(f"v_mov_b32 v{G+k}, 0")
    a("s_waitcnt lgkmcnt(0)")
    for i in range(14):
        axpy_row(a, G, GUR+4*i, XG+i, UG)
    wo_issue()
    for k in range(4):
        a(f"v_permlane32_swap_b32 v{G+k}, v{G+4+k}")
    a("s_nop 0")
    for k in range(4):
        a(f"v_add_f32 v{G+k}, v{G+k}, v{G+4+k}")
    a("s_nop 0")
    a(f"v_permlane16_swap_b32 v{G}, v{G+2}")
    a(f"v_permlane16_swap_b32 v{G+1}, v{G+3}")
    a("s_nop 0")
    a(f"v_add_f32 v{G}, v{G}, v{G+2}")
    a(f"v_add_f32 v{G+1}, v{G+1}, v{G+3}")
    a.c("LDS addr = GP + w*256 + ((lane&7)*8 + (lane>>3))*4")
    a(f"v_and_b32 v{XG}, 7, v{vLANE}")
    a(f"v_lshrrev_b32 v{XG+1}, 3, v{vLANE}")
    a(dpp("v_add_f32", G+4, G, G, "row_ror:8", bm="0x3"))
    a(dpp("v_add_f32", G+4, G+1, G+1, "row_ror:8", bm="0xc"))
    a(f"v_lshl_add_u32 v{XG}, v{XG}, 3, v{XG+1}")
    a(f"v_lshlrev_b32 v{XG}, 2, v{XG}")
    a(f"s_lshl_b32 s{sT0}, s{sW}, 8")
    a(f"v_add_u32 v{XG}, s{sT0}, v{XG}")
    a(f"ds_write_b32 v{XG}, v{G+4} offset:{GP}")
    a(f"v_mov_b32 v{XG+2}, {CNT}")
    a(f"v_mov_b32 v{XG+3}, 1")
    a("s_waitcnt lgkmcnt(0)")
    a("s_mov_b64 exec, 1")
    a(f"ds_add_u32 v{XG+2}, v{XG+3}")
    a("s_mov_b64 exec, -1")
    a("s_branch L_jobret")
    a("L_jobwd:")
    a(f"v_lshlrev_b32 v{vA0}, 5, v{vLANE}")
    a(f"s_lshl_b32 s{sT0}, s{sW}, 11")
    a(f"v_add_u32 v{vA0}, s{sT0}, v{vA0}")
    a(f"s_cmp_eq_u32 s{sIT}, 10")
    a("s_cbranch_scc1 L_job10")
    a(f"v_mov_b32 v{XG}, {CNT}")
    a("L_cntspin:")
    a(f"ds_read_b32 v{XG+1}, v{XG}")
    a("s_waitcnt lgkmcnt(0)")
    a(f"v_readfirstlane_b32 s{sT0}, v{XG+1}")
    a(f"s_cmp_ge_u32 s{sT0}, 8")
    a("s_cbranch_scc1 L_cntok")
    a("s_sleep 16")
    a("s_branch L_cntspin")
    a("L_cntok:")
    a(f"v_lshlrev_b32 v{XG+8}, 2, v{vLANE}")
    a(f"v_add_u32 v{XG+8}, {GP}, v{XG+8}")
    for k in range(4):
        a(f"ds_read2st64_b32 v[{XG+2*k}:{XG+2*k+1}], v{XG+8} offset0:{2*k} offset1:{2*k+1}")
    for k in range(8):
        a(f"v_mov_b32 v{G+k}, 0")
    a(f"s_lshl_b32 s{sT0}, s{sW}, 3")
    a("s_waitcnt lgkmcnt(0)")
    a(f"v_add_f32 v{XG}, v{XG}, v{XG+1}")
    a(f"v_add_f32 v{XG+2}, v{XG+2}, v{XG+3}")
    a(f"v_add_f32 v{XG+4}, v{XG+4}, v{XG+5}")
    a(f"v_add_f32 v{XG+6}, v{XG+6}, v{XG+7}")
    a(f"v_add_f32 v{XG}, v{XG}, v{XG+2}")
    a(f"v_add_f32 v{XG+4}, v{XG+4}, v{XG+6}")
    bf16_round(a, XG)
    bf16_round(a, XG+4)
    a(f"v_mul_f32 v{XG}, {f32(-LOG2E)}, v{XG}")
    a(f"v_exp_f32 v{XG}, v{XG}")
    a("s_nop 0")
    a(f"v_add_f32 v{XG}, 1.0, v{XG}")
    a(f"v_rcp_f32 v{XG}, v{XG}")
    a("s_nop 0")
    bf16_round(a, XG)
    a(f"v_mul_f32 v{XG}, v{XG}, v{XG+4}")
    bf16_round(a, XG)
    a("s_nop 0")
    for i in range(8):
        a(f"v_readlane_b32 s{sP+i}, v{XG}, s{sT0}")
        a(f"s_add_u32 s{sT0}, s{sT0}, 1")
    a("s_nop 0")
    UW = 30
    for i in range(4):
        axpy_row(a, G, STG+4*i, sP+i, UW, sgpr=True)
    for i in range(4):
        a(f"buffer_load_dwordx4 v[{STG+4*i}:{STG+4*i+3}], v{vL16}, s[{dWD}:{dWD+3}], s{sJO} offen offset:{i*896} {WF}")
    a(f"ds_write_b128 v{vA0}, v[{G}:{G+3}] offset:{YG}")
    a(f"ds_write_b128 v{vA0}, v[{G+4}:{G+7}] offset:{YG+16}")
    a("s_branch L_jobret")
    a("L_job10:")
    a(f"ds_read_b128 v[{G}:{G+3}], v{vA0} offset:{YG}")
    a(f"ds_read_b128 v[{G+4}:{G+7}], v{vA0} offset:{YG+16}")
    a("s_waitcnt lgkmcnt(0)")
    for i in range(4):
        axpy_row(a, G, STG+4*i, sP+4+i, UW, sgpr=True)
    a(f"ds_write_b128 v{vA0}, v[{G}:{G+3}] offset:{YG}")
    a(f"ds_write_b128 v{vA0}, v[{G+4}:{G+7}] offset:{YG+16}")
    a("s_branch L_jobret")
    a("L_epi:")
    stamp(a, cfg, 4)
    CW = 5
    CL = STG; XR = STG+2
    a(f"s_cmp_lg_u32 s{sW}, {CW}")
    a("s_cbranch_scc1 L_epi1")
    a.c("consumer wave: 'slots cleared' counter of batch b, x for the residual")
    a(f"s_lshl_b32 s{sT0}, s{sB}, 4")
    a(f"s_add_u32 s{sT0}, s{sT0}, 128")
    a(f"v_mov_b32 v{CL+1}, s{sT0}")
    a(f"global_load_dword v{CL}, v{CL+1}, s[{sDBG_}:{sDBG_+1}] sc1")
    a(f"v_and_b32 v{CL+4}, 3, v{vLANE}")
    a(f"v_lshlrev_b32 v{CL+4}, 3, v{CL+4}")
    a(f"s_mul_i32 s{sT1}, s{sB}, 896")
    srd(a, dX, sX_, f"s{sT1}", 896)
    a(f"s_lshl_b32 s{sT0}, s{sJ}, 5")
    a(f"buffer_load_dwordx2 v[{XR}:{XR+1}], v{CL+4}, s[{dX}:{dX+3}], s{sT0} offen")
    a("L_epi1:")
    a(dpp("v_add_f32", vL, vL, vL, "row_ror:8"))
    for k in range(4):
        a(f"v_permlane32_swap_b32 v{vO+k}, v{vO+4+k}")
    a(dpp("v_add_f32", vL, vL, vL, "row_bcast:15", "0xa"))
    for k in range(4):
        a(f"v_add_f32 v{vO+k}, v{vO+k}, v{vO+4+k}")
    a(dpp("v_add_f32", vL, vL, vL, "row_bcast:31", "0xc"))
    a(f"s_mul_i32 s{sT0}, s{sW}, {OPS}")
    a(f"v_add_u32 v{vA0}, s{sT0}, v{vA1}")
    a(f"ds_write_b128 v{vA0}, v[{vO}:{vO+3}] offset:{OP}")
    a(f"s_lshl_b32 s{sT0}, s{sW}, 3")
    a(f"v_mov_b32 v{vA0}, s{sT0}")
    a("s_lshl_b64 exec, 1, 63")
    a(f"ds_write_b64 v{vA0}, v[{vM}:{vL}] offset:{ML}")
    a("s_mov_b64 exec, -1")
    R = 22
    a(f"v_and_b32 v{R}, 7, v{vLANE}")
    a(f"v_lshlrev_b32 v{vA0}, 3, v{R}")
    a(f"v_mul_u32_u24 v{R}, {OPS}, v{R}")
    a(f"v_lshrrev_b32 v{R+1}, 3, v{vLANE}")
    a(f"v_lshl_add_u32 v{R}, v{R+1}, 4, v{R}")
    a(f"s_lshl_b32 s{sT0}, s{sW}, 7")
    a(f"v_add_u32 v{R}, s{sT0}, v{R}")
    a("s_waitcnt lgkmcnt(0)")
    a("s_barrier")
    MX = 24; O4 = 28; MM = 26; Y = 32
    a(f"ds_read_b64 v[{MX}:{MX+1}], v{vA0} offset:{ML}")
    a(f"ds_read_b128 v[{O4}:{O4+3}], v{R} offset:{OP}")
    for k in range(8):
        a(f"v_mov_b32 v{Y+k}, 0")
    a("s_waitcnt lgkmcnt(1)")
    a(dpp("v_max_f32", MM, MX, MX, "quad_perm:[1,0,3,2]"))
    a("s_nop 1")
    a(dpp("v_max_f32", MM, MM, MM, "quad_perm:[2,3,0,1]"))
    a("s_nop 1")
    a(dpp("v_max_f32", MM, MM, MM, "row_half_mirror"))
    a(f"v_sub_f32 v{MX}, v{MX}, v{MM}")
    a(f"v_exp_f32 v{MX}, v{MX}")
    a("s_waitcnt lgkmcnt(0)")
    a(f"v_mul_f32 v{MM+1}, v{MX+1}, v{MX}")
    for k in range(4):
        a(f"v_mul_f32 v{O4+k}, v{O4+k}, v{MX}")
    for ctrl in ("quad_perm:[1,0,3,2]", "quad_perm:[2,3,0,1]", "row_half_mirror"):
        a(dpp("v_add_f32", MM+1, MM+1, MM+1, ctrl))
        for k in range(4):
            a(dpp("v_add_f32", O4+k, O4+k, O4+k, ctrl))
    a(f"v_cvt_pk_bf16_f32 v{O4}, v{O4}, v{O4+1}")
    a(f"v_cvt_pk_bf16_f32 v{O4+1}, v{O4+2}, v{O4+3}")
    a("s_nop 0")
    for dq in range(8):
        a(f"v_readlane_b32 s{sP+2*dq}, v{O4}, {8*dq}")
        a(f"v_readlane_b32 s{sP+2*dq+1}, v{O4+1}, {8*dq}")
    a(f"v_lshlrev_b32 v{vA0}, 5, v{vLANE}")
    a(f"s_lshl_b32 s{sT0}, s{sW}, 11")
    a(f"v_add_u32 v{vA0}, s{sT0}, v{vA0}")
    for k in range(16):
        for e in range(8):
            a(f"v_dot2c_f32_bf16 v{Y+e}, s{sP+k}, v{W+8*k+e}")
    a("s_nop 3")
    a(f"ds_write_b128 v{vA0}, v[{Y}:{Y+3}] offset:{YA}")
    a(f"ds_write_b128 v{vA0}, v[{Y+4}:{Y+7}] offset:{YA+16}")
    a("s_waitcnt lgkmcnt(0)")
    a("s_barrier")
    stamp(a, cfg, 5)
    a(f"s_cmp_eq_u32 s{sW}, {CW}")
    a("s_cbranch_scc1 L_cons")
    a(f"s_cmp_gt_u32 s{sW}, 4")
    a("s_cbranch_scc1 L_fin")
    a(f"s_cmp_eq_u32 s{sW}, 4")
    a("s_cbranch_scc1 L_stml")
    a.c("waves 0,1: YA ; waves 2,3: YG ; n = (w&1)*64 + lane < 112")
    a(f"s_and_b32 s{sT0}, s{sW}, 1")
    a(f"s_lshl_b32 s{sT0}, s{sT0}, 10")
    a(f"v_add_u32 v{vA0}, s{sT0}, v{vL16}")
    a(f"s_lshr_b32 s{sT1}, s{sW}, 1")
    a(f"s_mov_b32 s{sT0}, {YA}")
    a(f"s_cmp_eq_u32 s{sT1}, 0")
    a(f"s_cselect_b32 s{sT0}, s{sT0}, {YG}")
    a(f"v_add_u32 v{R}, s{sT0}, v{vA0}")
    rds = [24, 28, 32, 36, 40, 44, 48, 52]
    for w2 in range(8):
        a(f"ds_read_b128 v[{rds[w2]}:{rds[w2]+3}], v{R} offset:{2048*w2}")
    a(f"s_mul_i32 s{sT1}, s{sT1}, 1792")
    a(f"s_add_u32 s{sT0}, s{sSLOT}, s{sT1}")
    a(f"v_cmp_gt_u32 vcc, 1792, v{vA0}")
    RD = rds[0]
    for w2 in range(1, 8):
        a(f"s_waitcnt lgkmcnt({7-w2})")
        a(f"v_pk_add_f32 v[{RD}:{RD+1}], v[{RD}:{RD+1}], v[{rds[w2]}:{rds[w2]+1}]")
        a(f"v_pk_add_f32 v[{RD+2}:{RD+3}], v[{RD+2}:{RD+3}], v[{rds[w2]+2}:{rds[w2]+3}]")
    a("s_and_saveexec_b64 s[100:101], vcc")
    a(f"buffer_store_dwordx4 v[{RD}:{RD+3}], v{vA0}, s[{dWS}:{dWS+3}], s{sT0} offen sc1")
    a("s_mov_b64 exec, -1")
    a("s_branch L_fin")
    a("L_stml:")
    a(f"v_mov_b32 v{vA0}, 3584")
    a("s_mov_b64 exec, 1")
    a(f"buffer_store_dwordx2 v[{MM}:{MM+1}], v{vA0}, s[{dWS}:{dWS+3}], s{sSLOT} offen sc1")
    a("s_mov_b64 exec, -1")
    a("s_branch L_fin")
    a("L_cons:")
    a(f"s_cmp_ge_u32 s{sJ}, 28")
    a("s_cbranch_scc1 L_fin")
    VO_, VM_ = 22, 23
    a(f"v_lshrrev_b32 v{VM_}, 2, v{vLANE}")
    a(f"v_lshlrev_b32 v{VM_}, 12, v{VM_}")
    a(f"v_and_b32 v{VO_}, 3, v{vLANE}")
    a(f"v_lshl_add_u32 v{VO_}, v{VO_}, 4, v{VM_}")
    a(f"s_lshl_b32 s{sT0}, s{sB}, 17")
    a(f"s_lshl_b32 s{sT1}, s{sJ}, 6")
    a(f"s_add_u32 s{sT1}, s{sT1}, s{sT0}")
    a(f"s_add_u32 s{sT2}, s{sT1}, 0x10000")
    a(f"s_add_u32 s{sT3}, s{sT0}, 0x10000")
    a(f"s_mov_b32 s{sIT}, 0")
    a("s_waitcnt vmcnt(0)")
    a("L_clrchk:")
    a(f"v_cmp_gt_u32 vcc, 32, v{CL}")
    a("s_cbranch_vccz L_poll0")
    a("s_sleep 8")
    a(f"global_load_dword v{CL}, v{CL+1}, s[{sDBG_}:{sDBG_+1}] sc1")
    a(f"s_add_u32 s{sIT}, s{sIT}, 1")
    a(f"s_cmp_lt_u32 s{sIT}, {SPIN}")
    a("s_waitcnt vmcnt(0)")
    a("s_cbranch_scc1 L_clrchk")
    a("L_poll0:")
    A0, A1, G0, G1, M0, M1 = 24, 28, 32, 36, 40, 42
    loads = [
        (A0, 4, VO_, sT1, 0), (A1, 4, VO_, sT2, 0), (G0, 4, VO_, sT1, 1792), (G1, 4, VO_, sT2, 1792),
        (M0, 2, VM_, sT0, 3584), (M1, 2, VM_, sT3, 3584)]
    masks = [sP + 2*i for i in range(6)]
    for m in masks:
        a(f"s_mov_b64 s[{m}:{m+1}], -1")
    a(f"s_mov_b32 s{sIT}, 0")
    a("L_poll:")
    for n2, ((r, cnt, vo, so, off), m) in enumerate(zip(loads, masks)):
        a(f"s_mov_b64 exec, s[{m}:{m+1}]")
        a(f"s_cbranch_execz L_skip{n2}")
        a(f"buffer_load_dwordx{cnt} v[{r}:{r+cnt-1}], v{vo}, s[{dWS}:{dWS+3}], s{so} offen offset:{off} sc1")
        a(f"L_skip{n2}:")
    a("s_mov_b64 exec, -1")
    a("s_waitcnt vmcnt(0)")
    TM = 44
    for (r, cnt, vo, so, off), m in zip(loads, masks):
        if cnt == 4:
            a(f"v_max3_u32 v{TM}, v{r}, v{r+1}, v{r+2}")
            a(f"v_max_u32 v{TM}, v{TM}, v{r+3}")
        else:
            a(f"v_max_u32 v{TM}, v{r}, v{r+1}")
        a(f"v_cmp_eq_u32 s[{m}:{m+1}], -1, v{TM}")
    a("s_nop 1")
    a(f"s_or_b64 s[100:101], s[{masks[0]}:{masks[0]+1}], s[{masks[1]}:{masks[1]+1}]")
    for m in masks[2:]:
        a(f"s_or_b64 s[100:101], s[100:101], s[{m}:{m+1}]")
    a("s_cbranch_scc0 L_ready")
    a(f"s_add_u32 s{sIT}, s{sIT}, 1")
    a(f"s_cmp_lt_u32 s{sIT}, {SPIN}")
    if SLEEP:
        a(f"s_sleep {SLEEP}")
    a("s_cbranch_scc1 L_poll")
    a("L_ready:")
    stamp(a, cfg, 6)
    for M in (M0, M1):
        a(dpp("v_max_f32", TM + (M == M1), M, M, "row_half_mirror"))
    for M in (M0, M1):
        a(f"v_sub_f32 v{M}, v{M}, v{TM + (M == M1)}")
    for M in (M0, M1):
        a(f"v_exp_f32 v{M}, v{M}")
    a("s_nop 0")
    for M in (M0, M1):
        a(f"v_mul_f32 v{M+1}, v{M+1}, v{M}")
    a("s_nop 0")
    for M in (M0, M1):
        a(dpp("v_add_f32", M+1, M+1, M+1, "row_half_mirror"))
    for M in (M0, M1):
        a(f"v_rcp_f32 v{M+1}, v{M+1}")
    a(f"v_pk_add_f32 v[{G0}:{G0+1}], v[{G0}:{G0+1}], v[{G1}:{G1+1}]")
    a(f"v_pk_add_f32 v[{G0+2}:{G0+3}], v[{G0+2}:{G0+3}], v[{G1+2}:{G1+3}]")
    for M in (M0, M1):
        a(f"v_mul_f32 v{M}, v{M}, v{M+1}")
    a(f"v_pk_mul_f32 v[{A0}:{A0+1}], v[{A0}:{A0+1}], v[{M0}:{M0+1}] op_sel_hi:[1,0]")
    a(f"v_pk_mul_f32 v[{A0+2}:{A0+3}], v[{A0+2}:{A0+3}], v[{M0}:{M0+1}] op_sel_hi:[1,0]")
    a(pkfma_bcast(A0, A1, M1))
    a(pkfma_bcast(A0+2, A1+2, M1))
    regs8 = [G0, G0+1, G0+2, G0+3, A0, A0+1, A0+2, A0+3]
    for ctrl in ("row_ror:4", "row_ror:8"):
        for r in regs8:
            a(dpp("v_add_f32", r, r, r, ctrl))
    a("s_nop 0")
    for k in range(4):
        a(f"v_permlane32_swap_b32 v{A0+k}, v{G0+k}")
    a("s_nop 0")
    for k in range(4):
        a(f"v_add_f32 v{A0+k}, v{A0+k}, v{G0+k}")
    for k in range(4):
        a(f"v_mov_b32 v{G0+k}, v{A0+k}")
    a("s_nop 0")
    for k in range(4):
        a(f"v_permlane16_swap_b32 v{A0+k}, v{G0+k}")
    a("s_nop 0")
    for k in range(4):
        a(f"v_add_f32 v{A0+k}, v{A0+k}, v{G0+k}")
    for k in range(4):
        bf16_round(a, A0+k)
    for k in range(4):
        a(f"v_mov_b32 v{G0+k}, v{A0+k}")
    a(f"v_lshlrev_b32 v{A1}, 16, v{XR}")
    a(f"v_and_b32 v{A1+1}, s{sMASK}, v{XR}")
    for k in range(4):
        a(f"v_permlane32_swap_b32 v{A0+k}, v{G0+k}")
    a(f"v_lshlrev_b32 v{A1+2}, 16, v{XR+1}")
    a(f"v_and_b32 v{A1+3}, s{sMASK}, v{XR+1}")
    for k in range(4):
        a(f"v_add_f32 v{A0+k}, v{A0+k}, v{A1+k}")
    for k in range(4):
        bf16_round(a, A0+k)
    for k in range(4):
        a(f"v_add_f32 v{A0+k}, v{A0+k}, v{G0+k}")
    a(f"v_cvt_pk_bf16_f32 v{A0}, v{A0}, v{A0+1}")
    a(f"v_cvt_pk_bf16_f32 v{A0+1}, v{A0+2}, v{A0+3}")
    a(f"s_mul_i32 s{sT1}, s{sB}, 896")
    srd(a, dGU, sOUT_, f"s{sT1}", 896)
    a(f"s_lshl_b32 s{sT0}, s{sJ}, 5")
    a("s_mov_b64 exec, 15")
    a(f"buffer_store_dwordx2 v[{A0}:{A0+1}], v{CL+4}, s[{dGU}:{dGU+3}], s{sT0} offen")
    a("s_mov_b64 exec, -1")
    a("L_fin:")
    if cfg.get("stamps"):
        a("s_waitcnt vmcnt(0)")
        stamp(a, cfg, 7)
        a("v_writelane_b32 v7, s98, 0")
        a("s_getreg_b32 s96, hwreg(HW_REG_XCC_ID)")
        a("v_writelane_b32 v7, s96, 8")
        a(f"s_lshl_b32 s{sT0}, s2, 3")
        a(f"s_add_u32 s{sT0}, s{sT0}, s{sW}")
        a(f"s_lshl_b32 s{sT0}, s{sT0}, 6")
        a(f"s_add_u32 s{sT0}, s{sT0}, 0x200000")
        a(f"v_lshlrev_b32 v{vA0}, 2, v{vLANE}")
        a("s_mov_b64 exec, 0xffff")
        a(f"buffer_store_dword v7, v{vA0}, s[{dWS}:{dWS+3}], s{sT0} offen")
    a("L_end:")
    a("s_endpgm")
    hdr = open(REF).read().split("; Override launch")[0] if os.path.exists(REF) else ""
    return hdr + f"""; @launch grid=(256,1,1) block=(512,1,1) lds={LDS_BYTES}
.amdgcn_target "amdgcn-amd-amdhsa--gfx950"
.text
.globl {KN}
.p2align 8
.type {KN},@function
{KN}:
""" + a.text() + f""".section .rodata,"a"
.p2align 6
.amdhsa_kernel {KN}
  .amdhsa_next_free_vgpr 256
  .amdhsa_next_free_sgpr 102
  .amdhsa_accum_offset 256
  .amdhsa_group_segment_fixed_size 0
  .amdhsa_kernarg_size 96
  .amdhsa_user_sgpr_count 2
  .amdhsa_user_sgpr_kernarg_segment_ptr 1
  .amdhsa_system_sgpr_workgroup_id_x 1
.end_amdhsa_kernel
"""

if __name__ == "__main__":
    name = sys.argv[1]
    cfg = json.loads(sys.argv[2]) if len(sys.argv) > 2 else {}
    open(name, "w").write(gen(cfg))
```

```python
import struct, sys, os, json

KN = "parallel_sum__mha_block_cached__glu_gated_glu__decode_kernel"
REF = "parallel_sum__mha_block_cached__glu_gated_glu__decode.s.ref"
LOG2E = 1.4426950408889634

def f32(x):
    return "0x%08x" % struct.unpack("<I", struct.pack("<f", x))[0]

class Asm:
    def __init__(self):
        self.lines = []
        self.vm = []
    def __call__(self, s):
        for l in s.strip("\n").split("\n"):
            self.lines.append("  " + l.strip() if not l.strip().endswith(":") else l.strip())
    def c(self, s):
        self.lines.append("  ; " + s)
    def vmem(self, s, tag):
        self(s); self.vm.append(tag)
    def wait_tag(self, tag):
        idx = max(i for i, t in enumerate(self.vm) if t == tag)
        n = len(self.vm) - 1 - idx
        self(f"s_waitcnt vmcnt({n})")
        self.vm = self.vm[idx+1:]
    def text(self):
        return "\n".join(self.lines) + "\n"

XT   = 0
QP   = 16384
GP   = QP + 4096
YG   = GP + 2048
OP   = YG + 16384
OPS  = 1040
ML   = OP + 8*OPS
CNT  = ML + 64
QFL  = CNT + 4
QL   = CNT + 64
YA   = QL + 512
LDS_BYTES = YA + 16384
SLOT = 4096
WS_CLM = 0x180000
WS_Q   = 0x1A0000

sBH = 3
sX_, sK_, sV_, sWQ_, sWO_, sBX_, sWG_, sWU_ = 4, 6, 8, 10, 12, 14, 16, 18
sWD_, sOUT_, sDBG_, sWS_ = 20, 22, 24, 26
dK, dV, dWQ, dGU, dX, dWO, dWD, dWS = 28, 32, 36, 40, 44, 48, 52, 56
sW, sB, sH, sS, sJ, sIT, sOFF, sT0, sT1, sMASK, sT2, sT3 = 60, 61, 62, 63, 64, 65, 66, 67, 68, 69, 70, 71
sP = 72
sO1, sO2, sO3 = 88, 89, 90
sOB, sVALID, sCNT = 88, 89, 90
sJO, sIDX, sPL, sPH, sSLOT = 91, 92, 93, 94, 95
sST = 92
sPR = 74
sO4, sO5 = 75, 76
KE, VE, KF, VF = 192, 208, 224, 240
sGO = 87
sNL, sNH = 72, 73
vLANE, vL16, vWQO, vGUO, vA0, vA1 = 1, 2, 3, 4, 5, 6
vCLM, vCHK = 3, 46
vQ = 8
vO = 12
vM, vL = 20, 21
STG = 48
KA, VA, KB, VB = 64, 80, 96, 112
W = 128
KC, VC, KD, VD = 128, 144, 160, 176
GUR = 192

def srd(a, d, base, off_s, nrec):
    if off_s is None:
        a(f"s_mov_b32 s{d}, s{base}")
        a(f"s_mov_b32 s{d+1}, s{base+1}")
    else:
        a(f"s_add_u32 s{d}, s{base}, {off_s}")
        a(f"s_addc_u32 s{d+1}, s{base+1}, 0")
    a(f"s_mov_b32 s{d+2}, {nrec}")
    a(f"s_mov_b32 s{d+3}, 0x00020000")

def dpp(op, d, s0, s1, ctrl, rm="0xf", bm="0xf"):
    return f"{op}_dpp v{d}, v{s0}, v{s1} {ctrl} row_mask:{rm} bank_mask:{bm}"

def reduce64(a, op, v, sdst):
    for ctrl, rm in (("quad_perm:[1,0,3,2]", "0xf"), ("quad_perm:[2,3,0,1]", "0xf"), ("row_half_mirror", "0xf"),
                     ("row_mirror", "0xf"), ("row_bcast:15", "0xa"), ("row_bcast:31", "0xc")):
        a("s_nop 1")
        a(dpp(op, v, v, v, ctrl, rm))
    a("s_nop 0")
    a(f"v_readlane_b32 s{sdst}, v{v}, 63")

def bsel(m):
    return "op_sel:[0,1,0] op_sel_hi:[1,1,1]" if m & 1 else "op_sel_hi:[1,0,1]"

def pkfma_bcast(acc, u, m, sgpr=False):
    r = "s" if sgpr else "v"
    base = m & ~1
    return f"v_pk_fma_f32 v[{acc}:{acc+1}], v[{u}:{u+1}], {r}[{base}:{base+1}], v[{acc}:{acc+1}] {bsel(m)}"

def unpack(a, data, tmp):
    for k in range(4):
        a(f"v_lshlrev_b32 v{tmp+2*k}, 16, v{data+k}")
        a(f"v_and_b32 v{tmp+2*k+1}, s{sMASK}, v{data+k}")

def axpy_row(a, acc, data, m, tmp, sgpr=False):
    unpack(a, data, tmp)
    for k in range(4):
        a(pkfma_bcast(acc+2*k, tmp+2*k, m, sgpr))

def bf16_round(a, v):
    a(f"v_cvt_pk_bf16_f32 v{v}, v{v}, v{v}")
    a(f"v_and_b32 v{v}, s{sMASK}, v{v}")

def stamp(a, cfg, idx):
    if cfg.get("stamps"):
        a("s_memrealtime s[96:97]")
        a("s_waitcnt lgkmcnt(0)")
        a(f"v_writelane_b32 v7, s96, {idx}")

def gen(cfg):
    KVF = cfg.get("kvflags", "nt")
    WF = cfg.get("wflags", "")
    WQF = cfg.get("wqf", WF); WOF = cfg.get("wof", WF); GUF = cfg.get("guf", WF); WDF = cfg.get("wdf", WF)
    SLEEP = cfg.get("sleep", 4)
    VW = cfg.get("vw", 12)
    PACE = cfg.get("pace", 3)
    SI = cfg.get("si", 11)
    NPRE = cfg.get("npre", 4)
    NST = NPRE + 2*SI
    NDYN = (512 - 16*NST)//2
    SPIN = 0x200000
    a = Asm()
    a("s_cmp_ge_u32 s2, 256")
    a("s_cbranch_scc1 L_end")
    a("s_load_dwordx16 s[4:19], s[0:1], 0")
    a("s_load_dwordx8 s[20:27], s[0:1], 64")
    if cfg.get("stamps"):
        a("v_mov_b32 v7, 0")
        a("s_memrealtime s[98:99]")
    if cfg.get("prog"):
        a("s_memrealtime s[98:99]")
        a("s_waitcnt lgkmcnt(0)")
        a("s_mov_b32 s99, s98")
    a(f"v_and_b32 v{vLANE}, 63, v0")
    a(f"v_lshrrev_b32 v{vA0}, 6, v0")
    a(f"v_lshlrev_b32 v{vL16}, 4, v{vLANE}")
    a(f"v_readfirstlane_b32 s{sW}, v{vA0}")
    a.c("decode workgroup id: xcd=g&7, e=(g>>3)&1, s=(g>>4)&1, b=g>>5; the two key halves of a head sit on xcd i and i+1+2e")
    a(f"s_and_b32 s{sT0}, s2, 7")
    a(f"s_bfe_u32 s{sT1}, s2, 0x10003")
    a(f"s_bfe_u32 s{sS}, s2, 0x10004")
    a(f"s_lshr_b32 s{sB}, s2, 5")
    if cfg.get("pair", "xor") == "k44":
        a(f"s_lshl_b32 s{sT2}, s{sT1}, 1")
        a(f"s_add_u32 s{sT2}, s{sT2}, 1")
        a(f"s_mul_i32 s{sT2}, s{sT2}, s{sS}")
        a(f"s_sub_u32 s{sT0}, s{sT0}, s{sT2}")
        a(f"s_and_b32 s{sT0}, s{sT0}, 7")
    elif cfg.get("pair", "xor") == "xor":
        a(f"s_lshl_b32 s{sT2}, s{sT1}, 1")
        a(f"s_add_u32 s{sT2}, s{sT2}, 3")
        a(f"s_mul_i32 s{sT2}, s{sT2}, s{sS}")
        a(f"s_xor_b32 s{sT0}, s{sT0}, s{sT2}")
    a(f"s_lshl_b32 s{sH}, s{sT0}, 1")
    a(f"s_add_u32 s{sH}, s{sH}, s{sT1}")
    a(f"s_lshl_b32 s{sJ}, s{sH}, 1")
    a(f"s_add_u32 s{sJ}, s{sJ}, s{sS}")
    a(f"s_mov_b32 s{sMASK}, 0xffff0000")
    a.c("wq slice voffset = (lane>>1)*8192 + (lane&1)*16")
    a(f"v_lshrrev_b32 v{vA0}, 1, v{vLANE}")
    a(f"v_and_b32 v{vA1}, 1, v{vLANE}")
    a(f"v_lshlrev_b32 v{vWQO}, 13, v{vA0}")
    a(f"v_lshl_add_u32 v{vWQO}, v{vA1}, 4, v{vWQO}")
    a(f"s_lshl_b32 s{sBH}, s{sB}, 4")
    a(f"s_add_u32 s{sBH}, s{sBH}, s{sH}")
    a(f"s_lshl_b32 s{sT0}, s{sBH}, 21")
    a(f"s_mul_i32 s{sT1}, s{sW}, 896")
    a.c("p = s*8 + b ; flag byte index = h*16 + p ; wq column byte offset = h*512 + p*32")
    a(f"s_lshl_b32 s{sPL}, s{sS}, 3")
    a(f"s_add_u32 s{sPL}, s{sPL}, s{sB}")
    a(f"s_lshl_b32 s{sPH}, s{sH}, 4")
    a(f"s_add_u32 s{sPH}, s{sPH}, s{sPL}")
    a(f"s_lshl_b32 s{sT2}, s{sPH}, 5")
    a(f"s_sub_u32 s{sT3}, {448*8192}, s{sT2}")
    a(f"s_lshl_b32 s{sOFF}, s{sW}, 12")
    a(f"s_mul_i32 s{sO1}, s{sS}, {NST*8*4096}")
    a(f"s_add_u32 s{sOFF}, s{sOFF}, s{sO1}")
    a(f"s_sub_u32 s{sPR}, 7, s{sW}")
    a(f"s_lshl_b32 s{sIT}, s{sPR}, 19")
    a(f"s_add_u32 s{sJO}, s{sIT}, 0x40000")
    a(f"s_add_u32 s{sO1}, s{sOFF}, 0x8000")
    a(f"s_add_u32 s{sO2}, s{sOFF}, 0x10000")
    a(f"s_add_u32 s{sO3}, s{sOFF}, 0x18000")
    a(f"s_add_u32 s{sO4}, s{sOFF}, 0x20000")
    a(f"s_add_u32 s{sO5}, s{sOFF}, 0x28000")
    a("s_waitcnt lgkmcnt(0)")
    X4 = 24; WQ0 = 56; WQ1 = 60
    srd(a, dX, sX_, f"s{sT1}", 896)
    a.vmem(f"buffer_load_dwordx4 v[{X4}:{X4+3}], v{vL16}, s[{dX}:{dX+3}], 0 offen", "x")
    srd(a, dWQ, sWQ_, f"s{sT2}", f"s{sT3}")
    a.vmem(f"buffer_load_dwordx4 v[{WQ0}:{WQ0+3}], v{vWQO}, s[{dWQ}:{dWQ+3}], s{sIT} offen {WQF}", "wq0")
    a.vmem(f"buffer_load_dwordx4 v[{WQ1}:{WQ1+3}], v{vWQO}, s[{dWQ}:{dWQ+3}], s{sJO} offen {WQF}", "wq1")
    a.c("launch nonce of this head: first arriver's clock value, agreed through a compare-swap on zeroed d_debug")
    NON = 20
    a(f"s_cmp_lg_u32 s{sW}, 0")
    a("s_cbranch_scc1 L_nonon")
    a("s_memrealtime s[100:101]")
    a(f"s_lshl_b32 s{sT1}, s{sH}, 3")
    a(f"v_mov_b32 v{vA0}, s{sT1}")
    a(f"v_mov_b32 v{NON+1}, 0")
    a("s_waitcnt lgkmcnt(0)")
    a("s_or_b32 s100, s100, 1")
    a(f"v_mov_b32 v{NON}, s100")
    a("s_mov_b64 exec, 1")
    a(f"global_atomic_cmpswap v{NON}, v{vA0}, v[{NON}:{NON+1}], s[{sDBG_}:{sDBG_+1}] sc0 sc1")
    a("s_mov_b64 exec, -1")
    a("L_nonon:")
    srd(a, dK, sK_, f"s{sT0}", 0x200000)
    srd(a, dV, sV_, f"s{sT0}", 0x200000)
    a("s_barrier")
    kv = []
    for (K, V, so) in ((KA, VA, sOFF), (KB, VB, sO1), (KC, VC, sO2), (KD, VD, sO3), (KE, VE, sO4), (KF, VF, sO5))[:NPRE]:
        kv += [(K, dK, so, i) for i in range(4)] + [(V, dV, so, i) for i in range(4)]
    def kvone():
        base, d, so, i = kv.pop(0)
        a.vmem(f"buffer_load_dwordx4 v[{base+4*i}:{base+4*i+3}], v{vL16}, s[{d}:{d+3}], s{so} offen offset:{i*1024} {KVF}", "kv")
    def sprinkle(start, every, count):
        body = a.lines[start:]
        del a.lines[start:]
        k = 0
        for n_, l in enumerate(body):
            a.lines.append(l)
            if k < count and n_ % every == every-1 and not l.strip().startswith(("s_waitcnt vmcnt", ";")):
                kvone(); k += 1
        while k < count:
            kvone(); k += 1
    def kvgroup(paced):
        for _ in range(4):
            base, d, so, i = kv.pop(0)
            a.vmem(f"buffer_load_dwordx4 v[{base+4*i}:{base+4*i+3}], v{vL16}, s[{d}:{d+3}], s{so} offen offset:{i*1024} {KVF}", "kv")
            if paced:
                a(f"s_waitcnt vmcnt({PACE})")
    for _ in range(cfg.get("n0", 4)):
        kvone()
    stamp(a, cfg, 1)
    srd(a, dWS, sWS_, None, 0x400000)
    a(f"s_lshl_b32 s{sSLOT}, s{sB}, 5")
    a(f"s_add_u32 s{sSLOT}, s{sSLOT}, s{sJ}")
    a(f"s_lshl_b32 s{sSLOT}, s{sSLOT}, 12")
    for k in range(8):
        a(f"v_mov_b32 v{vO+k}, 0")
    a(f"s_cmp_lt_u32 s{sW}, 4")
    a(f"s_cselect_b32 s{dGU}, s{sWG_}, s{sWU_}")
    a(f"s_cselect_b32 s{dGU+1}, s{sWG_+1}, s{sWU_+1}")
    a(f"s_mov_b32 s{dGU+2}, {448*3584}")
    a(f"s_mov_b32 s{dGU+3}, 0x00020000")
    srd(a, dWO, sWO_, None, 4096*896)
    srd(a, dWD, sWD_, None, 1792*896)
    a(f"v_cmp_gt_u32 vcc, 56, v{vLANE}")
    a(f"v_mov_b32 v{vA0}, {CNT}")
    a(f"ds_write_b64 v{vA0}, v[{vO}:{vO+1}]")
    a.c("LayerNorm: wave w normalises x[w]")
    E = 28; S0 = 36
    a.wait_tag("x")
    ln0 = len(a.lines)
    unpack(a, X4, E)
    a(f"v_add_f32 v{S0}, v{E}, v{E+1}")
    a(f"v_add_f32 v{S0+1}, v{E+2}, v{E+3}")
    a(f"v_add_f32 v{S0+2}, v{E+4}, v{E+5}")
    a(f"v_add_f32 v{S0+3}, v{E+6}, v{E+7}")
    a(f"v_add_f32 v{S0}, v{S0}, v{S0+1}")
    a(f"v_add_f32 v{S0+2}, v{S0+2}, v{S0+3}")
    a(f"v_add_f32 v{S0}, v{S0}, v{S0+2}")
    reduce64(a, "v_add_f32", S0, sT0)
    MEAN = S0+1; ACC = S0+2; D = S0+4
    a("s_nop 1")
    a(f"v_mov_b32 v{MEAN}, s{sT0}")
    a(f"v_mul_f32 v{MEAN}, {f32(1.0/448)}, v{MEAN}")
    for k in range(8):
        a(f"v_sub_f32 v{D+k}, v{E+k}, v{MEAN}")
    a(f"v_mul_f32 v{ACC}, v{D}, v{D}")
    for k in range(1, 8):
        a(f"v_fmac_f32 v{ACC}, v{D+k}, v{D+k}")
    a(f"v_cndmask_b32 v{ACC}, 0, v{ACC}, vcc")
    reduce64(a, "v_add_f32", ACC, sT0)
    bf16_round(a, MEAN)
    a(f"v_mov_b32 v{ACC}, s{sT0}")
    a(f"v_mul_f32 v{ACC}, {f32(1.0/448)}, v{ACC}")
    bf16_round(a, ACC)
    a(f"v_add_f32 v{ACC}, {f32(1e-5)}, v{ACC}")
    bf16_round(a, ACC)
    a(f"v_sqrt_f32 v{ACC}, v{ACC}")
    for k in range(8):
        a(f"v_sub_f32 v{D+k}, v{E+k}, v{MEAN}")
    bf16_round(a, ACC)
    a(f"v_rcp_f32 v{ACC}, v{ACC}")
    for k in range(4):
        a(f"v_cvt_pk_bf16_f32 v{X4+k}, v{D+2*k}, v{D+2*k+1}")
    unpack(a, X4, D)
    for k in range(8):
        a(f"v_mul_f32 v{D+k}, v{D+k}, v{ACC}")
    for k in range(4):
        a(f"v_cvt_pk_bf16_f32 v{X4+k}, v{D+2*k}, v{D+2*k+1}")
    unpack(a, X4, E)
    a(f"v_lshlrev_b32 v{vA0}, 5, v{vLANE}")
    a(f"s_lshl_b32 s{sT0}, s{sW}, 11")
    a(f"v_add_u32 v{vA0}, s{sT0}, v{vA0}")
    a(f"ds_write_b128 v{vA0}, v[{E}:{E+3}] offset:{XT}")
    a(f"ds_write_b128 v{vA0}, v[{E+4}:{E+7}] offset:{XT+16}")
    a.c("multiplier addresses: row (64w + 32i + lane>>1) * 4")
    a(f"v_lshrrev_b32 v{vA0}, 1, v{vLANE}")
    a(f"v_lshlrev_b32 v{vA0}, 2, v{vA0}")
    a(f"s_lshl_b32 s{sT0}, s{sPR}, 8")
    a(f"v_add_u32 v{vA0}, s{sT0}, v{vA0}")
    a(f"v_add_u32 v{vA1}, 128, v{vA0}")
    sprinkle(ln0, cfg.get("spr1", 30), cfg.get("n1", 4))
    a("s_waitcnt lgkmcnt(0)")
    a("s_barrier")
    stamp(a, cfg, 2)
    XM = 24
    for k in range(4):
        a(f"ds_read2st64_b32 v[{XM+2*k}:{XM+2*k+1}], v{vA0} offset0:{XT//256+16*k} offset1:{XT//256+16*k+8}")
    for k in range(4):
        a(f"ds_read2st64_b32 v[{XM+8+2*k}:{XM+8+2*k+1}], v{vA1} offset0:{XT//256+16*k} offset1:{XT//256+16*k+8}")
    U0 = 40; U1 = 48
    a.wait_tag("wq1")
    fm0 = len(a.lines)
    unpack(a, WQ0, U0)
    unpack(a, WQ1, U1)
    QA = GUR
    a("s_waitcnt lgkmcnt(4)")
    for b in range(8):
        for k in range(4):
            m = XM + b
            sel = "op_sel:[0,1] op_sel_hi:[1,1]" if m & 1 else "op_sel_hi:[1,0]"
            a(f"v_pk_mul_f32 v[{QA+8*b+2*k}:{QA+8*b+2*k+1}], v[{U0+2*k}:{U0+2*k+1}], v[{m&~1}:{(m&~1)+1}] {sel}")
    a("s_waitcnt lgkmcnt(0)")
    for b in range(8):
        for k in range(4):
            a(pkfma_bcast(QA+8*b+2*k, U1+2*k, XM+8+b))
    a.c("transposing reduction over lane bits 5,4,3,2 then all-reduce over bit 1")
    for r in range(32):
        a(f"v_permlane32_swap_b32 v{QA+r}, v{QA+32+r}")
    for r in range(0, 32, 2):
        a(f"v_pk_add_f32 v[{QA+r}:{QA+r+1}], v[{QA+r}:{QA+r+1}], v[{QA+32+r}:{QA+32+r+1}]")
    for r in range(16):
        a(f"v_permlane16_swap_b32 v{QA+r}, v{QA+16+r}")
    for r in range(0, 16, 2):
        a(f"v_pk_add_f32 v[{QA+r}:{QA+r+1}], v[{QA+r}:{QA+r+1}], v[{QA+16+r}:{QA+16+r+1}]")
    R3 = QA + 32
    for r in range(8):
        a(dpp("v_add_f32", R3+r, QA+r, QA+r, "row_ror:8", bm="0x3"))
    for r in range(8):
        a(dpp("v_add_f32", R3+r, QA+8+r, QA+8+r, "row_ror:8", bm="0xc"))
    R4 = QA + 48
    for r in range(4):
        a(dpp("v_add_f32", R4+r, R3+r, R3+r, "row_shl:4", bm="0x5"))
    for r in range(4):
        a(dpp("v_add_f32", R4+r, R3+4+r, R3+4+r, "row_shr:4", bm="0xa"))
    a.c("LDS addr = QP + w*512 + (lane>>3)*64 + (lane&1)*32 + ((lane>>2)&1)*16")
    a(f"v_lshrrev_b32 v{vA0}, 3, v{vLANE}")
    a(f"v_lshlrev_b32 v{vA0}, 6, v{vA0}")
    a(f"v_and_b32 v{vA1}, 1, v{vLANE}")
    a(f"v_lshl_add_u32 v{vA0}, v{vA1}, 5, v{vA0}")
    a(f"v_and_b32 v{vA1}, 4, v{vLANE}")
    a(f"v_lshl_add_u32 v{vA0}, v{vA1}, 2, v{vA0}")
    for r in range(4):
        a(dpp("v_add_f32", R4+r, R4+r, R4+r, "quad_perm:[2,3,0,1]"))
    a(f"s_lshl_b32 s{sT0}, s{sPR}, 9")
    a(f"v_add_u32 v{vA0}, s{sT0}, v{vA0}")
    a(f"ds_write_b128 v{vA0}, v[{R4}:{R4+3}] offset:{QP}")
    sprinkle(fm0, cfg.get("spr2", 40), cfg.get("n2", 4))
    QD = 40
    VQA = 39
    a(f"v_and_b32 v{VQA}, 31, v{vLANE}")
    a(f"v_lshlrev_b32 v{VQA}, 5, v{VQA}")
    a(f"s_lshl_b32 s{sT3}, s{sBH}, 10")
    a(f"s_add_u32 s{sT3}, s{sT3}, {WS_Q}")
    a("s_waitcnt lgkmcnt(0)")
    a("s_barrier")
    a(f"s_cmp_lg_u32 s{sW}, 0")
    a("s_cbranch_scc1 L_nopub")
    a.c("wave 0: lanes 0..15 = (b, half): sum 7 partials, publish 8 tagged columns each, then poll for this WG's q")
    a(f"v_lshlrev_b32 v{vA0}, 5, v{vLANE}")
    a("s_mov_b64 exec, 0xffff")
    PR = GUR
    for w2 in range(7):
        a(f"ds_read_b128 v[{PR+8*w2}:{PR+8*w2+3}], v{vA0} offset:{QP+512*w2}")
        a(f"ds_read_b128 v[{PR+8*w2+4}:{PR+8*w2+7}], v{vA0} offset:{QP+512*w2+16}")
    a(f"v_lshrrev_b32 v{vA1}, 1, v{vLANE}")
    a(f"v_lshlrev_b32 v{vA1}, 14, v{vA1}")
    a(f"v_and_b32 v{vA0}, 1, v{vLANE}")
    a(f"v_lshl_add_u32 v{vA1}, v{vA0}, 5, v{vA1}")
    a(f"s_lshl_b32 s{sT0}, s{sPH}, 6")
    a(f"s_add_u32 s{sT0}, s{sT0}, {WS_Q}")
    a.c("nonce = returned old value, or our own proposal if the word was still zero")
    a(f"v_readfirstlane_b32 s{sT1}, v{NON}")
    a(f"s_cmp_eq_u32 s{sT1}, 0")
    a(f"s_cselect_b32 s{sT1}, s100, s{sT1}")
    a(f"s_and_b32 s{sNL}, s{sT1}, 0xffff")
    a(f"s_lshr_b32 s{sNH}, s{sT1}, 16")
    a(f"v_mov_b32 v{QD}, s{sNL}")
    a(f"v_mov_b32 v{QD+1}, s{sNH}")
    for w2 in range(1, 7):
        a(f"s_waitcnt lgkmcnt({12-2*w2})")
        for k in range(4):
            a(f"v_pk_add_f32 v[{PR+2*k}:{PR+2*k+1}], v[{PR+2*k}:{PR+2*k+1}], v[{PR+8*w2+2*k}:{PR+8*w2+2*k+1}]")
    for k in range(8):
        a(f"v_cvt_pk_bf16_f32 v{PR+k}, v{PR+k}, v{PR+k}")
    for k in range(8):
        a(f"v_and_or_b32 v{PR+56+k}, v{PR+k}, s{sMASK}, v{QD+(k&1)}")
    a(f"buffer_store_dwordx4 v[{PR+56}:{PR+59}], v{vA1}, s[{dWS}:{dWS+3}], s{sT0} offen sc1")
    a(f"buffer_store_dwordx4 v[{PR+60}:{PR+63}], v{vA1}, s[{dWS}:{dWS+3}], s{sT0} offen offset:16 sc1")
    a("s_mov_b64 exec, -1")
    stamp(a, cfg, 13)
    a(f"s_mov_b32 s{sIT}, 0")
    TX = 24
    a("L_qpoll:")
    a(f"buffer_load_dwordx4 v[{QD}:{QD+3}], v{VQA}, s[{dWS}:{dWS+3}], s{sT3} offen sc1")
    a(f"buffer_load_dwordx4 v[{QD+4}:{QD+7}], v{VQA}, s[{dWS}:{dWS+3}], s{sT3} offen offset:16 sc1")
    a(f"s_add_u32 s{sIT}, s{sIT}, 1")
    a("s_waitcnt vmcnt(0)")
    for k in range(8):
        a(f"v_xor_b32 v{TX+k}, s{sNH if k & 1 else sNL}, v{QD+k}")
    a(f"v_or3_b32 v{TX}, v{TX}, v{TX+1}, v{TX+2}")
    a(f"v_or3_b32 v{TX+3}, v{TX+3}, v{TX+4}, v{TX+5}")
    a(f"v_or3_b32 v{TX}, v{TX}, v{TX+6}, v{TX+7}")
    a(f"v_or_b32 v{TX}, v{TX}, v{TX+3}")
    a(f"v_and_b32 v{TX}, 0xffff, v{TX}")
    a(f"v_cmp_ne_u32 vcc, 0, v{TX}")
    a("s_cbranch_vccz L_qgot")
    a(f"s_cmp_lt_u32 s{sIT}, {SPIN}")
    a("s_cbranch_scc1 L_qpoll")
    a("L_qgot:")
    a(f"s_mov_b32 s{sT0}, 0x07060302")
    for k in range(4):
        a(f"v_perm_b32 v{TX+k}, v{QD+2*k+1}, v{QD+2*k}, s{sT0}")
    a(f"v_lshrrev_b32 v{TX+4}, 1, v{VQA}")
    a(f"ds_write_b128 v{TX+4}, v[{TX}:{TX+3}] offset:{QL}")
    a(f"v_mov_b32 v{TX+5}, {QFL}")
    a(f"v_mov_b32 v{TX+6}, 1")
    a("s_waitcnt lgkmcnt(0)")
    a(f"ds_write_b32 v{TX+5}, v{TX+6}")
    stamp(a, cfg, 14)
    if cfg.get("stamps"):
        a(f"v_writelane_b32 v7, s{sIT}, 15")
    a("L_nopub:")
    a.c("wave 5 clears this workgroup's slot with the sentinel; in half 0 it also zeroes the pair's claim counter")
    a(f"s_cmp_lg_u32 s{sW}, 5")
    a("s_cbranch_scc1 L_noclr")
    for k in range(4):
        a(f"v_mov_b32 v{STG+k}, -1")
    for k in range(4):
        a(f"buffer_store_dwordx4 v[{STG}:{STG+3}], v{vL16}, s[{dWS}:{dWS+3}], s{sSLOT} offen offset:{1024*k} sc1")
    a(f"s_cmp_lg_u32 s{sS}, 0")
    a("s_cbranch_scc1 L_noclr")
    a(f"s_lshl_b32 s{sT0}, s{sBH}, 8")
    a(f"s_add_u32 s{sT0}, s{sT0}, {WS_CLM}")
    a("s_mov_b64 exec, 1")
    a(f"buffer_store_dword v{vO}, v{vO}, s[{dWS}:{dWS+3}], s{sT0} offen sc1")
    a("s_mov_b64 exec, -1")
    a("L_noclr:")
    while kv:
        if PACE < 60:
            a(f"s_waitcnt vmcnt({PACE})")
        kvone()
    a.c("GLU slice j < 28: 64 columns. gu voffset = (lane>>3)*3584 + (lane&7)*16 ; soffset = 112*(w&3)*3584 + j*128")
    a(f"v_lshrrev_b32 v{vA0}, 3, v{vLANE}")
    a(f"v_and_b32 v{vA1}, 7, v{vLANE}")
    a(f"v_mul_u32_u24 v{vGUO}, 3584, v{vA0}")
    a(f"v_lshl_add_u32 v{vGUO}, v{vA1}, 4, v{vGUO}")
    a(f"s_and_b32 s{sT0}, s{sW}, 3")
    a(f"s_mul_i32 s{sGO}, s{sT0}, {112*3584}")
    a(f"s_lshl_b32 s{sT1}, s{sJ}, 7")
    a(f"s_add_u32 s{sGO}, s{sGO}, s{sT1}")
    a.c("slices j >= 28 do not exist: zero-size descriptors make their loads return 0")
    a(f"s_cmp_lt_u32 s{sJ}, 28")
    a(f"s_cselect_b32 s{dGU+2}, s{dGU+2}, 0")
    a(f"s_cselect_b32 s{dWD+2}, s{dWD+2}, 0")
    a(f"s_mov_b32 s{sIT}, 0")
    a(f"v_mov_b32 v{vA0}, {QFL}")
    a(f"v_lshrrev_b32 v{vA1}, 1, v{VQA}")
    a("L_qwait:")
    a(f"ds_read_b32 v24, v{vA0}")
    a(f"ds_read_b128 v[{vQ}:{vQ+3}], v{vA1} offset:{QL}")
    a("s_waitcnt lgkmcnt(0)")
    a(f"v_readfirstlane_b32 s{sT0}, v24")
    a(f"s_cmp_lg_u32 s{sT0}, 0")
    a("s_cbranch_scc1 L_qok")
    a("s_sleep 1")
    a(f"s_add_u32 s{sIT}, s{sIT}, 1")
    a(f"s_cmp_lt_u32 s{sIT}, {SPIN}")
    a("s_cbranch_scc1 L_qwait")
    a("L_qok:")
    a(f"v_and_b32 v{vA1}, 31, v{vLANE}")
    a(f"v_lshlrev_b32 v{vA1}, 5, v{vA1}")
    a(f"v_lshrrev_b32 v{vA0}, 5, v{vLANE}")
    a(f"v_lshl_add_u32 v{vA1}, v{vA0}, 4, v{vA1}")
    a(f"v_mov_b32 v{vM}, {f32(-1e30)}")
    a(f"v_mov_b32 v{vL}, 0")
    a(f"s_mov_b32 s{sIT}, 0")
    a(f"s_mov_b32 s{sPL}, 0x05040100")
    a(f"s_mov_b32 s{sPH}, 0x07060302")
    a(f"s_add_u32 s{sOFF}, s{sOFF}, {NPRE*0x8000}")
    a(f"s_add_u32 s{sOB}, s{sOFF}, 0x8000")
    a(f"s_lshl_b32 s{sCNT}, s{sBH}, 8")
    a(f"s_add_u32 s{sCNT}, s{sCNT}, {WS_CLM}")
    stamp(a, cfg, 3)
    if cfg.get("prog"):
        a("s_lshl_b32 s98, s2, 3")
        a(f"s_add_u32 s98, s98, s{sW}")
        a("s_lshl_b32 s98, s98, 8")
        a("s_add_u32 s98, s98, 0x200000")
        a("v_mov_b32 v22, s99")
        a("v_mov_b32 v23, 0")
        a("s_mov_b64 exec, 1")
        a(f"buffer_store_dword v22, v23, s[{dWS}:{dWS+3}], s98 offen")
        a("s_mov_b64 exec, -1")
        a("s_add_u32 s98, s98, 4")
    CZ = f32(0.0625*LOG2E)
    A = 22; Z = 26; P = 27; T = 28; PB = 30; U = 34
    def tile(K, V, lab, refill=True, so=None):
        if refill:
            a(f"s_waitcnt vmcnt({VW})")
        for jj in range(4):
            for i in range(4):
                if jj == 0:
                    a(f"v_dot2_f32_bf16 v{A+i}, v{K+4*i}, v{vQ}, 0")
                else:
                    a(f"v_dot2c_f32_bf16 v{A+i}, v{K+4*i+jj}, v{vQ+jj}")
        if refill:
            for i in range(4):
                a(f"buffer_load_dwordx4 v[{K+4*i}:{K+4*i+3}], v{vL16}, s[{dK}:{dK+3}], s{so} offen offset:{i*1024} {KVF}")
        else:
            a("s_nop 2")
        a(f"v_permlane16_swap_b32 v{A}, v{A+1}")
        a(f"v_permlane16_swap_b32 v{A+2}, v{A+3}")
        a("s_nop 0")
        a(f"v_add_f32 v{A}, v{A}, v{A+1}")
        a(f"v_add_f32 v{A+2}, v{A+2}, v{A+3}")
        a("s_nop 0")
        a(dpp("v_add_f32", Z, A, A, "row_ror:8", bm="0x3"))
        a(dpp("v_add_f32", Z, A+2, A+2, "row_ror:8", bm="0xc"))
        for ctrl in ("quad_perm:[1,0,3,2]", "quad_perm:[2,3,0,1]", "row_half_mirror"):
            a("s_nop 1")
            a(dpp("v_add_f32", Z, Z, Z, ctrl))
        a(f"v_cvt_pk_bf16_f32 v{Z}, v{Z}, v{Z}")
        a(f"v_and_b32 v{Z}, s{sMASK}, v{Z}")
        a(f"v_mul_f32 v{Z}, {CZ}, v{Z}")
        a(f"v_cmp_gt_f32 vcc, v{Z}, v{vM}")
        a(f"s_cbranch_vccnz L_resc{lab}")
        a(f"L_back{lab}:")
        a(f"v_sub_f32 v{P}, v{Z}, v{vM}")
        a(f"v_exp_f32 v{P}, v{P}")
        a("s_nop 0")
        a(f"v_add_f32 v{vL}, v{vL}, v{P}")
        a(f"v_mov_b32 v{T}, v{P}")
        a("s_nop 1")
        a(f"v_permlane16_swap_b32 v{P}, v{T}")
        a("s_nop 1")
        a(f"v_mov_b32_dpp v{PB}, v{P} row_newbcast:0 row_mask:0xf bank_mask:0xf")
        a(f"v_mov_b32_dpp v{PB+1}, v{T} row_newbcast:0 row_mask:0xf bank_mask:0xf")
        a(f"v_mov_b32_dpp v{PB+2}, v{P} row_newbcast:8 row_mask:0xf bank_mask:0xf")
        a(f"v_mov_b32_dpp v{PB+3}, v{T} row_newbcast:8 row_mask:0xf bank_mask:0xf")
        if refill:
            a(f"s_waitcnt vmcnt({VW})")
        for i in range(4):
            axpy_row(a, vO, V+4*i, PB+i, U)
        if refill:
            for i in range(4):
                a(f"buffer_load_dwordx4 v[{V+4*i}:{V+4*i+3}], v{vL16}, s[{dV}:{dV+3}], s{so} offen offset:{i*1024} {KVF}")
    def claim():
        a(f"v_mov_b32 v{vCLM}, 1")
        a(f"v_mov_b32 v{vCHK}, 0")
        a("s_mov_b64 exec, 1")
        a(f"buffer_atomic_add v{vCLM}, v{vCHK}, s[{dWS}:{dWS+3}], s{sCNT} offen sc0 sc1")
        a("s_mov_b64 exec, -1")
    def resc(lab):
        a(f"L_resc{lab}:")
        a(f"v_max_f32 v{T}, v{Z}, v{vM}")
        for ctrl, rm in (("row_ror:8", "0xf"), ("row_bcast:15", "0xa"), ("row_bcast:31", "0xc")):
            a("s_nop 1")
            a(dpp("v_max_f32", T, T, T, ctrl, rm))
        a("s_nop 0")
        a(f"v_readlane_b32 s{sT0}, v{T}, 63")
        a("s_nop 1")
        a(f"v_subrev_f32 v{T}, s{sT0}, v{vM}")
        a(f"v_exp_f32 v{T}, v{T}")
        a(f"v_mov_b32 v{vM}, s{sT0}")
        a(f"v_mul_f32 v{vL}, v{vL}, v{T}")
        for k in range(4):
            a(f"v_pk_mul_f32 v[{vO+2*k}:{vO+2*k+1}], v[{vO+2*k}:{vO+2*k+1}], v[{T}:{T+1}] op_sel_hi:[1,0]")
        a(f"s_branch L_back{lab}")
    a(".p2align 6")
    a("L_loop:")
    tile(KA, VA, "A", so=sOFF)
    tile(KB, VB, "B", so=sOB)
    if cfg.get("stamps"):
        for n2, itv in ((9, 2), (10, 5), (11, 8), (12, SI-1)):
            a(f"s_cmp_lg_u32 s{sIT}, {itv}")
            a(f"s_cbranch_scc1 L_nost{n2}")
            stamp(a, cfg, n2)
            a(f"L_nost{n2}:")
    if cfg.get("prog"):
        a("s_memrealtime s[96:97]")
        a("s_waitcnt lgkmcnt(0)")
        a("v_mov_b32 v22, s96")
        a("v_mov_b32 v23, 0")
        a("s_mov_b64 exec, 1")
        a(f"buffer_store_dword v22, v23, s[{dWS}:{dWS+3}], s98 offen")
        a("s_mov_b64 exec, -1")
        a("s_add_u32 s98, s98, 4")
    a(f"s_cmp_ge_u32 s{sIT}, {SI}")
    a("s_cbranch_scc1 L_dyn")
    a(f"s_cmp_lt_u32 s{sIT}, 11")
    a("s_cbranch_scc1 L_job")
    a("L_jobret:")
    a(f"s_add_u32 s{sIT}, s{sIT}, 1")
    a(f"s_add_u32 s{sOFF}, s{sOFF}, 0x10000")
    a(f"s_add_u32 s{sOB}, s{sOB}, 0x10000")
    a(f"s_cmp_lt_u32 s{sIT}, {SI-2}")
    a("s_cbranch_scc1 L_loop")
    a(f"s_cmp_eq_u32 s{sIT}, {SI}")
    a("s_cbranch_scc1 L_dyn0")
    a(f"s_cmp_eq_u32 s{sIT}, {SI-1}")
    a("s_cbranch_scc1 L_clm0")
    a.c("two iterations before the dynamic phase: fetch the per-batch 'slots cleared' counter")
    a(f"s_lshl_b32 s{sT0}, s{sB}, 4")
    a(f"s_add_u32 s{sT0}, s{sT0}, 128")
    a(f"v_mov_b32 v{vCHK}, s{sT0}")
    a(f"global_load_dword v{vCHK}, v{vCHK}, s[{sDBG_}:{sDBG_+1}] sc1")
    a("s_branch L_loop")
    a("L_clm0:")
    a.c("claims are allowed only once the counter's initialisation is known complete")
    a(f"v_readfirstlane_b32 s{sT0}, v{vCHK}")
    a(f"v_mov_b32 v{vCLM}, {NDYN}")
    if cfg.get("dynw", 8) < 8:
        a(f"s_cmp_ge_u32 s{sW}, {cfg['dynw']}")
        a("s_cbranch_scc1 L_loop")
    a(f"s_cmp_lt_u32 s{sT0}, 32")
    a("s_cbranch_scc1 L_noclm")
    claim()
    a("s_branch L_loop")
    a("L_dyn0:")
    a(f"s_mov_b32 s{sVALID}, 1")
    if cfg.get("dynbar", 1):
        a("s_barrier")
    a("L_dyn:")
    a(f"s_cmp_eq_u32 s{sVALID}, 0")
    a("s_cbranch_scc1 L_epi")
    a(f"v_readfirstlane_b32 s{sT0}, v{vCLM}")
    a(f"s_min_u32 s{sT0}, s{sT0}, {NDYN}")
    a(f"s_lshl_b32 s{sOFF}, s{sT0}, 13")
    a(f"s_add_u32 s{sOFF}, s{sOFF}, {16*NST*4096}")
    a(f"s_add_u32 s{sOB}, s{sOFF}, 0x1000")
    a(f"s_cmp_lt_u32 s{sT0}, {NDYN}")
    a(f"s_cselect_b32 s{sVALID}, 1, 0")
    a("s_cbranch_scc0 L_loop")
    claim()
    a("s_branch L_loop")
    a("L_noclm:")
    a(f"s_cmp_eq_u32 s{sS}, 1")
    a("s_cbranch_scc1 L_loop")
    a.c("half 0 owns the counter: only its own wave 5's init matters; wait for wave 5's gu signal (LDS count 8)")
    a(f"v_mov_b32 v{vCHK}, {CNT}")
    a("L_nocl2:")
    a(f"ds_read_b32 v{vCLM}, v{vCHK}")
    a("s_waitcnt lgkmcnt(0)")
    a(f"v_readfirstlane_b32 s{sT0}, v{vCLM}")
    a(f"s_cmp_lt_u32 s{sT0}, 8")
    a("s_cbranch_scc1 L_nocl2")
    claim()
    a("s_branch L_loop")
    for lab in "ABCDEF"[:NPRE]:
        resc(lab)
    def wo_issue():
        for i in range(4):
            a(f"buffer_load_dwordx4 v[{STG+4*i}:{STG+4*i+3}], v{vL16}, s[{dWO}:{dWO+3}], s{sJO} offen offset:{i*896} {WOF}")
        a(f"s_add_u32 s{sJO}, s{sJO}, {4*896}")
    def gu_issue(g0, g1):
        for g in range(g0, g1):
            a(f"buffer_load_dwordx4 v[{GUR+4*g}:{GUR+4*g+3}], v{vGUO}, s[{dGU}:{dGU+3}], s{sGO} offen {GUF}")
            a(f"s_add_u32 s{sGO}, s{sGO}, {8*3584}")
    G = 38; XG = 22; UG = STG
    a("L_job:")
    a(f"s_cmp_eq_u32 s{sIT}, 0")
    a("s_cbranch_scc1 L_job0")
    a(f"s_cmp_gt_u32 s{sIT}, 8")
    a("s_cbranch_scc1 L_jobwd")
    a.c("slots 1..8: interleave two staged wo row pairs into W + idx")
    a(f"s_set_gpr_idx_on s{sIDX}, 0x8")
    a("s_nop 0")
    for pr in range(2):
        for e in range(4):
            r0 = STG + 8*pr + e; r1 = r0 + 4
            a(f"v_perm_b32 v{W+8*pr+2*e}, v{r1}, v{r0}, s{sPL}")
            a(f"v_perm_b32 v{W+8*pr+2*e+1}, v{r1}, v{r0}, s{sPH}")
    a("s_set_gpr_idx_off")
    a(f"s_add_u32 s{sIDX}, s{sIDX}, 16")
    a(f"s_cmp_eq_u32 s{sIT}, 8")
    a("s_cbranch_scc1 L_job8")
    a(f"s_cmp_eq_u32 s{sIT}, 4")
    a("s_cbranch_scc1 L_job4")
    wo_issue()
    a(f"s_cmp_gt_u32 s{sIT}, 3")
    a("s_cbranch_scc1 L_jobret")
    a(f"s_cmp_eq_u32 s{sIT}, 2")
    a("s_cbranch_scc1 L_job2")
    a(f"s_cmp_eq_u32 s{sIT}, 3")
    a("s_cbranch_scc1 L_job3")
    gu_issue(4, 8)
    a("s_branch L_jobret")
    a("L_job2:")
    gu_issue(8, 11)
    a("s_branch L_jobret")
    a("L_job3:")
    gu_issue(11, 14)
    a("s_branch L_jobret")
    a("L_job8:")
    a.c("w_down rows 64j+8w+i")
    a(f"s_lshl_b32 s{sT0}, s{sJ}, 6")
    a(f"s_lshl_b32 s{sT1}, s{sW}, 3")
    a(f"s_add_u32 s{sT0}, s{sT0}, s{sT1}")
    a(f"s_mul_i32 s{sJO}, s{sT0}, 896")
    for i in range(4):
        a(f"buffer_load_dwordx4 v[{STG+4*i}:{STG+4*i+3}], v{vL16}, s[{dWD}:{dWD+3}], s{sJO} offen offset:{i*896} {WDF}")
    a(f"s_add_u32 s{sJO}, s{sJO}, {4*896}")
    a("s_branch L_jobret")
    a("L_job0:")
    a("s_waitcnt vmcnt(16)")
    a.c("wave 5: its clearing stores are complete (older than everything waited for) -> count them")
    a(f"s_cmp_lg_u32 s{sW}, 5")
    a("s_cbranch_scc1 L_nocnt")
    a(f"s_lshl_b32 s{sT0}, s{sB}, 4")
    a(f"s_add_u32 s{sT0}, s{sT0}, 128")
    a(f"v_mov_b32 v{XG}, s{sT0}")
    a(f"v_mov_b32 v{XG+1}, 1")
    a("s_mov_b64 exec, 1")
    a(f"global_atomic_add v{XG}, v{XG+1}, s[{sDBG_}:{sDBG_+1}] sc1")
    a("s_mov_b64 exec, -1")
    a("L_nocnt:")
    a.c("wo rows h*256+32w+i")
    a(f"s_lshl_b32 s{sT0}, s{sH}, 8")
    a(f"s_lshl_b32 s{sT1}, s{sW}, 5")
    a(f"s_add_u32 s{sT0}, s{sT0}, s{sT1}")
    a(f"s_mul_i32 s{sJO}, s{sT0}, 896")
    a(f"s_mov_b32 s{sIDX}, 0")
    wo_issue()
    if NPRE == 6:
        tile(KE, VE, "E", refill=False)
        tile(KF, VF, "F", refill=False)
    gu_issue(0, 4)
    a.c("tiles C and D (prefetched in the prologue)")
    tile(KC, VC, "C", refill=False)
    tile(KD, VD, "D", refill=False)
    a("s_branch L_jobret")
    a("L_job4:")
    a.c("gate/up partial sums; multipliers xn[b][112*(w&3) + 8i + (lane>>3)]")
    a(f"v_lshrrev_b32 v{vA0}, 3, v{vLANE}")
    a(f"v_lshlrev_b32 v{vA0}, 2, v{vA0}")
    a(f"s_and_b32 s{sT0}, s{sW}, 3")
    a(f"s_mul_i32 s{sT0}, s{sT0}, 448")
    a(f"s_lshl_b32 s{sT1}, s{sB}, 11")
    a(f"s_add_u32 s{sT0}, s{sT0}, s{sT1}")
    a(f"v_add_u32 v{vA0}, s{sT0}, v{vA0}")
    for k in range(7):
        a(f"ds_read2_b32 v[{XG+2*k}:{XG+2*k+1}], v{vA0} offset0:{XT//4+16*k} offset1:{XT//4+16*k+8}")
    for k in range(8):
        a(f"v_mov_b32 v{G+k}, 0")
    a("s_waitcnt lgkmcnt(0)")
    for i in range(14):
        axpy_row(a, G, GUR+4*i, XG+i, UG)
    wo_issue()
    for k in range(4):
        a(f"v_permlane32_swap_b32 v{G+k}, v{G+4+k}")
    a("s_nop 0")
    for k in range(4):
        a(f"v_add_f32 v{G+k}, v{G+k}, v{G+4+k}")
    a("s_nop 0")
    a(f"v_permlane16_swap_b32 v{G}, v{G+2}")
    a(f"v_permlane16_swap_b32 v{G+1}, v{G+3}")
    a("s_nop 0")
    a(f"v_add_f32 v{G}, v{G}, v{G+2}")
    a(f"v_add_f32 v{G+1}, v{G+1}, v{G+3}")
    a.c("LDS addr = GP + w*256 + ((lane&7)*8 + (lane>>3))*4")
    a(f"v_and_b32 v{XG}, 7, v{vLANE}")
    a(f"v_lshrrev_b32 v{XG+1}, 3, v{vLANE}")
    a(dpp("v_add_f32", G+4, G, G, "row_ror:8", bm="0x3"))
    a(dpp("v_add_f32", G+4, G+1, G+1, "row_ror:8", bm="0xc"))
    a(f"v_lshl_add_u32 v{XG}, v{XG}, 3, v{XG+1}")
    a(f"v_lshlrev_b32 v{XG}, 2, v{XG}")
    a(f"s_lshl_b32 s{sT0}, s{sW}, 8")
    a(f"v_add_u32 v{XG}, s{sT0}, v{XG}")
    a(f"ds_write_b32 v{XG}, v{G+4} offset:{GP}")
    a(f"v_mov_b32 v{XG+2}, {CNT}")
    a(f"v_mov_b32 v{XG+3}, 1")
    a("s_waitcnt lgkmcnt(0)")
    a("s_mov_b64 exec, 1")
    a(f"ds_add_u32 v{XG+2}, v{XG+3}")
    a("s_mov_b64 exec, -1")
    a("s_branch L_jobret")
    a("L_jobwd:")
    a(f"v_lshlrev_b32 v{vA0}, 5, v{vLANE}")
    a(f"s_lshl_b32 s{sT0}, s{sW}, 11")
    a(f"v_add_u32 v{vA0}, s{sT0}, v{vA0}")
    a(f"s_cmp_eq_u32 s{sIT}, 10")
    a("s_cbranch_scc1 L_job10")
    a(f"v_mov_b32 v{XG}, {CNT}")
    a("L_cntspin:")
    a(f"ds_read_b32 v{XG+1}, v{XG}")
    a("s_waitcnt lgkmcnt(0)")
    a(f"v_readfirstlane_b32 s{sT0}, v{XG+1}")
    a(f"s_cmp_ge_u32 s{sT0}, 8")
    a("s_cbranch_scc1 L_cntok")
    a("s_sleep 16")
    a("s_branch L_cntspin")
    a("L_cntok:")
    a(f"v_lshlrev_b32 v{XG+8}, 2, v{vLANE}")
    a(f"v_add_u32 v{XG+8}, {GP}, v{XG+8}")
    for k in range(4):
        a(f"ds_read2st64_b32 v[{XG+2*k}:{XG+2*k+1}], v{XG+8} offset0:{2*k} offset1:{2*k+1}")
    for k in range(8):
        a(f"v_mov_b32 v{G+k}, 0")
    a(f"s_lshl_b32 s{sT0}, s{sW}, 3")
    a("s_waitcnt lgkmcnt(0)")
    a(f"v_add_f32 v{XG}, v{XG}, v{XG+1}")
    a(f"v_add_f32 v{XG+2}, v{XG+2}, v{XG+3}")
    a(f"v_add_f32 v{XG+4}, v{XG+4}, v{XG+5}")
    a(f"v_add_f32 v{XG+6}, v{XG+6}, v{XG+7}")
    a(f"v_add_f32 v{XG}, v{XG}, v{XG+2}")
    a(f"v_add_f32 v{XG+4}, v{XG+4}, v{XG+6}")
    bf16_round(a, XG)
    bf16_round(a, XG+4)
    a(f"v_mul_f32 v{XG}, {f32(-LOG2E)}, v{XG}")
    a(f"v_exp_f32 v{XG}, v{XG}")
    a("s_nop 0")
    a(f"v_add_f32 v{XG}, 1.0, v{XG}")
    a(f"v_rcp_f32 v{XG}, v{XG}")
    a("s_nop 0")
    bf16_round(a, XG)
    a(f"v_mul_f32 v{XG}, v{XG}, v{XG+4}")
    bf16_round(a, XG)
    a("s_nop 0")
    for i in range(8):
        a(f"v_readlane_b32 s{sP+i}, v{XG}, s{sT0}")
        a(f"s_add_u32 s{sT0}, s{sT0}, 1")
    a("s_nop 0")
    UW = 30
    for i in range(4):
        axpy_row(a, G, STG+4*i, sP+i, UW, sgpr=True)
    for i in range(4):
        a(f"buffer_load_dwordx4 v[{STG+4*i}:{STG+4*i+3}], v{vL16}, s[{dWD}:{dWD+3}], s{sJO} offen offset:{i*896} {WDF}")
    a(f"ds_write_b128 v{vA0}, v[{G}:{G+3}] offset:{YG}")
    a(f"ds_write_b128 v{vA0}, v[{G+4}:{G+7}] offset:{YG+16}")
    a("s_branch L_jobret")
    a("L_job10:")
    a(f"ds_read_b128 v[{G}:{G+3}], v{vA0} offset:{YG}")
    a(f"ds_read_b128 v[{G+4}:{G+7}], v{vA0} offset:{YG+16}")
    a("s_waitcnt lgkmcnt(0)")
    for i in range(4):
        axpy_row(a, G, STG+4*i, sP+4+i, UW, sgpr=True)
    a(f"ds_write_b128 v{vA0}, v[{G}:{G+3}] offset:{YG}")
    a(f"ds_write_b128 v{vA0}, v[{G+4}:{G+7}] offset:{YG+16}")
    a("s_branch L_jobret")
    a("L_epi:")
    stamp(a, cfg, 4)
    CW = 5
    CL = STG; XR = STG+2
    a(f"s_cmp_lg_u32 s{sW}, {CW}")
    a("s_cbranch_scc1 L_epi1")
    a.c("consumer wave: 'slots cleared' counter of batch b, x for the residual")
    a(f"s_lshl_b32 s{sT0}, s{sB}, 4")
    a(f"s_add_u32 s{sT0}, s{sT0}, 128")
    a(f"v_mov_b32 v{CL+1}, s{sT0}")
    a(f"global_load_dword v{CL}, v{CL+1}, s[{sDBG_}:{sDBG_+1}] sc1")
    a(f"v_and_b32 v{CL+4}, 3, v{vLANE}")
    a(f"v_lshlrev_b32 v{CL+4}, 3, v{CL+4}")
    a(f"s_mul_i32 s{sT1}, s{sB}, 896")
    srd(a, dX, sX_, f"s{sT1}", 896)
    a(f"s_lshl_b32 s{sT0}, s{sJ}, 5")
    a(f"buffer_load_dwordx2 v[{XR}:{XR+1}], v{CL+4}, s[{dX}:{dX+3}], s{sT0} offen")
    a("L_epi1:")
    a(dpp("v_add_f32", vL, vL, vL, "row_ror:8"))
    for k in range(4):
        a(f"v_permlane32_swap_b32 v{vO+k}, v{vO+4+k}")
    a(dpp("v_add_f32", vL, vL, vL, "row_bcast:15", "0xa"))
    for k in range(4):
        a(f"v_add_f32 v{vO+k}, v{vO+k}, v{vO+4+k}")
    a(dpp("v_add_f32", vL, vL, vL, "row_bcast:31", "0xc"))
    a(f"s_mul_i32 s{sT0}, s{sW}, {OPS}")
    a(f"v_add_u32 v{vA0}, s{sT0}, v{vA1}")
    a(f"ds_write_b128 v{vA0}, v[{vO}:{vO+3}] offset:{OP}")
    a(f"s_lshl_b32 s{sT0}, s{sW}, 3")
    a(f"v_mov_b32 v{vA0}, s{sT0}")
    a("s_lshl_b64 exec, 1, 63")
    a(f"ds_write_b64 v{vA0}, v[{vM}:{vL}] offset:{ML}")
    a("s_mov_b64 exec, -1")
    R = 22
    a(f"v_and_b32 v{R}, 7, v{vLANE}")
    a(f"v_lshlrev_b32 v{vA0}, 3, v{R}")
    a(f"v_mul_u32_u24 v{R}, {OPS}, v{R}")
    a(f"v_lshrrev_b32 v{R+1}, 3, v{vLANE}")
    a(f"v_lshl_add_u32 v{R}, v{R+1}, 4, v{R}")
    a(f"s_lshl_b32 s{sT0}, s{sW}, 7")
    a(f"v_add_u32 v{R}, s{sT0}, v{R}")
    a("s_waitcnt lgkmcnt(0)")
    a("s_barrier")
    MX = 24; O4 = 28; MM = 26; Y = 32
    a(f"ds_read_b64 v[{MX}:{MX+1}], v{vA0} offset:{ML}")
    a(f"ds_read_b128 v[{O4}:{O4+3}], v{R} offset:{OP}")
    for k in range(8):
        a(f"v_mov_b32 v{Y+k}, 0")
    a("s_waitcnt lgkmcnt(1)")
    a(dpp("v_max_f32", MM, MX, MX, "quad_perm:[1,0,3,2]"))
    a("s_nop 1")
    a(dpp("v_max_f32", MM, MM, MM, "quad_perm:[2,3,0,1]"))
    a("s_nop 1")
    a(dpp("v_max_f32", MM, MM, MM, "row_half_mirror"))
    a(f"v_sub_f32 v{MX}, v{MX}, v{MM}")
    a(f"v_exp_f32 v{MX}, v{MX}")
    a("s_waitcnt lgkmcnt(0)")
    a(f"v_mul_f32 v{MM+1}, v{MX+1}, v{MX}")
    for k in range(4):
        a(f"v_mul_f32 v{O4+k}, v{O4+k}, v{MX}")
    for ctrl in ("quad_perm:[1,0,3,2]", "quad_perm:[2,3,0,1]", "row_half_mirror"):
        a(dpp("v_add_f32", MM+1, MM+1, MM+1, ctrl))
        for k in range(4):
            a(dpp("v_add_f32", O4+k, O4+k, O4+k, ctrl))
    a(f"v_cvt_pk_bf16_f32 v{O4}, v{O4}, v{O4+1}")
    a(f"v_cvt_pk_bf16_f32 v{O4+1}, v{O4+2}, v{O4+3}")
    a("s_nop 0")
    for dq in range(8):
        a(f"v_readlane_b32 s{sP+2*dq}, v{O4}, {8*dq}")
        a(f"v_readlane_b32 s{sP+2*dq+1}, v{O4+1}, {8*dq}")
    a(f"v_lshlrev_b32 v{vA0}, 5, v{vLANE}")
    a(f"s_lshl_b32 s{sT0}, s{sW}, 11")
    a(f"v_add_u32 v{vA0}, s{sT0}, v{vA0}")
    for k in range(16):
        for e in range(8):
            a(f"v_dot2c_f32_bf16 v{Y+e}, s{sP+k}, v{W+8*k+e}")
    a("s_nop 3")
    a(f"ds_write_b128 v{vA0}, v[{Y}:{Y+3}] offset:{YA}")
    a(f"ds_write_b128 v{vA0}, v[{Y+4}:{Y+7}] offset:{YA+16}")
    a("s_waitcnt lgkmcnt(0)")
    a("s_barrier")
    stamp(a, cfg, 5)
    a(f"s_cmp_eq_u32 s{sW}, {CW}")
    a("s_cbranch_scc1 L_cons")
    a(f"s_cmp_gt_u32 s{sW}, 4")
    a("s_cbranch_scc1 L_fin")
    a(f"s_cmp_eq_u32 s{sW}, 4")
    a("s_cbranch_scc1 L_stml")
    a.c("waves 0,1: YA ; waves 2,3: YG ; n = (w&1)*64 + lane < 112")
    a(f"s_and_b32 s{sT0}, s{sW}, 1")
    a(f"s_lshl_b32 s{sT0}, s{sT0}, 10")
    a(f"v_add_u32 v{vA0}, s{sT0}, v{vL16}")
    a(f"s_lshr_b32 s{sT1}, s{sW}, 1")
    a(f"s_mov_b32 s{sT0}, {YA}")
    a(f"s_cmp_eq_u32 s{sT1}, 0")
    a(f"s_cselect_b32 s{sT0}, s{sT0}, {YG}")
    a(f"v_add_u32 v{R}, s{sT0}, v{vA0}")
    rds = [24, 28, 32, 36, 40, 44, 48, 52]
    for w2 in range(8):
        a(f"ds_read_b128 v[{rds[w2]}:{rds[w2]+3}], v{R} offset:{2048*w2}")
    a(f"s_mul_i32 s{sT1}, s{sT1}, 1792")
    a(f"s_add_u32 s{sT0}, s{sSLOT}, s{sT1}")
    a(f"v_cmp_gt_u32 vcc, 1792, v{vA0}")
    RD = rds[0]
    for w2 in range(1, 8):
        a(f"s_waitcnt lgkmcnt({7-w2})")
        a(f"v_pk_add_f32 v[{RD}:{RD+1}], v[{RD}:{RD+1}], v[{rds[w2]}:{rds[w2]+1}]")
        a(f"v_pk_add_f32 v[{RD+2}:{RD+3}], v[{RD+2}:{RD+3}], v[{rds[w2]+2}:{rds[w2]+3}]")
    a("s_and_saveexec_b64 s[100:101], vcc")
    a(f"buffer_store_dwordx4 v[{RD}:{RD+3}], v{vA0}, s[{dWS}:{dWS+3}], s{sT0} offen sc1")
    a("s_mov_b64 exec, -1")
    a("s_branch L_fin")
    a("L_stml:")
    a(f"v_mov_b32 v{vA0}, 3584")
    a("s_mov_b64 exec, 1")
    a(f"buffer_store_dwordx2 v[{MM}:{MM+1}], v{vA0}, s[{dWS}:{dWS+3}], s{sSLOT} offen sc1")
    a("s_mov_b64 exec, -1")
    a("s_branch L_fin")
    a("L_cons:")
    a(f"s_cmp_ge_u32 s{sJ}, 28")
    a("s_cbranch_scc1 L_fin")
    VO_, VM_ = 22, 23
    a(f"v_lshrrev_b32 v{VM_}, 2, v{vLANE}")
    a(f"v_lshlrev_b32 v{VM_}, 12, v{VM_}")
    a(f"v_and_b32 v{VO_}, 3, v{vLANE}")
    a(f"v_lshl_add_u32 v{VO_}, v{VO_}, 4, v{VM_}")
    a(f"s_lshl_b32 s{sT0}, s{sB}, 17")
    a(f"s_lshl_b32 s{sT1}, s{sJ}, 6")
    a(f"s_add_u32 s{sT1}, s{sT1}, s{sT0}")
    a(f"s_add_u32 s{sT2}, s{sT1}, 0x10000")
    a(f"s_add_u32 s{sT3}, s{sT0}, 0x10000")
    a(f"s_mov_b32 s{sIT}, 0")
    a("s_waitcnt vmcnt(0)")
    a("L_clrchk:")
    a(f"v_cmp_gt_u32 vcc, 32, v{CL}")
    a("s_cbranch_vccz L_poll0")
    a("s_sleep 8")
    a(f"global_load_dword v{CL}, v{CL+1}, s[{sDBG_}:{sDBG_+1}] sc1")
    a(f"s_add_u32 s{sIT}, s{sIT}, 1")
    a(f"s_cmp_lt_u32 s{sIT}, {SPIN}")
    a("s_waitcnt vmcnt(0)")
    a("s_cbranch_scc1 L_clrchk")
    a("L_poll0:")
    A0, A1, G0, G1, M0, M1 = 24, 28, 32, 36, 40, 42
    loads = [
        (A0, 4, VO_, sT1, 0), (A1, 4, VO_, sT2, 0), (G0, 4, VO_, sT1, 1792), (G1, 4, VO_, sT2, 1792),
        (M0, 2, VM_, sT0, 3584), (M1, 2, VM_, sT3, 3584)]
    masks = [sP + 2*i for i in range(6)]
    for m in masks:
        a(f"s_mov_b64 s[{m}:{m+1}], -1")
    a(f"s_mov_b32 s{sIT}, 0")
    a("L_poll:")
    for n2, ((r, cnt, vo, so, off), m) in enumerate(zip(loads, masks)):
        a(f"s_mov_b64 exec, s[{m}:{m+1}]")
        a(f"s_cbranch_execz L_skip{n2}")
        a(f"buffer_load_dwordx{cnt} v[{r}:{r+cnt-1}], v{vo}, s[{dWS}:{dWS+3}], s{so} offen offset:{off} sc1")
        a(f"L_skip{n2}:")
    a("s_mov_b64 exec, -1")
    a("s_waitcnt vmcnt(0)")
    TM = 44
    for (r, cnt, vo, so, off), m in zip(loads, masks):
        if cnt == 4:
            a(f"v_max3_u32 v{TM}, v{r}, v{r+1}, v{r+2}")
            a(f"v_max_u32 v{TM}, v{TM}, v{r+3}")
        else:
            a(f"v_max_u32 v{TM}, v{r}, v{r+1}")
        a(f"v_cmp_eq_u32 s[{m}:{m+1}], -1, v{TM}")
    a("s_nop 1")
    a(f"s_or_b64 s[100:101], s[{masks[0]}:{masks[0]+1}], s[{masks[1]}:{masks[1]+1}]")
    for m in masks[2:]:
        a(f"s_or_b64 s[100:101], s[100:101], s[{m}:{m+1}]")
    a("s_cbranch_scc0 L_ready")
    a(f"s_add_u32 s{sIT}, s{sIT}, 1")
    a(f"s_cmp_lt_u32 s{sIT}, {SPIN}")
    if SLEEP:
        a(f"s_sleep {SLEEP}")
    a("s_cbranch_scc1 L_poll")
    a("L_ready:")
    stamp(a, cfg, 6)
    for M in (M0, M1):
        a(dpp("v_max_f32", TM + (M == M1), M, M, "row_half_mirror"))
    for M in (M0, M1):
        a(f"v_sub_f32 v{M}, v{M}, v{TM + (M == M1)}")
    for M in (M0, M1):
        a(f"v_exp_f32 v{M}, v{M}")
    a("s_nop 0")
    for M in (M0, M1):
        a(f"v_mul_f32 v{M+1}, v{M+1}, v{M}")
    a("s_nop 0")
    for M in (M0, M1):
        a(dpp("v_add_f32", M+1, M+1, M+1, "row_half_mirror"))
    for M in (M0, M1):
        a(f"v_rcp_f32 v{M+1}, v{M+1}")
    a(f"v_pk_add_f32 v[{G0}:{G0+1}], v[{G0}:{G0+1}], v[{G1}:{G1+1}]")
    a(f"v_pk_add_f32 v[{G0+2}:{G0+3}], v[{G0+2}:{G0+3}], v[{G1+2}:{G1+3}]")
    for M in (M0, M1):
        a(f"v_mul_f32 v{M}, v{M}, v{M+1}")
    a(f"v_pk_mul_f32 v[{A0}:{A0+1}], v[{A0}:{A0+1}], v[{M0}:{M0+1}] op_sel_hi:[1,0]")
    a(f"v_pk_mul_f32 v[{A0+2}:{A0+3}], v[{A0+2}:{A0+3}], v[{M0}:{M0+1}] op_sel_hi:[1,0]")
    a(pkfma_bcast(A0, A1, M1))
    a(pkfma_bcast(A0+2, A1+2, M1))
    regs8 = [G0, G0+1, G0+2, G0+3, A0, A0+1, A0+2, A0+3]
    for ctrl in ("row_ror:4", "row_ror:8"):
        for r in regs8:
            a(dpp("v_add_f32", r, r, r, ctrl))
    a("s_nop 0")
    for k in range(4):
        a(f"v_permlane32_swap_b32 v{A0+k}, v{G0+k}")
    a("s_nop 0")
    for k in range(4):
        a(f"v_add_f32 v{A0+k}, v{A0+k}, v{G0+k}")
    for k in range(4):
        a(f"v_mov_b32 v{G0+k}, v{A0+k}")
    a("s_nop 0")
    for k in range(4):
        a(f"v_permlane16_swap_b32 v{A0+k}, v{G0+k}")
    a("s_nop 0")
    for k in range(4):
        a(f"v_add_f32 v{A0+k}, v{A0+k}, v{G0+k}")
    for k in range(4):
        bf16_round(a, A0+k)
    for k in range(4):
        a(f"v_mov_b32 v{G0+k}, v{A0+k}")
    a(f"v_lshlrev_b32 v{A1}, 16, v{XR}")
    a(f"v_and_b32 v{A1+1}, s{sMASK}, v{XR}")
    for k in range(4):
        a(f"v_permlane32_swap_b32 v{A0+k}, v{G0+k}")
    a(f"v_lshlrev_b32 v{A1+2}, 16, v{XR+1}")
    a(f"v_and_b32 v{A1+3}, s{sMASK}, v{XR+1}")
    for k in range(4):
        a(f"v_add_f32 v{A0+k}, v{A0+k}, v{A1+k}")
    for k in range(4):
        bf16_round(a, A0+k)
    for k in range(4):
        a(f"v_add_f32 v{A0+k}, v{A0+k}, v{G0+k}")
    a(f"v_cvt_pk_bf16_f32 v{A0}, v{A0}, v{A0+1}")
    a(f"v_cvt_pk_bf16_f32 v{A0+1}, v{A0+2}, v{A0+3}")
    a(f"s_mul_i32 s{sT1}, s{sB}, 896")
    srd(a, dGU, sOUT_, f"s{sT1}", 896)
    a(f"s_lshl_b32 s{sT0}, s{sJ}, 5")
    a("s_mov_b64 exec, 15")
    a(f"buffer_store_dwordx2 v[{A0}:{A0+1}], v{CL+4}, s[{dGU}:{dGU+3}], s{sT0} offen")
    a("s_mov_b64 exec, -1")
    a("L_fin:")
    if cfg.get("stamps"):
        a("s_waitcnt vmcnt(0)")
        stamp(a, cfg, 7)
        a("v_writelane_b32 v7, s98, 0")
        a("s_getreg_b32 s96, hwreg(HW_REG_XCC_ID)")
        a("v_writelane_b32 v7, s96, 8")
        a(f"s_lshl_b32 s{sT0}, s2, 3")
        a(f"s_add_u32 s{sT0}, s{sT0}, s{sW}")
        a(f"s_lshl_b32 s{sT0}, s{sT0}, 6")
        a(f"s_add_u32 s{sT0}, s{sT0}, 0x200000")
        a(f"v_lshlrev_b32 v{vA0}, 2, v{vLANE}")
        a("s_mov_b64 exec, 0xffff")
        a(f"buffer_store_dword v7, v{vA0}, s[{dWS}:{dWS+3}], s{sT0} offen")
    a("L_end:")
    a("s_endpgm")
    hdr = open(REF).read().split("; Override launch")[0] if os.path.exists(REF) else ""
    return hdr + f"""; @launch grid=(256,1,1) block=(512,1,1) lds={LDS_BYTES}
.amdgcn_target "amdgcn-amd-amdhsa--gfx950"
.text
.globl {KN}
.p2align 8
.type {KN},@function
{KN}:
""" + a.text() + f""".section .rodata,"a"
.p2align 6
.amdhsa_kernel {KN}
  .amdhsa_next_free_vgpr 256
  .amdhsa_next_free_sgpr 102
  .amdhsa_accum_offset 256
  .amdhsa_group_segment_fixed_size 0
  .amdhsa_kernarg_size 96
  .amdhsa_user_sgpr_count 2
  .amdhsa_user_sgpr_kernarg_segment_ptr 1
  .amdhsa_system_sgpr_workgroup_id_x 1
.end_amdhsa_kernel
"""

if __name__ == "__main__":
    name = sys.argv[1]
    cfg = json.loads(sys.argv[2]) if len(sys.argv) > 2 else {}
    open(name, "w").write(gen(cfg))
```

```python
import struct, sys, os, json

KN = "parallel_sum__mha_block_cached__glu_gated_glu__decode_kernel"
REF = "parallel_sum__mha_block_cached__glu_gated_glu__decode.s.ref"
LOG2E = 1.4426950408889634

def f32(x):
    return "0x%08x" % struct.unpack("<I", struct.pack("<f", x))[0]

class Asm:
    def __init__(self):
        self.lines = []
        self.vm = []
    def __call__(self, s):
        for l in s.strip("\n").split("\n"):
            self.lines.append("  " + l.strip() if not l.strip().endswith(":") else l.strip())
    def c(self, s):
        self.lines.append("  ; " + s)
    def vmem(self, s, tag):
        self(s); self.vm.append(tag)
    def wait_tag(self, tag):
        idx = max(i for i, t in enumerate(self.vm) if t == tag)
        n = len(self.vm) - 1 - idx
        self(f"s_waitcnt vmcnt({n})")
        self.vm = self.vm[idx+1:]
    def text(self):
        return "\n".join(self.lines) + "\n"

XT   = 0
QP   = 16384
GP   = QP + 4096
YG   = GP + 2048
OP   = YG + 16384
OPS  = 1040
ML   = OP + 8*OPS
CNT  = ML + 64
QFL  = CNT + 4
QL   = CNT + 64
YA   = QL + 512
LDS_BYTES = YA + 16384
SLOT = 4096
WS_CLM = 0x180000
WS_Q   = 0x1A0000

sBH = 3
sX_, sK_, sV_, sWQ_, sWO_, sBX_, sWG_, sWU_ = 4, 6, 8, 10, 12, 14, 16, 18
sWD_, sOUT_, sDBG_, sWS_ = 20, 22, 24, 26
dK, dV, dWQ, dGU, dX, dWO, dWD, dWS = 28, 32, 36, 40, 44, 48, 52, 56
sW, sB, sH, sS, sJ, sIT, sOFF, sT0, sT1, sMASK, sT2, sT3 = 60, 61, 62, 63, 64, 65, 66, 67, 68, 69, 70, 71
sP = 72
sO1, sO2, sO3 = 88, 89, 90
sOB, sVALID, sCNT = 88, 89, 90
sJO, sIDX, sPL, sPH, sSLOT = 91, 92, 93, 94, 95
sST = 92
sPR = 74
sO4, sO5 = 75, 76
KE, VE, KF, VF = 192, 208, 224, 240
sGO = 87
sNL, sNH = 72, 73
vLANE, vL16, vWQO, vGUO, vA0, vA1 = 1, 2, 3, 4, 5, 6
vCLM, vCHK = 3, 46
vQ = 8
vO = 12
vM, vL = 20, 21
STG = 48
KA, VA, KB, VB = 64, 80, 96, 112
W = 128
KC, VC, KD, VD = 128, 144, 160, 176
GUR = 192

def srd(a, d, base, off_s, nrec):
    if off_s is None:
        a(f"s_mov_b32 s{d}, s{base}")
        a(f"s_mov_b32 s{d+1}, s{base+1}")
    else:
        a(f"s_add_u32 s{d}, s{base}, {off_s}")
        a(f"s_addc_u32 s{d+1}, s{base+1}, 0")
    a(f"s_mov_b32 s{d+2}, {nrec}")
    a(f"s_mov_b32 s{d+3}, 0x00020000")

def dpp(op, d, s0, s1, ctrl, rm="0xf", bm="0xf"):
    return f"{op}_dpp v{d}, v{s0}, v{s1} {ctrl} row_mask:{rm} bank_mask:{bm}"

def reduce64(a, op, v, sdst):
    for ctrl, rm in (("quad_perm:[1,0,3,2]", "0xf"), ("quad_perm:[2,3,0,1]", "0xf"), ("row_half_mirror", "0xf"),
                     ("row_mirror", "0xf"), ("row_bcast:15", "0xa"), ("row_bcast:31", "0xc")):
        a("s_nop 1")
        a(dpp(op, v, v, v, ctrl, rm))
    a("s_nop 0")
    a(f"v_readlane_b32 s{sdst}, v{v}, 63")

def bsel(m):
    return "op_sel:[0,1,0] op_sel_hi:[1,1,1]" if m & 1 else "op_sel_hi:[1,0,1]"

def pkfma_bcast(acc, u, m, sgpr=False):
    r = "s" if sgpr else "v"
    base = m & ~1
    return f"v_pk_fma_f32 v[{acc}:{acc+1}], v[{u}:{u+1}], {r}[{base}:{base+1}], v[{acc}:{acc+1}] {bsel(m)}"

def unpack(a, data, tmp):
    for k in range(4):
        a(f"v_lshlrev_b32 v{tmp+2*k}, 16, v{data+k}")
        a(f"v_and_b32 v{tmp+2*k+1}, s{sMASK}, v{data+k}")

def axpy_row(a, acc, data, m, tmp, sgpr=False):
    unpack(a, data, tmp)
    for k in range(4):
        a(pkfma_bcast(acc+2*k, tmp+2*k, m, sgpr))

def bf16_round(a, v):
    a(f"v_cvt_pk_bf16_f32 v{v}, v{v}, v{v}")
    a(f"v_and_b32 v{v}, s{sMASK}, v{v}")

def stamp(a, cfg, idx):
    if cfg.get("stamps"):
        a("s_memrealtime s[96:97]")
        a("s_waitcnt lgkmcnt(0)")
        a(f"v_writelane_b32 v7, s96, {idx}")

def gen(cfg):
    KVF = cfg.get("kvflags", "nt")
    KF_ = cfg.get("kf", KVF); VF_ = cfg.get("vf", KVF)
    WF = cfg.get("wflags", "")
    WQF = cfg.get("wqf", WF); WOF = cfg.get("wof", WF); GUF = cfg.get("guf", WF); WDF = cfg.get("wdf", WF)
    SLEEP = cfg.get("sleep", 4)
    VW = cfg.get("vw", 12)
    PACE = cfg.get("pace", 3)
    SI = cfg.get("si", 11)
    NPRE = cfg.get("npre", 4)
    NST = NPRE + 2*SI
    NDYN = (512 - 16*NST)//2
    SPIN = 0x200000
    a = Asm()
    a("s_cmp_ge_u32 s2, 256")
    a("s_cbranch_scc1 L_end")
    a("s_load_dwordx16 s[4:19], s[0:1], 0")
    a("s_load_dwordx8 s[20:27], s[0:1], 64")
    if cfg.get("stamps"):
        a("v_mov_b32 v7, 0")
        a("s_memrealtime s[98:99]")
    if cfg.get("prog"):
        a("s_memrealtime s[98:99]")
        a("s_waitcnt lgkmcnt(0)")
        a("s_mov_b32 s99, s98")
    a(f"v_and_b32 v{vLANE}, 63, v0")
    a(f"v_lshrrev_b32 v{vA0}, 6, v0")
    a(f"v_lshlrev_b32 v{vL16}, 4, v{vLANE}")
    a(f"v_readfirstlane_b32 s{sW}, v{vA0}")
    a.c("decode workgroup id: xcd=g&7, e=(g>>3)&1, s=(g>>4)&1, b=g>>5; the two key halves of a head sit on xcd i and i+1+2e")
    a(f"s_and_b32 s{sT0}, s2, 7")
    a(f"s_bfe_u32 s{sT1}, s2, 0x10003")
    a(f"s_bfe_u32 s{sS}, s2, 0x10004")
    a(f"s_lshr_b32 s{sB}, s2, 5")
    if cfg.get("pair", "xor") == "k44":
        a(f"s_lshl_b32 s{sT2}, s{sT1}, 1")
        a(f"s_add_u32 s{sT2}, s{sT2}, 1")
        a(f"s_mul_i32 s{sT2}, s{sT2}, s{sS}")
        a(f"s_sub_u32 s{sT0}, s{sT0}, s{sT2}")
        a(f"s_and_b32 s{sT0}, s{sT0}, 7")
    elif cfg.get("pair", "xor") == "xor":
        a(f"s_lshl_b32 s{sT2}, s{sT1}, 1")
        a(f"s_add_u32 s{sT2}, s{sT2}, 3")
        a(f"s_mul_i32 s{sT2}, s{sT2}, s{sS}")
        a(f"s_xor_b32 s{sT0}, s{sT0}, s{sT2}")
    elif cfg.get("pair") == "tab":
        inv0, inv1 = cfg["inv0"], cfg["inv1"]
        pk = lambda t: sum(v << (4*i) for i, v in enumerate(t))
        a(f"s_mov_b32 s{sT2}, {pk(inv0):#x}")
        a(f"s_cmp_eq_u32 s{sT1}, 0")
        a(f"s_cselect_b32 s{sT2}, s{sT2}, {pk(inv1):#x}")
        a(f"s_cmp_eq_u32 s{sS}, 0")
        a(f"s_cselect_b32 s{sT2}, 0x76543210, s{sT2}")
        a(f"s_lshl_b32 s{sT0}, s{sT0}, 2")
        a(f"s_lshr_b32 s{sT0}, s{sT2}, s{sT0}")
        a(f"s_and_b32 s{sT0}, s{sT0}, 7")
    a(f"s_lshl_b32 s{sH}, s{sT0}, 1")
    a(f"s_add_u32 s{sH}, s{sH}, s{sT1}")
    a(f"s_lshl_b32 s{sJ}, s{sH}, 1")
    a(f"s_add_u32 s{sJ}, s{sJ}, s{sS}")
    a(f"s_mov_b32 s{sMASK}, 0xffff0000")
    a.c("wq slice voffset = (lane>>1)*8192 + (lane&1)*16")
    a(f"v_lshrrev_b32 v{vA0}, 1, v{vLANE}")
    a(f"v_and_b32 v{vA1}, 1, v{vLANE}")
    a(f"v_lshlrev_b32 v{vWQO}, 13, v{vA0}")
    a(f"v_lshl_add_u32 v{vWQO}, v{vA1}, 4, v{vWQO}")
    a(f"s_lshl_b32 s{sBH}, s{sB}, 4")
    a(f"s_add_u32 s{sBH}, s{sBH}, s{sH}")
    a(f"s_lshl_b32 s{sT0}, s{sBH}, 21")
    a(f"s_mul_i32 s{sT1}, s{sW}, 896")
    a.c("p = s*8 + b ; flag byte index = h*16 + p ; wq column byte offset = h*512 + p*32")
    a(f"s_lshl_b32 s{sPL}, s{sS}, 3")
    a(f"s_add_u32 s{sPL}, s{sPL}, s{sB}")
    a(f"s_lshl_b32 s{sPH}, s{sH}, 4")
    a(f"s_add_u32 s{sPH}, s{sPH}, s{sPL}")
    a(f"s_lshl_b32 s{sT2}, s{sPH}, 5")
    a(f"s_sub_u32 s{sT3}, {448*8192}, s{sT2}")
    ADJ = cfg.get("adj", 0)
    DB = 0x1000 if ADJ else 0x8000
    a(f"s_lshl_b32 s{sOFF}, s{sW}, {13 if ADJ else 12}")
    a(f"s_mul_i32 s{sO1}, s{sS}, {NST*8*4096}")
    a(f"s_add_u32 s{sOFF}, s{sOFF}, s{sO1}")
    a(f"s_sub_u32 s{sPR}, 7, s{sW}")
    a(f"s_lshl_b32 s{sIT}, s{sPR}, 19")
    a(f"s_add_u32 s{sJO}, s{sIT}, 0x40000")
    a(f"s_add_u32 s{sO1}, s{sOFF}, {DB}")
    a(f"s_add_u32 s{sO2}, s{sOFF}, 0x10000")
    a(f"s_add_u32 s{sO3}, s{sOFF}, {0x10000+DB}")
    a(f"s_add_u32 s{sO4}, s{sOFF}, 0x20000")
    a(f"s_add_u32 s{sO5}, s{sOFF}, {0x20000+DB}")
    a("s_waitcnt lgkmcnt(0)")
    X4 = 24; WQ0 = 56; WQ1 = 60
    srd(a, dX, sX_, f"s{sT1}", 896)
    a.vmem(f"buffer_load_dwordx4 v[{X4}:{X4+3}], v{vL16}, s[{dX}:{dX+3}], 0 offen", "x")
    srd(a, dWQ, sWQ_, f"s{sT2}", f"s{sT3}")
    a.vmem(f"buffer_load_dwordx4 v[{WQ0}:{WQ0+3}], v{vWQO}, s[{dWQ}:{dWQ+3}], s{sIT} offen {WQF}", "wq0")
    a.vmem(f"buffer_load_dwordx4 v[{WQ1}:{WQ1+3}], v{vWQO}, s[{dWQ}:{dWQ+3}], s{sJO} offen {WQF}", "wq1")
    a.c("launch nonce of this head: first arriver's clock value, agreed through a compare-swap on zeroed d_debug")
    NON = 20
    a(f"s_cmp_lg_u32 s{sW}, 0")
    a("s_cbranch_scc1 L_nonon")
    a("s_memrealtime s[100:101]")
    a(f"s_lshl_b32 s{sT1}, s{sH}, 3")
    a(f"v_mov_b32 v{vA0}, s{sT1}")
    a(f"v_mov_b32 v{NON+1}, 0")
    a("s_waitcnt lgkmcnt(0)")
    a("s_or_b32 s100, s100, 1")
    a(f"v_mov_b32 v{NON}, s100")
    a("s_mov_b64 exec, 1")
    a(f"global_atomic_cmpswap v{NON}, v{vA0}, v[{NON}:{NON+1}], s[{sDBG_}:{sDBG_+1}] sc0 sc1")
    a("s_mov_b64 exec, -1")
    a("L_nonon:")
    srd(a, dK, sK_, f"s{sT0}", 0x200000)
    srd(a, dV, sV_, f"s{sT0}", 0x200000)
    if cfg.get("bar0", 1):
        a("s_barrier")
    kv = []
    for (K, V, so) in ((KA, VA, sOFF), (KB, VB, sO1), (KC, VC, sO2), (KD, VD, sO3), (KE, VE, sO4), (KF, VF, sO5))[:NPRE]:
        kv += [(K, dK, so, i) for i in range(4)] + [(V, dV, so, i) for i in range(4)]
    def kvone():
        base, d, so, i = kv.pop(0)
        a.vmem(f"buffer_load_dwordx4 v[{base+4*i}:{base+4*i+3}], v{vL16}, s[{d}:{d+3}], s{so} offen offset:{i*1024} {KF_ if d == dK else VF_}", "kv")
    def sprinkle(start, every, count):
        body = a.lines[start:]
        del a.lines[start:]
        k = 0
        for n_, l in enumerate(body):
            a.lines.append(l)
            if k < count and n_ % every == every-1 and not l.strip().startswith(("s_waitcnt vmcnt", ";")):
                kvone(); k += 1
        while k < count:
            kvone(); k += 1
    def kvgroup(paced):
        for _ in range(4):
            base, d, so, i = kv.pop(0)
            a.vmem(f"buffer_load_dwordx4 v[{base+4*i}:{base+4*i+3}], v{vL16}, s[{d}:{d+3}], s{so} offen offset:{i*1024} {KF_ if d == dK else VF_}", "kv")
            if paced:
                a(f"s_waitcnt vmcnt({PACE})")
    for _ in range(cfg.get("n0", 4)):
        kvone()
    stamp(a, cfg, 1)
    srd(a, dWS, sWS_, None, 0x400000)
    a(f"s_lshl_b32 s{sSLOT}, s{sB}, 5")
    a(f"s_add_u32 s{sSLOT}, s{sSLOT}, s{sJ}")
    a(f"s_lshl_b32 s{sSLOT}, s{sSLOT}, 12")
    for k in range(8):
        a(f"v_mov_b32 v{vO+k}, 0")
    a(f"s_cmp_lt_u32 s{sW}, 4")
    a(f"s_cselect_b32 s{dGU}, s{sWG_}, s{sWU_}")
    a(f"s_cselect_b32 s{dGU+1}, s{sWG_+1}, s{sWU_+1}")
    a(f"s_mov_b32 s{dGU+2}, {448*3584}")
    a(f"s_mov_b32 s{dGU+3}, 0x00020000")
    srd(a, dWO, sWO_, None, 4096*896)
    srd(a, dWD, sWD_, None, 1792*896)
    a(f"v_cmp_gt_u32 vcc, 56, v{vLANE}")
    a(f"v_mov_b32 v{vA0}, {CNT}")
    a(f"ds_write_b128 v{vA0}, v[{vO}:{vO+3}]")
    a.c("LayerNorm: wave w normalises x[w]")
    E = 28; S0 = 36
    a.wait_tag("x")
    ln0 = len(a.lines)
    unpack(a, X4, E)
    a(f"v_add_f32 v{S0}, v{E}, v{E+1}")
    a(f"v_add_f32 v{S0+1}, v{E+2}, v{E+3}")
    a(f"v_add_f32 v{S0+2}, v{E+4}, v{E+5}")
    a(f"v_add_f32 v{S0+3}, v{E+6}, v{E+7}")
    a(f"v_add_f32 v{S0}, v{S0}, v{S0+1}")
    a(f"v_add_f32 v{S0+2}, v{S0+2}, v{S0+3}")
    a(f"v_add_f32 v{S0}, v{S0}, v{S0+2}")
    reduce64(a, "v_add_f32", S0, sT0)
    MEAN = S0+1; ACC = S0+2; D = S0+4
    a("s_nop 1")
    a(f"v_mov_b32 v{MEAN}, s{sT0}")
    a(f"v_mul_f32 v{MEAN}, {f32(1.0/448)}, v{MEAN}")
    for k in range(8):
        a(f"v_sub_f32 v{D+k}, v{E+k}, v{MEAN}")
    a(f"v_mul_f32 v{ACC}, v{D}, v{D}")
    for k in range(1, 8):
        a(f"v_fmac_f32 v{ACC}, v{D+k}, v{D+k}")
    a(f"v_cndmask_b32 v{ACC}, 0, v{ACC}, vcc")
    reduce64(a, "v_add_f32", ACC, sT0)
    bf16_round(a, MEAN)
    a(f"v_mov_b32 v{ACC}, s{sT0}")
    a(f"v_mul_f32 v{ACC}, {f32(1.0/448)}, v{ACC}")
    bf16_round(a, ACC)
    a(f"v_add_f32 v{ACC}, {f32(1e-5)}, v{ACC}")
    bf16_round(a, ACC)
    a(f"v_sqrt_f32 v{ACC}, v{ACC}")
    for k in range(8):
        a(f"v_sub_f32 v{D+k}, v{E+k}, v{MEAN}")
    bf16_round(a, ACC)
    a(f"v_rcp_f32 v{ACC}, v{ACC}")
    for k in range(4):
        a(f"v_cvt_pk_bf16_f32 v{X4+k}, v{D+2*k}, v{D+2*k+1}")
    unpack(a, X4, D)
    for k in range(8):
        a(f"v_mul_f32 v{D+k}, v{D+k}, v{ACC}")
    for k in range(4):
        a(f"v_cvt_pk_bf16_f32 v{X4+k}, v{D+2*k}, v{D+2*k+1}")
    unpack(a, X4, E)
    a(f"v_lshlrev_b32 v{vA0}, 5, v{vLANE}")
    a(f"s_lshl_b32 s{sT0}, s{sW}, 11")
    a(f"v_add_u32 v{vA0}, s{sT0}, v{vA0}")
    a(f"ds_write_b128 v{vA0}, v[{E}:{E+3}] offset:{XT}")
    a(f"ds_write_b128 v{vA0}, v[{E+4}:{E+7}] offset:{XT+16}")
    a.c("multiplier addresses: row (64w + 32i + lane>>1) * 4")
    a(f"v_lshrrev_b32 v{vA0}, 1, v{vLANE}")
    a(f"v_lshlrev_b32 v{vA0}, 2, v{vA0}")
    a(f"s_lshl_b32 s{sT0}, s{sPR}, 8")
    a(f"v_add_u32 v{vA0}, s{sT0}, v{vA0}")
    a(f"v_add_u32 v{vA1}, 128, v{vA0}")
    sprinkle(ln0, cfg.get("spr1", 30), cfg.get("n1", 4))
    a("s_waitcnt lgkmcnt(0)")
    a("s_barrier")
    stamp(a, cfg, 2)
    XM = 24
    for k in range(4):
        a(f"ds_read2st64_b32 v[{XM+2*k}:{XM+2*k+1}], v{vA0} offset0:{XT//256+16*k} offset1:{XT//256+16*k+8}")
    for k in range(4):
        a(f"ds_read2st64_b32 v[{XM+8+2*k}:{XM+8+2*k+1}], v{vA1} offset0:{XT//256+16*k} offset1:{XT//256+16*k+8}")
    U0 = 40; U1 = 48
    a.wait_tag("wq1")
    fm0 = len(a.lines)
    unpack(a, WQ0, U0)
    unpack(a, WQ1, U1)
    QA = GUR
    a("s_waitcnt lgkmcnt(4)")
    for b in range(8):
        for k in range(4):
            m = XM + b
            sel = "op_sel:[0,1] op_sel_hi:[1,1]" if m & 1 else "op_sel_hi:[1,0]"
            a(f"v_pk_mul_f32 v[{QA+8*b+2*k}:{QA+8*b+2*k+1}], v[{U0+2*k}:{U0+2*k+1}], v[{m&~1}:{(m&~1)+1}] {sel}")
    a("s_waitcnt lgkmcnt(0)")
    for b in range(8):
        for k in range(4):
            a(pkfma_bcast(QA+8*b+2*k, U1+2*k, XM+8+b))
    a.c("transposing reduction over lane bits 5,4,3,2 then all-reduce over bit 1")
    for r in range(32):
        a(f"v_permlane32_swap_b32 v{QA+r}, v{QA+32+r}")
    for r in range(0, 32, 2):
        a(f"v_pk_add_f32 v[{QA+r}:{QA+r+1}], v[{QA+r}:{QA+r+1}], v[{QA+32+r}:{QA+32+r+1}]")
    for r in range(16):
        a(f"v_permlane16_swap_b32 v{QA+r}, v{QA+16+r}")
    for r in range(0, 16, 2):
        a(f"v_pk_add_f32 v[{QA+r}:{QA+r+1}], v[{QA+r}:{QA+r+1}], v[{QA+16+r}:{QA+16+r+1}]")
    R3 = QA + 32
    for r in range(8):
        a(dpp("v_add_f32", R3+r, QA+r, QA+r, "row_ror:8", bm="0x3"))
    for r in range(8):
        a(dpp("v_add_f32", R3+r, QA+8+r, QA+8+r, "row_ror:8", bm="0xc"))
    R4 = QA + 48
    for r in range(4):
        a(dpp("v_add_f32", R4+r, R3+r, R3+r, "row_shl:4", bm="0x5"))
    for r in range(4):
        a(dpp("v_add_f32", R4+r, R3+4+r, R3+4+r, "row_shr:4", bm="0xa"))
    a.c("LDS addr = QP + w*512 + (lane>>3)*64 + (lane&1)*32 + ((lane>>2)&1)*16")
    a(f"v_lshrrev_b32 v{vA0}, 3, v{vLANE}")
    a(f"v_lshlrev_b32 v{vA0}, 6, v{vA0}")
    a(f"v_and_b32 v{vA1}, 1, v{vLANE}")
    a(f"v_lshl_add_u32 v{vA0}, v{vA1}, 5, v{vA0}")
    a(f"v_and_b32 v{vA1}, 4, v{vLANE}")
    a(f"v_lshl_add_u32 v{vA0}, v{vA1}, 2, v{vA0}")
    for r in range(4):
        a(dpp("v_add_f32", R4+r, R4+r, R4+r, "quad_perm:[2,3,0,1]"))
    a(f"s_lshl_b32 s{sT0}, s{sPR}, 9")
    a(f"v_add_u32 v{vA0}, s{sT0}, v{vA0}")
    a(f"ds_write_b128 v{vA0}, v[{R4}:{R4+3}] offset:{QP}")
    sprinkle(fm0, cfg.get("spr2", 40), cfg.get("n2", 4))
    QD = 40
    VQA = 39
    a(f"v_and_b32 v{VQA}, 31, v{vLANE}")
    a(f"v_lshlrev_b32 v{VQA}, 5, v{VQA}")
    a(f"s_lshl_b32 s{sT3}, s{sBH}, 10")
    a(f"s_add_u32 s{sT3}, s{sT3}, {WS_Q}")
    a("s_waitcnt lgkmcnt(0)")
    a("s_barrier")
    a(f"s_cmp_lg_u32 s{sW}, 0")
    a("s_cbranch_scc1 L_nopub")
    a.c("wave 0: lanes 0..15 = (b, half): sum 7 partials, publish 8 tagged columns each, then poll for this WG's q")
    a(f"v_lshlrev_b32 v{vA0}, 5, v{vLANE}")
    a("s_mov_b64 exec, 0xffff")
    PR = GUR
    for w2 in range(7):
        a(f"ds_read_b128 v[{PR+8*w2}:{PR+8*w2+3}], v{vA0} offset:{QP+512*w2}")
        a(f"ds_read_b128 v[{PR+8*w2+4}:{PR+8*w2+7}], v{vA0} offset:{QP+512*w2+16}")
    a(f"v_lshrrev_b32 v{vA1}, 1, v{vLANE}")
    a(f"v_lshlrev_b32 v{vA1}, 14, v{vA1}")
    a(f"v_and_b32 v{vA0}, 1, v{vLANE}")
    a(f"v_lshl_add_u32 v{vA1}, v{vA0}, 5, v{vA1}")
    a(f"s_lshl_b32 s{sT0}, s{sPH}, 6")
    a(f"s_add_u32 s{sT0}, s{sT0}, {WS_Q}")
    a.c("nonce = returned old value, or our own proposal if the word was still zero")
    a(f"v_readfirstlane_b32 s{sT1}, v{NON}")
    a(f"s_cmp_eq_u32 s{sT1}, 0")
    a(f"s_cselect_b32 s{sT1}, s100, s{sT1}")
    a(f"s_and_b32 s{sNL}, s{sT1}, 0xffff")
    a(f"s_lshr_b32 s{sNH}, s{sT1}, 16")
    a(f"v_mov_b32 v{QD}, s{sNL}")
    a(f"v_mov_b32 v{QD+1}, s{sNH}")
    for w2 in range(1, 7):
        a(f"s_waitcnt lgkmcnt({12-2*w2})")
        for k in range(4):
            a(f"v_pk_add_f32 v[{PR+2*k}:{PR+2*k+1}], v[{PR+2*k}:{PR+2*k+1}], v[{PR+8*w2+2*k}:{PR+8*w2+2*k+1}]")
    for k in range(8):
        a(f"v_cvt_pk_bf16_f32 v{PR+k}, v{PR+k}, v{PR+k}")
    for k in range(8):
        a(f"v_and_or_b32 v{PR+56+k}, v{PR+k}, s{sMASK}, v{QD+(k&1)}")
    a(f"buffer_store_dwordx4 v[{PR+56}:{PR+59}], v{vA1}, s[{dWS}:{dWS+3}], s{sT0} offen sc1")
    a(f"buffer_store_dwordx4 v[{PR+60}:{PR+63}], v{vA1}, s[{dWS}:{dWS+3}], s{sT0} offen offset:16 sc1")
    a("s_mov_b64 exec, -1")
    stamp(a, cfg, 13)
    a(f"s_mov_b32 s{sIT}, 0")
    TX = 24
    a("L_qpoll:")
    a(f"buffer_load_dwordx4 v[{QD}:{QD+3}], v{VQA}, s[{dWS}:{dWS+3}], s{sT3} offen sc1")
    a(f"buffer_load_dwordx4 v[{QD+4}:{QD+7}], v{VQA}, s[{dWS}:{dWS+3}], s{sT3} offen offset:16 sc1")
    a(f"s_add_u32 s{sIT}, s{sIT}, 1")
    a("s_waitcnt vmcnt(0)")
    for k in range(8):
        a(f"v_xor_b32 v{TX+k}, s{sNH if k & 1 else sNL}, v{QD+k}")
    a(f"v_or3_b32 v{TX}, v{TX}, v{TX+1}, v{TX+2}")
    a(f"v_or3_b32 v{TX+3}, v{TX+3}, v{TX+4}, v{TX+5}")
    a(f"v_or3_b32 v{TX}, v{TX}, v{TX+6}, v{TX+7}")
    a(f"v_or_b32 v{TX}, v{TX}, v{TX+3}")
    a(f"v_and_b32 v{TX}, 0xffff, v{TX}")
    a(f"v_cmp_ne_u32 vcc, 0, v{TX}")
    a("s_cbranch_vccz L_qgot")
    a(f"s_cmp_lt_u32 s{sIT}, {SPIN}")
    a("s_cbranch_scc1 L_qpoll")
    a("L_qgot:")
    a(f"s_mov_b32 s{sT0}, 0x07060302")
    for k in range(4):
        a(f"v_perm_b32 v{TX+k}, v{QD+2*k+1}, v{QD+2*k}, s{sT0}")
    a(f"v_lshrrev_b32 v{TX+4}, 1, v{VQA}")
    a(f"ds_write_b128 v{TX+4}, v[{TX}:{TX+3}] offset:{QL}")
    a(f"v_mov_b32 v{TX+5}, {QFL}")
    a(f"v_mov_b32 v{TX+6}, 1")
    a("s_waitcnt lgkmcnt(0)")
    a(f"ds_write_b32 v{TX+5}, v{TX+6}")
    stamp(a, cfg, 14)
    if cfg.get("stamps"):
        a(f"v_writelane_b32 v7, s{sIT}, 15")
    a("L_nopub:")
    a.c("wave 1 clears this workgroup's slot with the sentinel; in half 0 it also zeroes the pair's claim counter")
    a(f"s_cmp_lg_u32 s{sW}, 1")
    a("s_cbranch_scc1 L_noclr")
    for k in range(4):
        a(f"v_mov_b32 v{STG+k}, -1")
    for k in range(4):
        a(f"buffer_store_dwordx4 v[{STG}:{STG+3}], v{vL16}, s[{dWS}:{dWS+3}], s{sSLOT} offen offset:{1024*k} sc1")
    a(f"s_cmp_lg_u32 s{sS}, 0")
    a("s_cbranch_scc1 L_noclr")
    a(f"s_lshl_b32 s{sT0}, s{sBH}, 8")
    a(f"s_add_u32 s{sT0}, s{sT0}, {WS_CLM}")
    a("s_mov_b64 exec, 1")
    a(f"buffer_store_dword v{vO}, v{vO}, s[{dWS}:{dWS+3}], s{sT0} offen sc1")
    a("s_mov_b64 exec, -1")
    a("L_noclr:")
    while kv:
        if PACE < 60:
            a(f"s_waitcnt vmcnt({PACE})")
        kvone()
    a.c("GLU slice j < 28: 64 columns. gu voffset = (lane>>3)*3584 + (lane&7)*16 ; soffset = 112*(w&3)*3584 + j*128")
    a(f"v_lshrrev_b32 v{vA0}, 3, v{vLANE}")
    a(f"v_and_b32 v{vA1}, 7, v{vLANE}")
    a(f"v_mul_u32_u24 v{vGUO}, 3584, v{vA0}")
    a(f"v_lshl_add_u32 v{vGUO}, v{vA1}, 4, v{vGUO}")
    a(f"s_and_b32 s{sT0}, s{sW}, 3")
    a(f"s_mul_i32 s{sGO}, s{sT0}, {112*3584}")
    a(f"s_lshl_b32 s{sT1}, s{sJ}, 7")
    a(f"s_add_u32 s{sGO}, s{sGO}, s{sT1}")
    a.c("slices j >= 28 do not exist: zero-size descriptors make their loads return 0")
    a(f"s_cmp_lt_u32 s{sJ}, 28")
    a(f"s_cselect_b32 s{dGU+2}, s{dGU+2}, 0")
    a(f"s_cselect_b32 s{dWD+2}, s{dWD+2}, 0")
    a(f"s_mov_b32 s{sIT}, 0")
    a(f"v_mov_b32 v{vA0}, {QFL}")
    a(f"v_lshrrev_b32 v{vA1}, 1, v{VQA}")
    a("L_qwait:")
    a(f"ds_read_b32 v24, v{vA0}")
    a(f"ds_read_b128 v[{vQ}:{vQ+3}], v{vA1} offset:{QL}")
    a("s_waitcnt lgkmcnt(0)")
    a(f"v_readfirstlane_b32 s{sT0}, v24")
    a(f"s_cmp_lg_u32 s{sT0}, 0")
    a("s_cbranch_scc1 L_qok")
    a("s_sleep 1")
    a(f"s_add_u32 s{sIT}, s{sIT}, 1")
    a(f"s_cmp_lt_u32 s{sIT}, {SPIN}")
    a("s_cbranch_scc1 L_qwait")
    a("L_qok:")
    a(f"v_and_b32 v{vA1}, 31, v{vLANE}")
    a(f"v_lshlrev_b32 v{vA1}, 5, v{vA1}")
    a(f"v_lshrrev_b32 v{vA0}, 5, v{vLANE}")
    a(f"v_lshl_add_u32 v{vA1}, v{vA0}, 4, v{vA1}")
    a(f"v_mov_b32 v{vM}, {f32(-1e30)}")
    a(f"v_mov_b32 v{vL}, 0")
    a(f"s_mov_b32 s{sIT}, 0")
    a(f"s_mov_b32 s{sPL}, 0x05040100")
    a(f"s_mov_b32 s{sPH}, 0x07060302")
    a(f"s_add_u32 s{sOFF}, s{sOFF}, {NPRE*0x8000}")
    a(f"s_add_u32 s{sOB}, s{sOFF}, {DB}")
    a(f"s_lshl_b32 s{sCNT}, s{sBH}, 8")
    a(f"s_add_u32 s{sCNT}, s{sCNT}, {WS_CLM}")
    stamp(a, cfg, 3)
    if cfg.get("prog"):
        a("s_lshl_b32 s98, s2, 3")
        a(f"s_add_u32 s98, s98, s{sW}")
        a("s_lshl_b32 s98, s98, 8")
        a("s_add_u32 s98, s98, 0x200000")
        a("v_mov_b32 v22, s99")
        a("v_mov_b32 v23, 0")
        a("s_mov_b64 exec, 1")
        a(f"buffer_store_dword v22, v23, s[{dWS}:{dWS+3}], s98 offen")
        a("s_mov_b64 exec, -1")
        a("s_add_u32 s98, s98, 4")
    CZ = f32(0.0625*LOG2E)
    A = 22; Z = 26; P = 27; T = 28; PB = 30; U = 34
    def refill4(R, d, so, fl):
        mode = cfg.get("ldmode", "imm")
        for i in range(4):
            if mode == "sofs":
                a(f"s_add_u32 s{sT2}, s{so}, {i*1024}")
                a(f"buffer_load_dwordx4 v[{R+4*i}:{R+4*i+3}], v{vL16}, s[{d}:{d+3}], s{sT2} offen {fl}")
            else:
                if mode.startswith("nop"):
                    a(f"s_nop {mode[3:]}")
                a(f"buffer_load_dwordx4 v[{R+4*i}:{R+4*i+3}], v{vL16}, s[{d}:{d+3}], s{so} offen offset:{i*1024} {fl}")
    def tile(K, V, lab, refill=True, so=None):
        if refill:
            a(f"s_waitcnt vmcnt({VW})")
        for jj in range(4):
            for i in range(4):
                if jj == 0:
                    a(f"v_dot2_f32_bf16 v{A+i}, v{K+4*i}, v{vQ}, 0")
                else:
                    a(f"v_dot2c_f32_bf16 v{A+i}, v{K+4*i+jj}, v{vQ+jj}")
        if refill:
            refill4(K, dK, so, KF_)
        else:
            a("s_nop 2")
        a(f"v_permlane16_swap_b32 v{A}, v{A+1}")
        a(f"v_permlane16_swap_b32 v{A+2}, v{A+3}")
        a("s_nop 0")
        a(f"v_add_f32 v{A}, v{A}, v{A+1}")
        a(f"v_add_f32 v{A+2}, v{A+2}, v{A+3}")
        a("s_nop 0")
        a(dpp("v_add_f32", Z, A, A, "row_ror:8", bm="0x3"))
        a(dpp("v_add_f32", Z, A+2, A+2, "row_ror:8", bm="0xc"))
        for ctrl in ("quad_perm:[1,0,3,2]", "quad_perm:[2,3,0,1]", "row_half_mirror"):
            a("s_nop 1")
            a(dpp("v_add_f32", Z, Z, Z, ctrl))
        a(f"v_cvt_pk_bf16_f32 v{Z}, v{Z}, v{Z}")
        a(f"v_and_b32 v{Z}, s{sMASK}, v{Z}")
        a(f"v_mul_f32 v{Z}, {CZ}, v{Z}")
        a(f"v_cmp_gt_f32 vcc, v{Z}, v{vM}")
        a(f"s_cbranch_vccnz L_resc{lab}")
        a(f"L_back{lab}:")
        a(f"v_sub_f32 v{P}, v{Z}, v{vM}")
        a(f"v_exp_f32 v{P}, v{P}")
        a("s_nop 0")
        a(f"v_add_f32 v{vL}, v{vL}, v{P}")
        a(f"v_mov_b32 v{T}, v{P}")
        a("s_nop 1")
        a(f"v_permlane16_swap_b32 v{P}, v{T}")
        a("s_nop 1")
        a(f"v_mov_b32_dpp v{PB}, v{P} row_newbcast:0 row_mask:0xf bank_mask:0xf")
        a(f"v_mov_b32_dpp v{PB+1}, v{T} row_newbcast:0 row_mask:0xf bank_mask:0xf")
        a(f"v_mov_b32_dpp v{PB+2}, v{P} row_newbcast:8 row_mask:0xf bank_mask:0xf")
        a(f"v_mov_b32_dpp v{PB+3}, v{T} row_newbcast:8 row_mask:0xf bank_mask:0xf")
        if refill:
            a(f"s_waitcnt vmcnt({VW})")
        for i in range(4):
            axpy_row(a, vO, V+4*i, PB+i, U)
        if refill:
            refill4(V, dV, so, VF_)
    def claim():
        a(f"v_mov_b32 v{vCLM}, 1")
        a(f"v_mov_b32 v{vCHK}, 0")
        a("s_mov_b64 exec, 1")
        a(f"buffer_atomic_add v{vCLM}, v{vCHK}, s[{dWS}:{dWS+3}], s{sCNT} offen sc0 sc1")
        a("s_mov_b64 exec, -1")
    def resc(lab):
        a(f"L_resc{lab}:")
        a(f"v_max_f32 v{T}, v{Z}, v{vM}")
        for ctrl, rm in (("row_ror:8", "0xf"), ("row_bcast:15", "0xa"), ("row_bcast:31", "0xc")):
            a("s_nop 1")
            a(dpp("v_max_f32", T, T, T, ctrl, rm))
        a("s_nop 0")
        a(f"v_readlane_b32 s{sT0}, v{T}, 63")
        a("s_nop 1")
        a(f"v_subrev_f32 v{T}, s{sT0}, v{vM}")
        a(f"v_exp_f32 v{T}, v{T}")
        a(f"v_mov_b32 v{vM}, s{sT0}")
        a(f"v_mul_f32 v{vL}, v{vL}, v{T}")
        for k in range(4):
            a(f"v_pk_mul_f32 v[{vO+2*k}:{vO+2*k+1}], v[{vO+2*k}:{vO+2*k+1}], v[{T}:{T+1}] op_sel_hi:[1,0]")
        a(f"s_branch L_back{lab}")
    a(".p2align 6")
    a("L_loop:")
    tile(KA, VA, "A", so=sOFF)
    tile(KB, VB, "B", so=sOB)
    if cfg.get("stamps") and not cfg.get("epi"):
        for n2, itv in ((9, 2), (10, 5), (11, 8), (12, SI-1)):
            a(f"s_cmp_lg_u32 s{sIT}, {itv}")
            a(f"s_cbranch_scc1 L_nost{n2}")
            stamp(a, cfg, n2)
            a(f"L_nost{n2}:")
    if cfg.get("prog"):
        a("s_memrealtime s[96:97]")
        a("s_waitcnt lgkmcnt(0)")
        a("v_mov_b32 v22, s96")
        a("v_mov_b32 v23, 0")
        a("s_mov_b64 exec, 1")
        a(f"buffer_store_dword v22, v23, s[{dWS}:{dWS+3}], s98 offen")
        a("s_mov_b64 exec, -1")
        a("s_add_u32 s98, s98, 4")
    a(f"s_cmp_ge_u32 s{sIT}, {SI}")
    a("s_cbranch_scc1 L_dyn")
    a(f"s_cmp_lt_u32 s{sIT}, 11")
    a("s_cbranch_scc1 L_job")
    a("L_jobret:")
    a(f"s_add_u32 s{sIT}, s{sIT}, 1")
    a(f"s_add_u32 s{sOFF}, s{sOFF}, 0x10000")
    a(f"s_add_u32 s{sOB}, s{sOB}, 0x10000")
    a(f"s_cmp_lt_u32 s{sIT}, {SI-2}")
    a("s_cbranch_scc1 L_loop")
    a(f"s_cmp_eq_u32 s{sIT}, {SI}")
    a("s_cbranch_scc1 L_dyn0")
    a(f"s_cmp_eq_u32 s{sIT}, {SI-1}")
    a("s_cbranch_scc1 L_clm0")
    a.c("two iterations before the dynamic phase: fetch the per-batch 'slots cleared' counter")
    a(f"s_lshl_b32 s{sT0}, s{sB}, 4")
    a(f"s_add_u32 s{sT0}, s{sT0}, 128")
    a(f"v_mov_b32 v{vCHK}, s{sT0}")
    a(f"global_load_dword v{vCHK}, v{vCHK}, s[{sDBG_}:{sDBG_+1}] sc1")
    a("s_branch L_loop")
    a("L_clm0:")
    a.c("claims are allowed only once the counter's initialisation is known complete")
    a(f"v_readfirstlane_b32 s{sT0}, v{vCHK}")
    a(f"v_mov_b32 v{vCLM}, {NDYN}")
    if cfg.get("dynw", 8) < 8:
        a(f"s_cmp_ge_u32 s{sW}, {cfg['dynw']}")
        a("s_cbranch_scc1 L_loop")
    a(f"s_cmp_lt_u32 s{sT0}, 32")
    a("s_cbranch_scc1 L_noclm")
    claim()
    a("s_branch L_loop")
    a("L_dyn0:")
    a(f"s_mov_b32 s{sVALID}, 1")
    if cfg.get("dynbar", 1):
        a("s_barrier")
    a("L_dyn:")
    a(f"s_cmp_eq_u32 s{sVALID}, 0")
    a("s_cbranch_scc1 L_epi")
    a(f"v_readfirstlane_b32 s{sT0}, v{vCLM}")
    a(f"s_min_u32 s{sT0}, s{sT0}, {NDYN}")
    if cfg.get("dsplit"):
        a(f"s_lshl_b32 s{sOFF}, s{sT0}, 12")
        a(f"s_add_u32 s{sOFF}, s{sOFF}, {16*NST*4096}")
        a(f"s_add_u32 s{sOB}, s{sOFF}, {NDYN*4096}")
        a(f"s_cmp_lt_u32 s{sT0}, {NDYN}")
        a(f"s_cselect_b32 s{sOFF}, s{sOFF}, s{sOB}")
    else:
        a(f"s_lshl_b32 s{sOFF}, s{sT0}, 13")
        a(f"s_add_u32 s{sOFF}, s{sOFF}, {16*NST*4096}")
        a(f"s_add_u32 s{sOB}, s{sOFF}, 0x1000")
        a(f"s_cmp_lt_u32 s{sT0}, {NDYN}")
    a(f"s_cselect_b32 s{sVALID}, 1, 0")
    a("s_cbranch_scc0 L_loop")
    claim()
    a("s_branch L_loop")
    a("L_noclm:")
    a(f"s_cmp_eq_u32 s{sS}, 1")
    a("s_cbranch_scc1 L_loop")
    a.c("half 0 owns the counter: only its own wave 1's init matters; wait for wave 1's gu signal (LDS count 8)")
    a(f"v_mov_b32 v{vCHK}, {CNT}")
    a("L_nocl2:")
    a(f"ds_read_b32 v{vCLM}, v{vCHK}")
    a("s_waitcnt lgkmcnt(0)")
    a(f"v_readfirstlane_b32 s{sT0}, v{vCLM}")
    a(f"s_cmp_lt_u32 s{sT0}, 8")
    a("s_cbranch_scc1 L_nocl2")
    claim()
    a("s_branch L_loop")
    for lab in "ABCDEF"[:NPRE]:
        resc(lab)
    def wo_issue():
        for i in range(4):
            a(f"buffer_load_dwordx4 v[{STG+4*i}:{STG+4*i+3}], v{vL16}, s[{dWO}:{dWO+3}], s{sJO} offen offset:{i*896} {WOF}")
        a(f"s_add_u32 s{sJO}, s{sJO}, {4*896}")
    def gu_issue(g0, g1):
        for g in range(g0, g1):
            a(f"buffer_load_dwordx4 v[{GUR+4*g}:{GUR+4*g+3}], v{vGUO}, s[{dGU}:{dGU+3}], s{sGO} offen {GUF}")
            a(f"s_add_u32 s{sGO}, s{sGO}, {8*3584}")
    G = 38; XG = 22; UG = STG
    a("L_job:")
    a(f"s_cmp_eq_u32 s{sIT}, 0")
    a("s_cbranch_scc1 L_job0")
    a(f"s_cmp_gt_u32 s{sIT}, 8")
    a("s_cbranch_scc1 L_jobwd")
    a.c("slots 1..8: interleave two staged wo row pairs into W + idx")
    a(f"s_set_gpr_idx_on s{sIDX}, 0x8")
    a("s_nop 0")
    for pr in range(2):
        for e in range(4):
            r0 = STG + 8*pr + e; r1 = r0 + 4
            a(f"v_perm_b32 v{W+8*pr+2*e}, v{r1}, v{r0}, s{sPL}")
            a(f"v_perm_b32 v{W+8*pr+2*e+1}, v{r1}, v{r0}, s{sPH}")
    a("s_set_gpr_idx_off")
    a(f"s_add_u32 s{sIDX}, s{sIDX}, 16")
    a(f"s_cmp_eq_u32 s{sIT}, 8")
    a("s_cbranch_scc1 L_job8")
    a(f"s_cmp_eq_u32 s{sIT}, 4")
    a("s_cbranch_scc1 L_job4")
    wo_issue()
    a(f"s_cmp_gt_u32 s{sIT}, 3")
    a("s_cbranch_scc1 L_jobret")
    a(f"s_cmp_eq_u32 s{sIT}, 2")
    a("s_cbranch_scc1 L_job2")
    a(f"s_cmp_eq_u32 s{sIT}, 3")
    a("s_cbranch_scc1 L_job3")
    gu_issue(4, 8)
    a("s_branch L_jobret")
    a("L_job2:")
    gu_issue(8, 11)
    a("s_branch L_jobret")
    a("L_job3:")
    gu_issue(11, 14)
    a("s_branch L_jobret")
    a("L_job8:")
    a.c("w_down rows 64j+8w+i")
    a(f"s_lshl_b32 s{sT0}, s{sJ}, 6")
    a(f"s_lshl_b32 s{sT1}, s{sW}, 3")
    a(f"s_add_u32 s{sT0}, s{sT0}, s{sT1}")
    a(f"s_mul_i32 s{sJO}, s{sT0}, 896")
    for i in range(4):
        a(f"buffer_load_dwordx4 v[{STG+4*i}:{STG+4*i+3}], v{vL16}, s[{dWD}:{dWD+3}], s{sJO} offen offset:{i*896} {WDF}")
    a(f"s_add_u32 s{sJO}, s{sJO}, {4*896}")
    a("s_branch L_jobret")
    a("L_job0:")
    a("s_waitcnt vmcnt(16)")
    a.c("wave 1: its clearing stores are complete (older than everything waited for) -> count them")
    a(f"s_cmp_lg_u32 s{sW}, 1")
    a("s_cbranch_scc1 L_nocnt")
    a(f"s_lshl_b32 s{sT0}, s{sB}, 4")
    a(f"s_add_u32 s{sT0}, s{sT0}, 128")
    a(f"v_mov_b32 v{XG}, s{sT0}")
    a(f"v_mov_b32 v{XG+1}, 1")
    a("s_mov_b64 exec, 1")
    a(f"global_atomic_add v{XG}, v{XG+1}, s[{sDBG_}:{sDBG_+1}] sc1")
    a("s_mov_b64 exec, -1")
    a("L_nocnt:")
    a.c("wo rows h*256+32w+i")
    a(f"s_lshl_b32 s{sT0}, s{sH}, 8")
    a(f"s_lshl_b32 s{sT1}, s{sW}, 5")
    a(f"s_add_u32 s{sT0}, s{sT0}, s{sT1}")
    a(f"s_mul_i32 s{sJO}, s{sT0}, 896")
    a(f"s_mov_b32 s{sIDX}, 0")
    wo_issue()
    if NPRE == 6:
        tile(KE, VE, "E", refill=False)
        tile(KF, VF, "F", refill=False)
    gu_issue(0, 4)
    a.c("tiles C and D (prefetched in the prologue)")
    tile(KC, VC, "C", refill=False)
    tile(KD, VD, "D", refill=False)
    a("s_branch L_jobret")
    a("L_job4:")
    a.c("gate/up partial sums; multipliers xn[b][112*(w&3) + 8i + (lane>>3)]")
    a(f"v_lshrrev_b32 v{vA0}, 3, v{vLANE}")
    a(f"v_lshlrev_b32 v{vA0}, 2, v{vA0}")
    a(f"s_and_b32 s{sT0}, s{sW}, 3")
    a(f"s_mul_i32 s{sT0}, s{sT0}, 448")
    a(f"s_lshl_b32 s{sT1}, s{sB}, 11")
    a(f"s_add_u32 s{sT0}, s{sT0}, s{sT1}")
    a(f"v_add_u32 v{vA0}, s{sT0}, v{vA0}")
    for k in range(7):
        a(f"ds_read2_b32 v[{XG+2*k}:{XG+2*k+1}], v{vA0} offset0:{XT//4+16*k} offset1:{XT//4+16*k+8}")
    for k in range(8):
        a(f"v_mov_b32 v{G+k}, 0")
    a("s_waitcnt lgkmcnt(0)")
    for i in range(14):
        axpy_row(a, G, GUR+4*i, XG+i, UG)
    wo_issue()
    for k in range(4):
        a(f"v_permlane32_swap_b32 v{G+k}, v{G+4+k}")
    a("s_nop 0")
    for k in range(4):
        a(f"v_add_f32 v{G+k}, v{G+k}, v{G+4+k}")
    a("s_nop 0")
    a(f"v_permlane16_swap_b32 v{G}, v{G+2}")
    a(f"v_permlane16_swap_b32 v{G+1}, v{G+3}")
    a("s_nop 0")
    a(f"v_add_f32 v{G}, v{G}, v{G+2}")
    a(f"v_add_f32 v{G+1}, v{G+1}, v{G+3}")
    a.c("LDS addr = GP + w*256 + ((lane&7)*8 + (lane>>3))*4")
    a(f"v_and_b32 v{XG}, 7, v{vLANE}")
    a(f"v_lshrrev_b32 v{XG+1}, 3, v{vLANE}")
    a(dpp("v_add_f32", G+4, G, G, "row_ror:8", bm="0x3"))
    a(dpp("v_add_f32", G+4, G+1, G+1, "row_ror:8", bm="0xc"))
    a(f"v_lshl_add_u32 v{XG}, v{XG}, 3, v{XG+1}")
    a(f"v_lshlrev_b32 v{XG}, 2, v{XG}")
    a(f"s_lshl_b32 s{sT0}, s{sW}, 8")
    a(f"v_add_u32 v{XG}, s{sT0}, v{XG}")
    a(f"ds_write_b32 v{XG}, v{G+4} offset:{GP}")
    a(f"v_mov_b32 v{XG+2}, {CNT}")
    a(f"v_mov_b32 v{XG+3}, 1")
    a("s_waitcnt lgkmcnt(0)")
    a("s_mov_b64 exec, 1")
    a(f"ds_add_u32 v{XG+2}, v{XG+3}")
    a("s_mov_b64 exec, -1")
    a("s_branch L_jobret")
    a("L_jobwd:")
    a(f"v_lshlrev_b32 v{vA0}, 5, v{vLANE}")
    a(f"s_lshl_b32 s{sT0}, s{sW}, 11")
    a(f"v_add_u32 v{vA0}, s{sT0}, v{vA0}")
    a(f"s_cmp_eq_u32 s{sIT}, 10")
    a("s_cbranch_scc1 L_job10")
    a(f"v_mov_b32 v{XG}, {CNT}")
    a("L_cntspin:")
    a(f"ds_read_b32 v{XG+1}, v{XG}")
    a("s_waitcnt lgkmcnt(0)")
    a(f"v_readfirstlane_b32 s{sT0}, v{XG+1}")
    a(f"s_cmp_ge_u32 s{sT0}, 8")
    a("s_cbranch_scc1 L_cntok")
    a("s_sleep 16")
    a("s_branch L_cntspin")
    a("L_cntok:")
    a(f"v_lshlrev_b32 v{XG+8}, 2, v{vLANE}")
    a(f"v_add_u32 v{XG+8}, {GP}, v{XG+8}")
    for k in range(4):
        a(f"ds_read2st64_b32 v[{XG+2*k}:{XG+2*k+1}], v{XG+8} offset0:{2*k} offset1:{2*k+1}")
    for k in range(8):
        a(f"v_mov_b32 v{G+k}, 0")
    a(f"s_lshl_b32 s{sT0}, s{sW}, 3")
    a("s_waitcnt lgkmcnt(0)")
    a(f"v_add_f32 v{XG}, v{XG}, v{XG+1}")
    a(f"v_add_f32 v{XG+2}, v{XG+2}, v{XG+3}")
    a(f"v_add_f32 v{XG+4}, v{XG+4}, v{XG+5}")
    a(f"v_add_f32 v{XG+6}, v{XG+6}, v{XG+7}")
    a(f"v_add_f32 v{XG}, v{XG}, v{XG+2}")
    a(f"v_add_f32 v{XG+4}, v{XG+4}, v{XG+6}")
    bf16_round(a, XG)
    bf16_round(a, XG+4)
    a(f"v_mul_f32 v{XG}, {f32(-LOG2E)}, v{XG}")
    a(f"v_exp_f32 v{XG}, v{XG}")
    a("s_nop 0")
    a(f"v_add_f32 v{XG}, 1.0, v{XG}")
    a(f"v_rcp_f32 v{XG}, v{XG}")
    a("s_nop 0")
    bf16_round(a, XG)
    a(f"v_mul_f32 v{XG}, v{XG}, v{XG+4}")
    bf16_round(a, XG)
    a("s_nop 0")
    for i in range(8):
        a(f"v_readlane_b32 s{sP+i}, v{XG}, s{sT0}")
        a(f"s_add_u32 s{sT0}, s{sT0}, 1")
    a("s_nop 0")
    UW = 30
    for i in range(4):
        axpy_row(a, G, STG+4*i, sP+i, UW, sgpr=True)
    for i in range(4):
        a(f"buffer_load_dwordx4 v[{STG+4*i}:{STG+4*i+3}], v{vL16}, s[{dWD}:{dWD+3}], s{sJO} offen offset:{i*896} {WDF}")
    a(f"ds_write_b128 v{vA0}, v[{G}:{G+3}] offset:{YG}")
    a(f"ds_write_b128 v{vA0}, v[{G+4}:{G+7}] offset:{YG+16}")
    a("s_branch L_jobret")
    a("L_job10:")
    a(f"ds_read_b128 v[{G}:{G+3}], v{vA0} offset:{YG}")
    a(f"ds_read_b128 v[{G+4}:{G+7}], v{vA0} offset:{YG+16}")
    a("s_waitcnt lgkmcnt(0)")
    for i in range(4):
        axpy_row(a, G, STG+4*i, sP+4+i, UW, sgpr=True)
    a(f"ds_write_b128 v{vA0}, v[{G}:{G+3}] offset:{YG}")
    a(f"ds_write_b128 v{vA0}, v[{G+4}:{G+7}] offset:{YG+16}")
    a("s_branch L_jobret")
    a("L_epi:")
    stamp(a, cfg, 4)
    CW = 5
    CL = STG; XR = STG+2
    NCW = cfg.get("ncw", 1)
    a(f"s_sub_u32 s{sT0}, s{sW}, {CW}")
    a(f"s_cmp_ge_u32 s{sT0}, {NCW}")
    a("s_cbranch_scc1 L_epi1")
    a.c("consumer wave: 'slots cleared' counter of batch b, x for the residual")
    a(f"s_lshl_b32 s{sT0}, s{sB}, 4")
    a(f"s_add_u32 s{sT0}, s{sT0}, 128")
    a(f"v_mov_b32 v{CL+1}, s{sT0}")
    a(f"global_load_dword v{CL}, v{CL+1}, s[{sDBG_}:{sDBG_+1}] sc1")
    a(f"v_and_b32 v{CL+4}, 3, v{vLANE}")
    a(f"v_lshlrev_b32 v{CL+4}, 3, v{CL+4}")
    a(f"s_mul_i32 s{sT1}, s{sB}, 896")
    srd(a, dX, sX_, f"s{sT1}", 896)
    a(f"s_lshl_b32 s{sT0}, s{sJ}, 5")
    a(f"buffer_load_dwordx2 v[{XR}:{XR+1}], v{CL+4}, s[{dX}:{dX+3}], s{sT0} offen")
    a("L_epi1:")
    a(dpp("v_add_f32", vL, vL, vL, "row_ror:8"))
    for k in range(4):
        a(f"v_permlane32_swap_b32 v{vO+k}, v{vO+4+k}")
    a(dpp("v_add_f32", vL, vL, vL, "row_bcast:15", "0xa"))
    for k in range(4):
        a(f"v_add_f32 v{vO+k}, v{vO+k}, v{vO+4+k}")
    a(dpp("v_add_f32", vL, vL, vL, "row_bcast:31", "0xc"))
    a(f"s_mul_i32 s{sT0}, s{sW}, {OPS}")
    a(f"v_add_u32 v{vA0}, s{sT0}, v{vA1}")
    a(f"ds_write_b128 v{vA0}, v[{vO}:{vO+3}] offset:{OP}")
    a(f"s_lshl_b32 s{sT0}, s{sW}, 3")
    a(f"v_mov_b32 v{vA0}, s{sT0}")
    a("s_lshl_b64 exec, 1, 63")
    a(f"ds_write_b64 v{vA0}, v[{vM}:{vL}] offset:{ML}")
    a("s_mov_b64 exec, -1")
    R = 22
    a(f"v_and_b32 v{R}, 7, v{vLANE}")
    a(f"v_lshlrev_b32 v{vA0}, 3, v{R}")
    a(f"v_mul_u32_u24 v{R}, {OPS}, v{R}")
    a(f"v_lshrrev_b32 v{R+1}, 3, v{vLANE}")
    a(f"v_lshl_add_u32 v{R}, v{R+1}, 4, v{R}")
    a(f"s_lshl_b32 s{sT0}, s{sW}, 7")
    a(f"v_add_u32 v{R}, s{sT0}, v{R}")
    a("s_waitcnt lgkmcnt(0)")
    a("s_barrier")
    MX = 24; O4 = 28; MM = 26; Y = 32
    if cfg.get("epi"): stamp(a, cfg, 9)
    a(f"ds_read_b64 v[{MX}:{MX+1}], v{vA0} offset:{ML}")
    a(f"ds_read_b128 v[{O4}:{O4+3}], v{R} offset:{OP}")
    for k in range(8):
        a(f"v_mov_b32 v{Y+k}, 0")
    a("s_waitcnt lgkmcnt(1)")
    a(dpp("v_max_f32", MM, MX, MX, "quad_perm:[1,0,3,2]"))
    a("s_nop 1")
    a(dpp("v_max_f32", MM, MM, MM, "quad_perm:[2,3,0,1]"))
    a("s_nop 1")
    a(dpp("v_max_f32", MM, MM, MM, "row_half_mirror"))
    a(f"v_sub_f32 v{MX}, v{MX}, v{MM}")
    a(f"v_exp_f32 v{MX}, v{MX}")
    a("s_waitcnt lgkmcnt(0)")
    a(f"v_mul_f32 v{MM+1}, v{MX+1}, v{MX}")
    for k in range(4):
        a(f"v_mul_f32 v{O4+k}, v{O4+k}, v{MX}")
    for ctrl in ("quad_perm:[1,0,3,2]", "quad_perm:[2,3,0,1]", "row_half_mirror"):
        a(dpp("v_add_f32", MM+1, MM+1, MM+1, ctrl))
        for k in range(4):
            a(dpp("v_add_f32", O4+k, O4+k, O4+k, ctrl))
    a(f"v_cvt_pk_bf16_f32 v{O4}, v{O4}, v{O4+1}")
    a(f"v_cvt_pk_bf16_f32 v{O4+1}, v{O4+2}, v{O4+3}")
    a("s_nop 0")
    for dq in range(8):
        a(f"v_readlane_b32 s{sP+2*dq}, v{O4}, {8*dq}")
        a(f"v_readlane_b32 s{sP+2*dq+1}, v{O4+1}, {8*dq}")
    a(f"v_lshlrev_b32 v{vA0}, 5, v{vLANE}")
    a(f"s_lshl_b32 s{sT0}, s{sW}, 11")
    a(f"v_add_u32 v{vA0}, s{sT0}, v{vA0}")
    if cfg.get("epi"): stamp(a, cfg, 10)
    for k in range(16):
        for e in range(8):
            a(f"v_dot2c_f32_bf16 v{Y+e}, s{sP+k}, v{W+8*k+e}")
    a("s_nop 3")
    if cfg.get("epi"): stamp(a, cfg, 11)
    a(f"ds_write_b128 v{vA0}, v[{Y}:{Y+3}] offset:{YA}")
    a(f"ds_write_b128 v{vA0}, v[{Y+4}:{Y+7}] offset:{YA+16}")
    a("s_waitcnt lgkmcnt(0)")
    a("s_barrier")
    stamp(a, cfg, 5)
    a(f"s_sub_u32 s{sT0}, s{sW}, {CW}")
    a(f"s_cmp_lt_u32 s{sT0}, {NCW}")
    a("s_cbranch_scc1 L_cons")
    a(f"s_cmp_gt_u32 s{sW}, 4")
    a("s_cbranch_scc1 L_fin")
    a(f"s_cmp_eq_u32 s{sW}, 4")
    a("s_cbranch_scc1 L_stml")
    a.c("waves 0,1: YA ; waves 2,3: YG ; n = (w&1)*64 + lane < 112")
    a(f"s_and_b32 s{sT0}, s{sW}, 1")
    a(f"s_lshl_b32 s{sT0}, s{sT0}, 10")
    a(f"v_add_u32 v{vA0}, s{sT0}, v{vL16}")
    a(f"s_lshr_b32 s{sT1}, s{sW}, 1")
    a(f"s_mov_b32 s{sT0}, {YA}")
    a(f"s_cmp_eq_u32 s{sT1}, 0")
    a(f"s_cselect_b32 s{sT0}, s{sT0}, {YG}")
    a(f"v_add_u32 v{R}, s{sT0}, v{vA0}")
    rds = [24, 28, 32, 36, 40, 44, 48, 52]
    for w2 in range(8):
        a(f"ds_read_b128 v[{rds[w2]}:{rds[w2]+3}], v{R} offset:{2048*w2}")
    a(f"s_mul_i32 s{sT1}, s{sT1}, 1792")
    a(f"s_add_u32 s{sT0}, s{sSLOT}, s{sT1}")
    a(f"v_cmp_gt_u32 vcc, 1792, v{vA0}")
    RD = rds[0]
    for w2 in range(1, 8):
        a(f"s_waitcnt lgkmcnt({7-w2})")
        a(f"v_pk_add_f32 v[{RD}:{RD+1}], v[{RD}:{RD+1}], v[{rds[w2]}:{rds[w2]+1}]")
        a(f"v_pk_add_f32 v[{RD+2}:{RD+3}], v[{RD+2}:{RD+3}], v[{rds[w2]+2}:{rds[w2]+3}]")
    a("s_and_saveexec_b64 s[100:101], vcc")
    a(f"buffer_store_dwordx4 v[{RD}:{RD+3}], v{vA0}, s[{dWS}:{dWS+3}], s{sT0} offen sc1")
    a("s_mov_b64 exec, -1")
    if cfg.get("epi"): stamp(a, cfg, 12)
    a("s_branch L_fin")
    a("L_stml:")
    a(f"v_mov_b32 v{vA0}, 3584")
    a("s_mov_b64 exec, 1")
    a(f"buffer_store_dwordx2 v[{MM}:{MM+1}], v{vA0}, s[{dWS}:{dWS+3}], s{sSLOT} offen sc1")
    a("s_mov_b64 exec, -1")
    a("s_branch L_fin")
    a("L_cons:")
    a(f"s_cmp_ge_u32 s{sJ}, 28")
    a("s_cbranch_scc1 L_fin")
    VO_, VM_ = 22, 23
    a(f"v_lshrrev_b32 v{VM_}, 2, v{vLANE}")
    a(f"v_lshlrev_b32 v{VM_}, 12, v{VM_}")
    a(f"v_and_b32 v{VO_}, 3, v{vLANE}")
    a(f"v_lshl_add_u32 v{VO_}, v{VO_}, 4, v{VM_}")
    a(f"s_lshl_b32 s{sT0}, s{sB}, 17")
    a(f"s_lshl_b32 s{sT1}, s{sJ}, 6")
    a(f"s_add_u32 s{sT1}, s{sT1}, s{sT0}")
    a(f"s_add_u32 s{sT2}, s{sT1}, 0x10000")
    a(f"s_add_u32 s{sT3}, s{sT0}, 0x10000")
    a(f"s_mov_b32 s{sIT}, 0")
    a("s_waitcnt vmcnt(0)")
    a("L_clrchk:")
    a(f"v_cmp_gt_u32 vcc, 32, v{CL}")
    a("s_cbranch_vccz L_poll0")
    a("s_sleep 8")
    a(f"global_load_dword v{CL}, v{CL+1}, s[{sDBG_}:{sDBG_+1}] sc1")
    a(f"s_add_u32 s{sIT}, s{sIT}, 1")
    a(f"s_cmp_lt_u32 s{sIT}, {SPIN}")
    a("s_waitcnt vmcnt(0)")
    a("s_cbranch_scc1 L_clrchk")
    a("L_poll0:")
    A0, A1, G0, G1, M0, M1 = 24, 28, 32, 36, 40, 42
    loads = [
        (A0, 4, VO_, sT1, 0), (A1, 4, VO_, sT2, 0), (G0, 4, VO_, sT1, 1792), (G1, 4, VO_, sT2, 1792),
        (M0, 2, VM_, sT0, 3584), (M1, 2, VM_, sT3, 3584)]
    masks = [sP + 2*i for i in range(6)]
    for m in masks:
        a(f"s_mov_b64 s[{m}:{m+1}], -1")
    a(f"s_mov_b32 s{sIT}, 0")
    DN = 46
    if NCW > 1:
        a(f"v_mov_b32 v{DN}, {CNT+8}")
        a(f"v_mov_b32 v{DN+1}, 1")
        for k in range(1, NCW):
            a(f"s_cmp_lt_u32 s{sW}, {CW+k}")
            a("s_cbranch_scc1 L_poll")
            a(f"s_sleep {cfg.get('stag', 10)}")
    a("L_poll:")
    for n2, ((r, cnt, vo, so, off), m) in enumerate(zip(loads, masks)):
        a(f"s_mov_b64 exec, s[{m}:{m+1}]")
        a(f"s_cbranch_execz L_skip{n2}")
        a(f"buffer_load_dwordx{cnt} v[{r}:{r+cnt-1}], v{vo}, s[{dWS}:{dWS+3}], s{so} offen offset:{off} sc1")
        a(f"L_skip{n2}:")
    a("s_mov_b64 exec, -1")
    a("s_waitcnt vmcnt(0)")
    TM = 44
    for (r, cnt, vo, so, off), m in zip(loads, masks):
        if cnt == 4:
            a(f"v_max3_u32 v{TM}, v{r}, v{r+1}, v{r+2}")
            a(f"v_max_u32 v{TM}, v{TM}, v{r+3}")
        else:
            a(f"v_max_u32 v{TM}, v{r}, v{r+1}")
        a(f"v_cmp_eq_u32 s[{m}:{m+1}], -1, v{TM}")
    a("s_nop 1")
    a(f"s_or_b64 s[100:101], s[{masks[0]}:{masks[0]+1}], s[{masks[1]}:{masks[1]+1}]")
    for m in masks[2:]:
        a(f"s_or_b64 s[100:101], s[100:101], s[{m}:{m+1}]")
    a("s_cbranch_scc0 L_ready")
    if NCW > 1:
        a.c("another consumer wave of this workgroup may already have finished the job")
        a(f"ds_read_b32 v{TM}, v{DN}")
        a("s_waitcnt lgkmcnt(0)")
        a(f"v_readfirstlane_b32 s{sIDX}, v{TM}")
        a(f"s_cmp_lg_u32 s{sIDX}, 0")
        a("s_cbranch_scc1 L_fin")
    a(f"s_add_u32 s{sIT}, s{sIT}, 1")
    a(f"s_cmp_lt_u32 s{sIT}, {SPIN}")
    if SLEEP:
        a(f"s_sleep {SLEEP}")
    a("s_cbranch_scc1 L_poll")
    a("L_ready:")
    if NCW > 1:
        a(f"ds_write_b32 v{DN}, v{DN+1}")
    stamp(a, cfg, 6)
    for M in (M0, M1):
        a(dpp("v_max_f32", TM + (M == M1), M, M, "row_half_mirror"))
    for M in (M0, M1):
        a(f"v_sub_f32 v{M}, v{M}, v{TM + (M == M1)}")
    for M in (M0, M1):
        a(f"v_exp_f32 v{M}, v{M}")
    a("s_nop 0")
    for M in (M0, M1):
        a(f"v_mul_f32 v{M+1}, v{M+1}, v{M}")
    a("s_nop 0")
    for M in (M0, M1):
        a(dpp("v_add_f32", M+1, M+1, M+1, "row_half_mirror"))
    for M in (M0, M1):
        a(f"v_rcp_f32 v{M+1}, v{M+1}")
    a(f"v_pk_add_f32 v[{G0}:{G0+1}], v[{G0}:{G0+1}], v[{G1}:{G1+1}]")
    a(f"v_pk_add_f32 v[{G0+2}:{G0+3}], v[{G0+2}:{G0+3}], v[{G1+2}:{G1+3}]")
    for M in (M0, M1):
        a(f"v_mul_f32 v{M}, v{M}, v{M+1}")
    a(f"v_pk_mul_f32 v[{A0}:{A0+1}], v[{A0}:{A0+1}], v[{M0}:{M0+1}] op_sel_hi:[1,0]")
    a(f"v_pk_mul_f32 v[{A0+2}:{A0+3}], v[{A0+2}:{A0+3}], v[{M0}:{M0+1}] op_sel_hi:[1,0]")
    a(pkfma_bcast(A0, A1, M1))
    a(pkfma_bcast(A0+2, A1+2, M1))
    regs8 = [G0, G0+1, G0+2, G0+3, A0, A0+1, A0+2, A0+3]
    for ctrl in ("row_ror:4", "row_ror:8"):
        for r in regs8:
            a(dpp("v_add_f32", r, r, r, ctrl))
    a("s_nop 0")
    for k in range(4):
        a(f"v_permlane32_swap_b32 v{A0+k}, v{G0+k}")
    a("s_nop 0")
    for k in range(4):
        a(f"v_add_f32 v{A0+k}, v{A0+k}, v{G0+k}")
    for k in range(4):
        a(f"v_mov_b32 v{G0+k}, v{A0+k}")
    a("s_nop 0")
    for k in range(4):
        a(f"v_permlane16_swap_b32 v{A0+k}, v{G0+k}")
    a("s_nop 0")
    for k in range(4):
        a(f"v_add_f32 v{A0+k}, v{A0+k}, v{G0+k}")
    for k in range(4):
        bf16_round(a, A0+k)
    for k in range(4):
        a(f"v_mov_b32 v{G0+k}, v{A0+k}")
    a(f"v_lshlrev_b32 v{A1}, 16, v{XR}")
    a(f"v_and_b32 v{A1+1}, s{sMASK}, v{XR}")
    for k in range(4):
        a(f"v_permlane32_swap_b32 v{A0+k}, v{G0+k}")
    a(f"v_lshlrev_b32 v{A1+2}, 16, v{XR+1}")
    a(f"v_and_b32 v{A1+3}, s{sMASK}, v{XR+1}")
    for k in range(4):
        a(f"v_add_f32 v{A0+k}, v{A0+k}, v{A1+k}")
    for k in range(4):
        bf16_round(a, A0+k)
    for k in range(4):
        a(f"v_add_f32 v{A0+k}, v{A0+k}, v{G0+k}")
    a(f"v_cvt_pk_bf16_f32 v{A0}, v{A0}, v{A0+1}")
    a(f"v_cvt_pk_bf16_f32 v{A0+1}, v{A0+2}, v{A0+3}")
    a(f"s_mul_i32 s{sT1}, s{sB}, 896")
    srd(a, dGU, sOUT_, f"s{sT1}", 896)
    a(f"s_lshl_b32 s{sT0}, s{sJ}, 5")
    a("s_mov_b64 exec, 15")
    a(f"buffer_store_dwordx2 v[{A0}:{A0+1}], v{CL+4}, s[{dGU}:{dGU+3}], s{sT0} offen {cfg.get('outf','')}")
    a("s_mov_b64 exec, -1")
    a("L_fin:")
    if cfg.get("stamps"):
        a("s_waitcnt vmcnt(0)")
        stamp(a, cfg, 7)
        a("v_writelane_b32 v7, s98, 0")
        a("s_getreg_b32 s96, hwreg(HW_REG_XCC_ID)")
        a("v_writelane_b32 v7, s96, 8")
        a(f"s_lshl_b32 s{sT0}, s2, 3")
        a(f"s_add_u32 s{sT0}, s{sT0}, s{sW}")
        a(f"s_lshl_b32 s{sT0}, s{sT0}, 6")
        a(f"s_add_u32 s{sT0}, s{sT0}, 0x200000")
        a(f"v_lshlrev_b32 v{vA0}, 2, v{vLANE}")
        a("s_mov_b64 exec, 0xffff")
        a(f"buffer_store_dword v7, v{vA0}, s[{dWS}:{dWS+3}], s{sT0} offen")
    a("L_end:")
    a("s_endpgm")
    hdr = open(REF).read().split("; Override launch")[0] if os.path.exists(REF) else ""
    return hdr + f"""; @launch grid=(256,1,1) block=(512,1,1) lds={LDS_BYTES}
.amdgcn_target "amdgcn-amd-amdhsa--gfx950"
.text
.globl {KN}
.p2align 8
.type {KN},@function
{KN}:
""" + a.text() + f""".section .rodata,"a"
.p2align 6
.amdhsa_kernel {KN}
  .amdhsa_next_free_vgpr 256
  .amdhsa_next_free_sgpr 102
  .amdhsa_accum_offset 256
  .amdhsa_group_segment_fixed_size 0
  .amdhsa_kernarg_size 96
  .amdhsa_user_sgpr_count 2
  .amdhsa_user_sgpr_kernarg_segment_ptr 1
  .amdhsa_system_sgpr_workgroup_id_x 1
.end_amdhsa_kernel
"""

if __name__ == "__main__":
    name = sys.argv[1]
    cfg = json.loads(sys.argv[2]) if len(sys.argv) > 2 else {}
    open(name, "w").write(gen(cfg))
```

```python
import struct, sys, os, json

KN = "parallel_sum__mha_block_cached__glu_gated_glu__decode_kernel"
REF = "parallel_sum__mha_block_cached__glu_gated_glu__decode.s.ref"
LOG2E = 1.4426950408889634

DOC = '''; Fused LayerNorm + q-projection + decode attention + output projection + GLU + residual, one launch.
;   * the last 3/16 of each head's keys are claimed tile pair by tile pair by the two workgroups of that head.
'''

def f32(x):
    return "0x%08x" % struct.unpack("<I", struct.pack("<f", x))[0]

class Asm:
    def __init__(self):
        self.lines = []
        self.vm = []
    def __call__(self, s):
        for l in s.strip("\n").split("\n"):
            self.lines.append("  " + l.strip() if not l.strip().endswith(":") else l.strip())
    def c(self, s):
        self.lines.append("  ; " + s)
    def vmem(self, s, tag):
        self(s); self.vm.append(tag)
    def wait_tag(self, tag):
        idx = max(i for i, t in enumerate(self.vm) if t == tag)
        n = len(self.vm) - 1 - idx
        self(f"s_waitcnt vmcnt({n})")
        self.vm = self.vm[idx+1:]
    def text(self):
        return "\n".join(self.lines) + "\n"

XT   = 0
QP   = 16384
GP   = QP + 4096
YG   = GP + 2048
OP   = YG + 16384
OPS  = 1040
ML   = OP + 8*OPS
CNT  = ML + 64
QFL  = CNT + 4
QL   = CNT + 64
YA   = QL + 512
LDS_BYTES = YA + 16384
SLOT = 4096
WS_CLM = 0x180000
WS_Q   = 0x1A0000

sBH = 3
sX_, sK_, sV_, sWQ_, sWO_, sBX_, sWG_, sWU_ = 4, 6, 8, 10, 12, 14, 16, 18
sWD_, sOUT_, sDBG_, sWS_ = 20, 22, 24, 26
dK, dV, dWQ, dGU, dX, dWO, dWD, dWS = 28, 32, 36, 40, 44, 48, 52, 56
sW, sB, sH, sS, sJ, sIT, sOFF, sT0, sT1, sMASK, sT2, sT3 = 60, 61, 62, 63, 64, 65, 66, 67, 68, 69, 70, 71
sP = 72
sO1, sO2, sO3 = 88, 89, 90
sOB, sVALID, sCNT = 88, 89, 90
sJO, sIDX, sPL, sPH, sSLOT = 91, 92, 93, 94, 95
sST = 92
sPR = 74
sO4, sO5 = 75, 76
KE, VE, KF, VF = 192, 208, 224, 240
sGO = 87
sNL, sNH = 72, 73
vLANE, vL16, vWQO, vGUO, vA0, vA1 = 1, 2, 3, 4, 5, 6
vCLM, vCHK = 3, 46
vQ = 8
vO = 12
vM, vL = 20, 21
STG = 48
KA, VA, KB, VB = 64, 80, 96, 112
W = 128
KC, VC, KD, VD = 128, 144, 160, 176
GUR = 192

def srd(a, d, base, off_s, nrec):
    if off_s is None:
        a(f"s_mov_b32 s{d}, s{base}")
        a(f"s_mov_b32 s{d+1}, s{base+1}")
    else:
        a(f"s_add_u32 s{d}, s{base}, {off_s}")
        a(f"s_addc_u32 s{d+1}, s{base+1}, 0")
    a(f"s_mov_b32 s{d+2}, {nrec}")
    a(f"s_mov_b32 s{d+3}, 0x00020000")

def dpp(op, d, s0, s1, ctrl, rm="0xf", bm="0xf"):
    return f"{op}_dpp v{d}, v{s0}, v{s1} {ctrl} row_mask:{rm} bank_mask:{bm}"

def reduce64(a, op, v, sdst):
    for ctrl, rm in (("quad_perm:[1,0,3,2]", "0xf"), ("quad_perm:[2,3,0,1]", "0xf"), ("row_half_mirror", "0xf"),
                     ("row_mirror", "0xf"), ("row_bcast:15", "0xa"), ("row_bcast:31", "0xc")):
        a("s_nop 1")
        a(dpp(op, v, v, v, ctrl, rm))
    a("s_nop 0")
    a(f"v_readlane_b32 s{sdst}, v{v}, 63")

def bsel(m):
    return "op_sel:[0,1,0] op_sel_hi:[1,1,1]" if m & 1 else "op_sel_hi:[1,0,1]"

def pkfma_bcast(acc, u, m, sgpr=False):
    r = "s" if sgpr else "v"
    base = m & ~1
    return f"v_pk_fma_f32 v[{acc}:{acc+1}], v[{u}:{u+1}], {r}[{base}:{base+1}], v[{acc}:{acc+1}] {bsel(m)}"

def unpack(a, data, tmp):
    for k in range(4):
        a(f"v_lshlrev_b32 v{tmp+2*k}, 16, v{data+k}")
        a(f"v_and_b32 v{tmp+2*k+1}, s{sMASK}, v{data+k}")

def axpy_row(a, acc, data, m, tmp, sgpr=False):
    unpack(a, data, tmp)
    for k in range(4):
        a(pkfma_bcast(acc+2*k, tmp+2*k, m, sgpr))

def bf16_round(a, v):
    a(f"v_cvt_pk_bf16_f32 v{v}, v{v}, v{v}")
    a(f"v_and_b32 v{v}, s{sMASK}, v{v}")

def stamp(a, cfg, idx):
    if cfg.get("stamps"):
        a("s_memrealtime s[96:97]")
        a("s_waitcnt lgkmcnt(0)")
        a(f"v_writelane_b32 v7, s96, {idx}")

def gen(cfg):
    KVF = cfg.get("kvflags", "nt")
    KF_ = cfg.get("kf", KVF); VF_ = cfg.get("vf", KVF)
    WF = cfg.get("wflags", "")
    WQF = cfg.get("wqf", WF); WOF = cfg.get("wof", WF); GUF = cfg.get("guf", WF); WDF = cfg.get("wdf", WF)
    SLEEP = cfg.get("sleep", 4)
    VW = cfg.get("vw", 12)
    PACE = cfg.get("pace", 3)
    SI = cfg.get("si", 11)
    NPRE = cfg.get("npre", 4)
    NST = NPRE + 2*SI
    NDYN = (512 - 16*NST)//2
    SPIN = 0x200000
    a = Asm()
    a("s_cmp_ge_u32 s2, 256")
    a("s_cbranch_scc1 L_end")
    a("s_load_dwordx16 s[4:19], s[0:1], 0")
    a("s_load_dwordx8 s[20:27], s[0:1], 64")
    if cfg.get("stamps"):
        a("v_mov_b32 v7, 0")
        a("s_memrealtime s[98:99]")
    if cfg.get("prog"):
        a("s_memrealtime s[98:99]")
        a("s_waitcnt lgkmcnt(0)")
        a("s_mov_b32 s99, s98")
    a(f"v_and_b32 v{vLANE}, 63, v0")
    a(f"v_lshrrev_b32 v{vA0}, 6, v0")
    a(f"v_lshlrev_b32 v{vL16}, 4, v{vLANE}")
    a(f"v_readfirstlane_b32 s{sW}, v{vA0}")
    a.c("decode workgroup id: xcd=g&7, e=(g>>3)&1, s=(g>>4)&1, b=g>>5; the two key halves of a head sit on xcd i and i+1+2e")
    a(f"s_and_b32 s{sT0}, s2, 7")
    a(f"s_bfe_u32 s{sT1}, s2, 0x10003")
    a(f"s_bfe_u32 s{sS}, s2, 0x10004")
    a(f"s_lshr_b32 s{sB}, s2, 5")
    if cfg.get("pair", "xor") == "k44":
        a(f"s_lshl_b32 s{sT2}, s{sT1}, 1")
        a(f"s_add_u32 s{sT2}, s{sT2}, 1")
        a(f"s_mul_i32 s{sT2}, s{sT2}, s{sS}")
        a(f"s_sub_u32 s{sT0}, s{sT0}, s{sT2}")
        a(f"s_and_b32 s{sT0}, s{sT0}, 7")
    elif cfg.get("pair", "xor") == "xor":
        a(f"s_lshl_b32 s{sT2}, s{sT1}, 1")
        a(f"s_add_u32 s{sT2}, s{sT2}, 3")
        a(f"s_mul_i32 s{sT2}, s{sT2}, s{sS}")
        a(f"s_xor_b32 s{sT0}, s{sT0}, s{sT2}")
    elif cfg.get("pair") == "tab":
        inv0, inv1 = cfg["inv0"], cfg["inv1"]
        pk = lambda t: sum(v << (4*i) for i, v in enumerate(t))
        a(f"s_mov_b32 s{sT2}, {pk(inv0):#x}")
        a(f"s_cmp_eq_u32 s{sT1}, 0")
        a(f"s_cselect_b32 s{sT2}, s{sT2}, {pk(inv1):#x}")
        a(f"s_cmp_eq_u32 s{sS}, 0")
        a(f"s_cselect_b32 s{sT2}, 0x76543210, s{sT2}")
        a(f"s_lshl_b32 s{sT0}, s{sT0}, 2")
        a(f"s_lshr_b32 s{sT0}, s{sT2}, s{sT0}")
        a(f"s_and_b32 s{sT0}, s{sT0}, 7")
    a(f"s_lshl_b32 s{sH}, s{sT0}, 1")
    a(f"s_add_u32 s{sH}, s{sH}, s{sT1}")
    a(f"s_lshl_b32 s{sJ}, s{sH}, 1")
    a(f"s_add_u32 s{sJ}, s{sJ}, s{sS}")
    a(f"s_mov_b32 s{sMASK}, 0xffff0000")
    a.c("wq slice voffset = (lane>>1)*8192 + (lane&1)*16")
    a(f"v_lshrrev_b32 v{vA0}, 1, v{vLANE}")
    a(f"v_and_b32 v{vA1}, 1, v{vLANE}")
    a(f"v_lshlrev_b32 v{vWQO}, 13, v{vA0}")
    a(f"v_lshl_add_u32 v{vWQO}, v{vA1}, 4, v{vWQO}")
    a(f"s_lshl_b32 s{sBH}, s{sB}, 4")
    a(f"s_add_u32 s{sBH}, s{sBH}, s{sH}")
    a(f"s_lshl_b32 s{sT0}, s{sBH}, 21")
    a(f"s_mul_i32 s{sT1}, s{sW}, 896")
    a.c("p = s*8 + b ; flag byte index = h*16 + p ; wq column byte offset = h*512 + p*32")
    a(f"s_lshl_b32 s{sPL}, s{sS}, 3")
    a(f"s_add_u32 s{sPL}, s{sPL}, s{sB}")
    a(f"s_lshl_b32 s{sPH}, s{sH}, 4")
    a(f"s_add_u32 s{sPH}, s{sPH}, s{sPL}")
    a(f"s_lshl_b32 s{sT2}, s{sPH}, 5")
    a(f"s_sub_u32 s{sT3}, {448*8192}, s{sT2}")
    ADJ = cfg.get("adj", 0)
    DB = 0x1000 if ADJ else 0x8000
    a(f"s_lshl_b32 s{sOFF}, s{sW}, {13 if ADJ else 12}")
    a(f"s_mul_i32 s{sO1}, s{sS}, {NST*8*4096}")
    a(f"s_add_u32 s{sOFF}, s{sOFF}, s{sO1}")
    a(f"s_sub_u32 s{sPR}, 7, s{sW}")
    a(f"s_lshl_b32 s{sIT}, s{sPR}, 19")
    a(f"s_add_u32 s{sJO}, s{sIT}, 0x40000")
    a(f"s_add_u32 s{sO1}, s{sOFF}, {DB}")
    a(f"s_add_u32 s{sO2}, s{sOFF}, 0x10000")
    a(f"s_add_u32 s{sO3}, s{sOFF}, {0x10000+DB}")
    a(f"s_add_u32 s{sO4}, s{sOFF}, 0x20000")
    a(f"s_add_u32 s{sO5}, s{sOFF}, {0x20000+DB}")
    a("s_waitcnt lgkmcnt(0)")
    X4 = 24; WQ0 = 56; WQ1 = 60
    srd(a, dX, sX_, f"s{sT1}", 896)
    a.vmem(f"buffer_load_dwordx4 v[{X4}:{X4+3}], v{vL16}, s[{dX}:{dX+3}], 0 offen", "x")
    srd(a, dWQ, sWQ_, f"s{sT2}", f"s{sT3}")
    a.vmem(f"buffer_load_dwordx4 v[{WQ0}:{WQ0+3}], v{vWQO}, s[{dWQ}:{dWQ+3}], s{sIT} offen {WQF}", "wq0")
    a.vmem(f"buffer_load_dwordx4 v[{WQ1}:{WQ1+3}], v{vWQO}, s[{dWQ}:{dWQ+3}], s{sJO} offen {WQF}", "wq1")
    a.c("launch nonce of this head: first arriver's clock value, agreed through a compare-swap on zeroed d_debug")
    NON = 20
    a(f"s_cmp_lg_u32 s{sW}, 0")
    a("s_cbranch_scc1 L_nonon")
    a("s_memrealtime s[100:101]")
    a(f"s_lshl_b32 s{sT1}, s{sH}, 3")
    a(f"v_mov_b32 v{vA0}, s{sT1}")
    a(f"v_mov_b32 v{NON+1}, 0")
    a("s_waitcnt lgkmcnt(0)")
    a("s_or_b32 s100, s100, 1")
    a(f"v_mov_b32 v{NON}, s100")
    a("s_mov_b64 exec, 1")
    a(f"global_atomic_cmpswap v{NON}, v{vA0}, v[{NON}:{NON+1}], s[{sDBG_}:{sDBG_+1}] sc0 sc1")
    a("s_mov_b64 exec, -1")
    a("L_nonon:")
    srd(a, dK, sK_, f"s{sT0}", 0x200000)
    srd(a, dV, sV_, f"s{sT0}", 0x200000)
    if cfg.get("bar0", 1):
        a("s_barrier")
    kv = []
    for (K, V, so) in ((KA, VA, sOFF), (KB, VB, sO1), (KC, VC, sO2), (KD, VD, sO3), (KE, VE, sO4), (KF, VF, sO5))[:NPRE]:
        kv += [(K, dK, so, i) for i in range(4)] + [(V, dV, so, i) for i in range(4)]
    def kvone():
        base, d, so, i = kv.pop(0)
        a.vmem(f"buffer_load_dwordx4 v[{base+4*i}:{base+4*i+3}], v{vL16}, s[{d}:{d+3}], s{so} offen offset:{i*1024} {KF_ if d == dK else VF_}", "kv")
    def sprinkle(start, every, count):
        body = a.lines[start:]
        del a.lines[start:]
        k = 0
        for n_, l in enumerate(body):
            a.lines.append(l)
            if k < count and n_ % every == every-1 and not l.strip().startswith(("s_waitcnt vmcnt", ";")):
                kvone(); k += 1
        while k < count:
            kvone(); k += 1
    def kvgroup(paced):
        for _ in range(4):
            base, d, so, i = kv.pop(0)
            a.vmem(f"buffer_load_dwordx4 v[{base+4*i}:{base+4*i+3}], v{vL16}, s[{d}:{d+3}], s{so} offen offset:{i*1024} {KF_ if d == dK else VF_}", "kv")
            if paced:
                a(f"s_waitcnt vmcnt({PACE})")
    for _ in range(cfg.get("n0", 4)):
        kvone()
    stamp(a, cfg, 1)
    srd(a, dWS, sWS_, None, 0x400000)
    a(f"s_lshl_b32 s{sSLOT}, s{sB}, 5")
    a(f"s_add_u32 s{sSLOT}, s{sSLOT}, s{sJ}")
    a(f"s_lshl_b32 s{sSLOT}, s{sSLOT}, 12")
    for k in range(8):
        a(f"v_mov_b32 v{vO+k}, 0")
    a(f"s_cmp_lt_u32 s{sW}, 4")
    a(f"s_cselect_b32 s{dGU}, s{sWG_}, s{sWU_}")
    a(f"s_cselect_b32 s{dGU+1}, s{sWG_+1}, s{sWU_+1}")
    a(f"s_mov_b32 s{dGU+2}, {448*3584}")
    a(f"s_mov_b32 s{dGU+3}, 0x00020000")
    srd(a, dWO, sWO_, None, 4096*896)
    srd(a, dWD, sWD_, None, 1792*896)
    a(f"v_cmp_gt_u32 vcc, 56, v{vLANE}")
    a(f"v_mov_b32 v{vA0}, {CNT}")
    a(f"ds_write_b128 v{vA0}, v[{vO}:{vO+3}]")
    a.c("LayerNorm: wave w normalises x[w]")
    E = 28; S0 = 36
    a.wait_tag("x")
    ln0 = len(a.lines)
    unpack(a, X4, E)
    a(f"v_add_f32 v{S0}, v{E}, v{E+1}")
    a(f"v_add_f32 v{S0+1}, v{E+2}, v{E+3}")
    a(f"v_add_f32 v{S0+2}, v{E+4}, v{E+5}")
    a(f"v_add_f32 v{S0+3}, v{E+6}, v{E+7}")
    a(f"v_add_f32 v{S0}, v{S0}, v{S0+1}")
    a(f"v_add_f32 v{S0+2}, v{S0+2}, v{S0+3}")
    a(f"v_add_f32 v{S0}, v{S0}, v{S0+2}")
    reduce64(a, "v_add_f32", S0, sT0)
    MEAN = S0+1; ACC = S0+2; D = S0+4
    a("s_nop 1")
    a(f"v_mov_b32 v{MEAN}, s{sT0}")
    a(f"v_mul_f32 v{MEAN}, {f32(1.0/448)}, v{MEAN}")
    for k in range(8):
        a(f"v_sub_f32 v{D+k}, v{E+k}, v{MEAN}")
    a(f"v_mul_f32 v{ACC}, v{D}, v{D}")
    for k in range(1, 8):
        a(f"v_fmac_f32 v{ACC}, v{D+k}, v{D+k}")
    a(f"v_cndmask_b32 v{ACC}, 0, v{ACC}, vcc")
    reduce64(a, "v_add_f32", ACC, sT0)
    bf16_round(a, MEAN)
    a(f"v_mov_b32 v{ACC}, s{sT0}")
    a(f"v_mul_f32 v{ACC}, {f32(1.0/448)}, v{ACC}")
    bf16_round(a, ACC)
    a(f"v_add_f32 v{ACC}, {f32(1e-5)}, v{ACC}")
    bf16_round(a, ACC)
    a(f"v_sqrt_f32 v{ACC}, v{ACC}")
    for k in range(8):
        a(f"v_sub_f32 v{D+k}, v{E+k}, v{MEAN}")
    bf16_round(a, ACC)
    a(f"v_rcp_f32 v{ACC}, v{ACC}")
    for k in range(4):
        a(f"v_cvt_pk_bf16_f32 v{X4+k}, v{D+2*k}, v{D+2*k+1}")
    unpack(a, X4, D)
    for k in range(8):
        a(f"v_mul_f32 v{D+k}, v{D+k}, v{ACC}")
    for k in range(4):
        a(f"v_cvt_pk_bf16_f32 v{X4+k}, v{D+2*k}, v{D+2*k+1}")
    unpack(a, X4, E)
    a(f"v_lshlrev_b32 v{vA0}, 5, v{vLANE}")
    a(f"s_lshl_b32 s{sT0}, s{sW}, 11")
    a(f"v_add_u32 v{vA0}, s{sT0}, v{vA0}")
    a(f"ds_write_b128 v{vA0}, v[{E}:{E+3}] offset:{XT}")
    a(f"ds_write_b128 v{vA0}, v[{E+4}:{E+7}] offset:{XT+16}")
    a.c("multiplier addresses: row (64w + 32i + lane>>1) * 4")
    a(f"v_lshrrev_b32 v{vA0}, 1, v{vLANE}")
    a(f"v_lshlrev_b32 v{vA0}, 2, v{vA0}")
    a(f"s_lshl_b32 s{sT0}, s{sPR}, 8")
    a(f"v_add_u32 v{vA0}, s{sT0}, v{vA0}")
    a(f"v_add_u32 v{vA1}, 128, v{vA0}")
    sprinkle(ln0, cfg.get("spr1", 30), cfg.get("n1", 4))
    a("s_waitcnt lgkmcnt(0)")
    a("s_barrier")
    stamp(a, cfg, 2)
    XM = 24
    for k in range(4):
        a(f"ds_read2st64_b32 v[{XM+2*k}:{XM+2*k+1}], v{vA0} offset0:{XT//256+16*k} offset1:{XT//256+16*k+8}")
    for k in range(4):
        a(f"ds_read2st64_b32 v[{XM+8+2*k}:{XM+8+2*k+1}], v{vA1} offset0:{XT//256+16*k} offset1:{XT//256+16*k+8}")
    U0 = 40; U1 = 48
    a.wait_tag("wq1")
    fm0 = len(a.lines)
    unpack(a, WQ0, U0)
    unpack(a, WQ1, U1)
    QA = GUR
    a("s_waitcnt lgkmcnt(4)")
    for b in range(8):
        for k in range(4):
            m = XM + b
            sel = "op_sel:[0,1] op_sel_hi:[1,1]" if m & 1 else "op_sel_hi:[1,0]"
            a(f"v_pk_mul_f32 v[{QA+8*b+2*k}:{QA+8*b+2*k+1}], v[{U0+2*k}:{U0+2*k+1}], v[{m&~1}:{(m&~1)+1}] {sel}")
    a("s_waitcnt lgkmcnt(0)")
    for b in range(8):
        for k in range(4):
            a(pkfma_bcast(QA+8*b+2*k, U1+2*k, XM+8+b))
    a.c("transposing reduction over lane bits 5,4,3,2 then all-reduce over bit 1")
    for r in range(32):
        a(f"v_permlane32_swap_b32 v{QA+r}, v{QA+32+r}")
    for r in range(0, 32, 2):
        a(f"v_pk_add_f32 v[{QA+r}:{QA+r+1}], v[{QA+r}:{QA+r+1}], v[{QA+32+r}:{QA+32+r+1}]")
    for r in range(16):
        a(f"v_permlane16_swap_b32 v{QA+r}, v{QA+16+r}")
    for r in range(0, 16, 2):
        a(f"v_pk_add_f32 v[{QA+r}:{QA+r+1}], v[{QA+r}:{QA+r+1}], v[{QA+16+r}:{QA+16+r+1}]")
    R3 = QA + 32
    for r in range(8):
        a(dpp("v_add_f32", R3+r, QA+r, QA+r, "row_ror:8", bm="0x3"))
    for r in range(8):
        a(dpp("v_add_f32", R3+r, QA+8+r, QA+8+r, "row_ror:8", bm="0xc"))
    R4 = QA + 48
    for r in range(4):
        a(dpp("v_add_f32", R4+r, R3+r, R3+r, "row_shl:4", bm="0x5"))
    for r in range(4):
        a(dpp("v_add_f32", R4+r, R3+4+r, R3+4+r, "row_shr:4", bm="0xa"))
    a.c("LDS addr = QP + w*512 + (lane>>3)*64 + (lane&1)*32 + ((lane>>2)&1)*16")
    a(f"v_lshrrev_b32 v{vA0}, 3, v{vLANE}")
    a(f"v_lshlrev_b32 v{vA0}, 6, v{vA0}")
    a(f"v_and_b32 v{vA1}, 1, v{vLANE}")
    a(f"v_lshl_add_u32 v{vA0}, v{vA1}, 5, v{vA0}")
    a(f"v_and_b32 v{vA1}, 4, v{vLANE}")
    a(f"v_lshl_add_u32 v{vA0}, v{vA1}, 2, v{vA0}")
    for r in range(4):
        a(dpp("v_add_f32", R4+r, R4+r, R4+r, "quad_perm:[2,3,0,1]"))
    a(f"s_lshl_b32 s{sT0}, s{sPR}, 9")
    a(f"v_add_u32 v{vA0}, s{sT0}, v{vA0}")
    a(f"ds_write_b128 v{vA0}, v[{R4}:{R4+3}] offset:{QP}")
    sprinkle(fm0, cfg.get("spr2", 40), cfg.get("n2", 4))
    QD = 40
    VQA = 39
    a(f"v_and_b32 v{VQA}, 31, v{vLANE}")
    a(f"v_lshlrev_b32 v{VQA}, 5, v{VQA}")
    a(f"s_lshl_b32 s{sT3}, s{sBH}, 10")
    a(f"s_add_u32 s{sT3}, s{sT3}, {WS_Q}")
    a("s_waitcnt lgkmcnt(0)")
    a("s_barrier")
    a(f"s_cmp_lg_u32 s{sW}, 0")
    a("s_cbranch_scc1 L_nopub")
    a.c("wave 0: lanes 0..15 = (b, half): sum 7 partials, publish 8 tagged columns each, then poll for this WG's q")
    a(f"v_lshlrev_b32 v{vA0}, 5, v{vLANE}")
    a("s_mov_b64 exec, 0xffff")
    PR = GUR
    for w2 in range(7):
        a(f"ds_read_b128 v[{PR+8*w2}:{PR+8*w2+3}], v{vA0} offset:{QP+512*w2}")
        a(f"ds_read_b128 v[{PR+8*w2+4}:{PR+8*w2+7}], v{vA0} offset:{QP+512*w2+16}")
    a(f"v_lshrrev_b32 v{vA1}, 1, v{vLANE}")
    a(f"v_lshlrev_b32 v{vA1}, 14, v{vA1}")
    a(f"v_and_b32 v{vA0}, 1, v{vLANE}")
    a(f"v_lshl_add_u32 v{vA1}, v{vA0}, 5, v{vA1}")
    a(f"s_lshl_b32 s{sT0}, s{sPH}, 6")
    a(f"s_add_u32 s{sT0}, s{sT0}, {WS_Q}")
    a.c("nonce = returned old value, or our own proposal if the word was still zero")
    a(f"v_readfirstlane_b32 s{sT1}, v{NON}")
    a(f"s_cmp_eq_u32 s{sT1}, 0")
    a(f"s_cselect_b32 s{sT1}, s100, s{sT1}")
    a(f"s_and_b32 s{sNL}, s{sT1}, 0xffff")
    a(f"s_lshr_b32 s{sNH}, s{sT1}, 16")
    a(f"v_mov_b32 v{QD}, s{sNL}")
    a(f"v_mov_b32 v{QD+1}, s{sNH}")
    for w2 in range(1, 7):
        a(f"s_waitcnt lgkmcnt({12-2*w2})")
        for k in range(4):
            a(f"v_pk_add_f32 v[{PR+2*k}:{PR+2*k+1}], v[{PR+2*k}:{PR+2*k+1}], v[{PR+8*w2+2*k}:{PR+8*w2+2*k+1}]")
    for k in range(8):
        a(f"v_cvt_pk_bf16_f32 v{PR+k}, v{PR+k}, v{PR+k}")
    for k in range(8):
        a(f"v_and_or_b32 v{PR+56+k}, v{PR+k}, s{sMASK}, v{QD+(k&1)}")
    a(f"buffer_store_dwordx4 v[{PR+56}:{PR+59}], v{vA1}, s[{dWS}:{dWS+3}], s{sT0} offen sc1")
    a(f"buffer_store_dwordx4 v[{PR+60}:{PR+63}], v{vA1}, s[{dWS}:{dWS+3}], s{sT0} offen offset:16 sc1")
    a("s_mov_b64 exec, -1")
    stamp(a, cfg, 13)
    a(f"s_mov_b32 s{sIT}, 0")
    TX = 24
    a("L_qpoll:")
    a(f"buffer_load_dwordx4 v[{QD}:{QD+3}], v{VQA}, s[{dWS}:{dWS+3}], s{sT3} offen sc1")
    a(f"buffer_load_dwordx4 v[{QD+4}:{QD+7}], v{VQA}, s[{dWS}:{dWS+3}], s{sT3} offen offset:16 sc1")
    a(f"s_add_u32 s{sIT}, s{sIT}, 1")
    a("s_waitcnt vmcnt(0)")
    for k in range(8):
        a(f"v_xor_b32 v{TX+k}, s{sNH if k & 1 else sNL}, v{QD+k}")
    a(f"v_or3_b32 v{TX}, v{TX}, v{TX+1}, v{TX+2}")
    a(f"v_or3_b32 v{TX+3}, v{TX+3}, v{TX+4}, v{TX+5}")
    a(f"v_or3_b32 v{TX}, v{TX}, v{TX+6}, v{TX+7}")
    a(f"v_or_b32 v{TX}, v{TX}, v{TX+3}")
    a(f"v_and_b32 v{TX}, 0xffff, v{TX}")
    a(f"v_cmp_ne_u32 vcc, 0, v{TX}")
    a("s_cbranch_vccz L_qgot")
    a(f"s_cmp_lt_u32 s{sIT}, {SPIN}")
    a("s_cbranch_scc1 L_qpoll")
    a("L_qgot:")
    a(f"s_mov_b32 s{sT0}, 0x07060302")
    for k in range(4):
        a(f"v_perm_b32 v{TX+k}, v{QD+2*k+1}, v{QD+2*k}, s{sT0}")
    a(f"v_lshrrev_b32 v{TX+4}, 1, v{VQA}")
    a(f"ds_write_b128 v{TX+4}, v[{TX}:{TX+3}] offset:{QL}")
    a(f"v_mov_b32 v{TX+5}, {QFL}")
    a(f"v_mov_b32 v{TX+6}, 1")
    a("s_waitcnt lgkmcnt(0)")
    a(f"ds_write_b32 v{TX+5}, v{TX+6}")
    stamp(a, cfg, 14)
    if cfg.get("stamps"):
        a(f"v_writelane_b32 v7, s{sIT}, 15")
    a("L_nopub:")
    a.c("wave 1 clears this workgroup's slot with the sentinel; in half 0 it also zeroes the pair's claim counter")
    a(f"s_cmp_lg_u32 s{sW}, 1")
    a("s_cbranch_scc1 L_noclr")
    for k in range(4):
        a(f"v_mov_b32 v{STG+k}, -1")
    for k in range(4):
        a(f"buffer_store_dwordx4 v[{STG}:{STG+3}], v{vL16}, s[{dWS}:{dWS+3}], s{sSLOT} offen offset:{1024*k} sc1")
    a(f"s_cmp_lg_u32 s{sS}, 0")
    a("s_cbranch_scc1 L_noclr")
    a(f"s_lshl_b32 s{sT0}, s{sBH}, 8")
    a(f"s_add_u32 s{sT0}, s{sT0}, {WS_CLM}")
    a("s_mov_b64 exec, 1")
    a(f"buffer_store_dword v{vO}, v{vO}, s[{dWS}:{dWS+3}], s{sT0} offen sc1")
    a("s_mov_b64 exec, -1")
    a("L_noclr:")
    while kv:
        if PACE < 60:
            a(f"s_waitcnt vmcnt({PACE})")
        kvone()
    a.c("GLU slice j < 28: 64 columns. gu voffset = (lane>>3)*3584 + (lane&7)*16 ; soffset = 112*(w&3)*3584 + j*128")
    a(f"v_lshrrev_b32 v{vA0}, 3, v{vLANE}")
    a(f"v_and_b32 v{vA1}, 7, v{vLANE}")
    a(f"v_mul_u32_u24 v{vGUO}, 3584, v{vA0}")
    a(f"v_lshl_add_u32 v{vGUO}, v{vA1}, 4, v{vGUO}")
    a(f"s_and_b32 s{sT0}, s{sW}, 3")
    a(f"s_mul_i32 s{sGO}, s{sT0}, {112*3584}")
    a(f"s_lshl_b32 s{sT1}, s{sJ}, 7")
    a(f"s_add_u32 s{sGO}, s{sGO}, s{sT1}")
    a.c("slices j >= 28 do not exist: zero-size descriptors make their loads return 0")
    a(f"s_cmp_lt_u32 s{sJ}, 28")
    a(f"s_cselect_b32 s{dGU+2}, s{dGU+2}, 0")
    a(f"s_cselect_b32 s{dWD+2}, s{dWD+2}, 0")
    a(f"s_mov_b32 s{sIT}, 0")
    a(f"v_mov_b32 v{vA0}, {QFL}")
    a(f"v_lshrrev_b32 v{vA1}, 1, v{VQA}")
    a("L_qwait:")
    a(f"ds_read_b32 v24, v{vA0}")
    a(f"ds_read_b128 v[{vQ}:{vQ+3}], v{vA1} offset:{QL}")
    a("s_waitcnt lgkmcnt(0)")
    a(f"v_readfirstlane_b32 s{sT0}, v24")
    a(f"s_cmp_lg_u32 s{sT0}, 0")
    a("s_cbranch_scc1 L_qok")
    a("s_sleep 1")
    a(f"s_add_u32 s{sIT}, s{sIT}, 1")
    a(f"s_cmp_lt_u32 s{sIT}, {SPIN}")
    a("s_cbranch_scc1 L_qwait")
    a("L_qok:")
    a(f"v_and_b32 v{vA1}, 31, v{vLANE}")
    a(f"v_lshlrev_b32 v{vA1}, 5, v{vA1}")
    a(f"v_lshrrev_b32 v{vA0}, 5, v{vLANE}")
    a(f"v_lshl_add_u32 v{vA1}, v{vA0}, 4, v{vA1}")
    a(f"v_mov_b32 v{vM}, {f32(-1e30)}")
    a(f"v_mov_b32 v{vL}, 0")
    a(f"s_mov_b32 s{sIT}, 0")
    a(f"s_mov_b32 s{sPL}, 0x05040100")
    a(f"s_mov_b32 s{sPH}, 0x07060302")
    a(f"s_add_u32 s{sOFF}, s{sOFF}, {NPRE*0x8000}")
    a(f"s_add_u32 s{sOB}, s{sOFF}, {DB}")
    a(f"s_lshl_b32 s{sCNT}, s{sBH}, 8")
    a(f"s_add_u32 s{sCNT}, s{sCNT}, {WS_CLM}")
    stamp(a, cfg, 3)
    if cfg.get("prog"):
        a("s_lshl_b32 s98, s2, 3")
        a(f"s_add_u32 s98, s98, s{sW}")
        a("s_lshl_b32 s98, s98, 8")
        a("s_add_u32 s98, s98, 0x200000")
        a("v_mov_b32 v22, s99")
        a("v_mov_b32 v23, 0")
        a("s_mov_b64 exec, 1")
        a(f"buffer_store_dword v22, v23, s[{dWS}:{dWS+3}], s98 offen")
        a("s_mov_b64 exec, -1")
        a("s_add_u32 s98, s98, 4")
    CZ = f32(0.0625*LOG2E)
    A = 22; Z = 26; P = 27; T = 28; PB = 30; U = 34
    def refill4(R, d, so, fl):
        mode = cfg.get("ldmode", "imm")
        for i in range(4):
            if mode == "sofs":
                a(f"s_add_u32 s{sT2}, s{so}, {i*1024}")
                a(f"buffer_load_dwordx4 v[{R+4*i}:{R+4*i+3}], v{vL16}, s[{d}:{d+3}], s{sT2} offen {fl}")
            else:
                if mode.startswith("nop"):
                    a(f"s_nop {mode[3:]}")
                a(f"buffer_load_dwordx4 v[{R+4*i}:{R+4*i+3}], v{vL16}, s[{d}:{d+3}], s{so} offen offset:{i*1024} {fl}")
    def tile(K, V, lab, refill=True, so=None):
        if refill:
            a(f"s_waitcnt vmcnt({VW})")
        for jj in range(4):
            for i in range(4):
                if jj == 0:
                    a(f"v_dot2_f32_bf16 v{A+i}, v{K+4*i}, v{vQ}, 0")
                else:
                    a(f"v_dot2c_f32_bf16 v{A+i}, v{K+4*i+jj}, v{vQ+jj}")
        if refill:
            refill4(K, dK, so, KF_)
        else:
            a("s_nop 2")
        a(f"v_permlane16_swap_b32 v{A}, v{A+1}")
        a(f"v_permlane16_swap_b32 v{A+2}, v{A+3}")
        a("s_nop 0")
        a(f"v_add_f32 v{A}, v{A}, v{A+1}")
        a(f"v_add_f32 v{A+2}, v{A+2}, v{A+3}")
        a("s_nop 0")
        a(dpp("v_add_f32", Z, A, A, "row_ror:8", bm="0x3"))
        a(dpp("v_add_f32", Z, A+2, A+2, "row_ror:8", bm="0xc"))
        for ctrl in ("quad_perm:[1,0,3,2]", "quad_perm:[2,3,0,1]", "row_half_mirror"):
            a("s_nop 1")
            a(dpp("v_add_f32", Z, Z, Z, ctrl))
        a(f"v_cvt_pk_bf16_f32 v{Z}, v{Z}, v{Z}")
        a(f"v_and_b32 v{Z}, s{sMASK}, v{Z}")
        a(f"v_mul_f32 v{Z}, {CZ}, v{Z}")
        a(f"v_cmp_gt_f32 vcc, v{Z}, v{vM}")
        a(f"s_cbranch_vccnz L_resc{lab}")
        a(f"L_back{lab}:")
        a(f"v_sub_f32 v{P}, v{Z}, v{vM}")
        a(f"v_exp_f32 v{P}, v{P}")
        a("s_nop 0")
        a(f"v_add_f32 v{vL}, v{vL}, v{P}")
        a(f"v_mov_b32 v{T}, v{P}")
        a("s_nop 1")
        a(f"v_permlane16_swap_b32 v{P}, v{T}")
        a("s_nop 1")
        a(f"v_mov_b32_dpp v{PB}, v{P} row_newbcast:0 row_mask:0xf bank_mask:0xf")
        a(f"v_mov_b32_dpp v{PB+1}, v{T} row_newbcast:0 row_mask:0xf bank_mask:0xf")
        a(f"v_mov_b32_dpp v{PB+2}, v{P} row_newbcast:8 row_mask:0xf bank_mask:0xf")
        a(f"v_mov_b32_dpp v{PB+3}, v{T} row_newbcast:8 row_mask:0xf bank_mask:0xf")
        if refill:
            a(f"s_waitcnt vmcnt({VW})")
        for i in range(4):
            axpy_row(a, vO, V+4*i, PB+i, U)
        if refill:
            refill4(V, dV, so, VF_)
    def claim():
        a(f"v_mov_b32 v{vCLM}, 1")
        a(f"v_mov_b32 v{vCHK}, 0")
        a("s_mov_b64 exec, 1")
        a(f"buffer_atomic_add v{vCLM}, v{vCHK}, s[{dWS}:{dWS+3}], s{sCNT} offen sc0 sc1")
        a("s_mov_b64 exec, -1")
    def resc(lab):
        a(f"L_resc{lab}:")
        a(f"v_max_f32 v{T}, v{Z}, v{vM}")
        for ctrl, rm in (("row_ror:8", "0xf"), ("row_bcast:15", "0xa"), ("row_bcast:31", "0xc")):
            a("s_nop 1")
            a(dpp("v_max_f32", T, T, T, ctrl, rm))
        a("s_nop 0")
        a(f"v_readlane_b32 s{sT0}, v{T}, 63")
        a("s_nop 1")
        a(f"v_subrev_f32 v{T}, s{sT0}, v{vM}")
        a(f"v_exp_f32 v{T}, v{T}")
        a(f"v_mov_b32 v{vM}, s{sT0}")
        a(f"v_mul_f32 v{vL}, v{vL}, v{T}")
        for k in range(4):
            a(f"v_pk_mul_f32 v[{vO+2*k}:{vO+2*k+1}], v[{vO+2*k}:{vO+2*k+1}], v[{T}:{T+1}] op_sel_hi:[1,0]")
        a(f"s_branch L_back{lab}")
    a(".p2align 6")
    a("L_loop:")
    tile(KA, VA, "A", so=sOFF)
    tile(KB, VB, "B", so=sOB)
    if cfg.get("stamps") and not cfg.get("epi"):
        for n2, itv in ((9, 2), (10, 5), (11, 8), (12, SI-1)):
            a(f"s_cmp_lg_u32 s{sIT}, {itv}")
            a(f"s_cbranch_scc1 L_nost{n2}")
            stamp(a, cfg, n2)
            a(f"L_nost{n2}:")
    if cfg.get("prog"):
        a("s_memrealtime s[96:97]")
        a("s_waitcnt lgkmcnt(0)")
        a("v_mov_b32 v22, s96")
        a("v_mov_b32 v23, 0")
        a("s_mov_b64 exec, 1")
        a(f"buffer_store_dword v22, v23, s[{dWS}:{dWS+3}], s98 offen")
        a("s_mov_b64 exec, -1")
        a("s_add_u32 s98, s98, 4")
    a(f"s_cmp_ge_u32 s{sIT}, {SI}")
    a("s_cbranch_scc1 L_dyn")
    a(f"s_cmp_lt_u32 s{sIT}, 11")
    a("s_cbranch_scc1 L_job")
    a("L_jobret:")
    a(f"s_add_u32 s{sIT}, s{sIT}, 1")
    a(f"s_add_u32 s{sOFF}, s{sOFF}, 0x10000")
    a(f"s_add_u32 s{sOB}, s{sOB}, 0x10000")
    a(f"s_cmp_lt_u32 s{sIT}, {SI-2}")
    a("s_cbranch_scc1 L_loop")
    a(f"s_cmp_eq_u32 s{sIT}, {SI}")
    a("s_cbranch_scc1 L_dyn0")
    a(f"s_cmp_eq_u32 s{sIT}, {SI-1}")
    a("s_cbranch_scc1 L_clm0")
    a.c("two iterations before the dynamic phase: fetch the per-batch 'slots cleared' counter")
    a(f"s_lshl_b32 s{sT0}, s{sB}, 4")
    a(f"s_add_u32 s{sT0}, s{sT0}, 128")
    a(f"v_mov_b32 v{vCHK}, s{sT0}")
    a(f"global_load_dword v{vCHK}, v{vCHK}, s[{sDBG_}:{sDBG_+1}] sc1")
    a("s_branch L_loop")
    a("L_clm0:")
    a.c("claims are allowed only once the counter's initialisation is known complete")
    a(f"v_readfirstlane_b32 s{sT0}, v{vCHK}")
    a(f"v_mov_b32 v{vCLM}, {NDYN}")
    if cfg.get("dynw", 8) < 8:
        a(f"s_cmp_ge_u32 s{sW}, {cfg['dynw']}")
        a("s_cbranch_scc1 L_loop")
    a(f"s_cmp_lt_u32 s{sT0}, 32")
    a("s_cbranch_scc1 L_noclm")
    claim()
    a("s_branch L_loop")
    a("L_dyn0:")
    a(f"s_mov_b32 s{sVALID}, 1")
    if cfg.get("dynbar", 1):
        a("s_barrier")
    a("L_dyn:")
    a(f"s_cmp_eq_u32 s{sVALID}, 0")
    a("s_cbranch_scc1 L_epi")
    a(f"v_readfirstlane_b32 s{sT0}, v{vCLM}")
    a(f"s_min_u32 s{sT0}, s{sT0}, {NDYN}")
    if cfg.get("dsplit"):
        a(f"s_lshl_b32 s{sOFF}, s{sT0}, 12")
        a(f"s_add_u32 s{sOFF}, s{sOFF}, {16*NST*4096}")
        a(f"s_add_u32 s{sOB}, s{sOFF}, {NDYN*4096}")
        a(f"s_cmp_lt_u32 s{sT0}, {NDYN}")
        a(f"s_cselect_b32 s{sOFF}, s{sOFF}, s{sOB}")
    else:
        a(f"s_lshl_b32 s{sOFF}, s{sT0}, 13")
        a(f"s_add_u32 s{sOFF}, s{sOFF}, {16*NST*4096}")
        a(f"s_add_u32 s{sOB}, s{sOFF}, 0x1000")
        a(f"s_cmp_lt_u32 s{sT0}, {NDYN}")
    a(f"s_cselect_b32 s{sVALID}, 1, 0")
    a("s_cbranch_scc0 L_loop")
    claim()
    a("s_branch L_loop")
    a("L_noclm:")
    a(f"s_cmp_eq_u32 s{sS}, 1")
    a("s_cbranch_scc1 L_loop")
    a.c("half 0 owns the counter: only its own wave 1's init matters; wait for wave 1's gu signal (LDS count 8)")
    a(f"v_mov_b32 v{vCHK}, {CNT}")
    a("L_nocl2:")
    a(f"ds_read_b32 v{vCLM}, v{vCHK}")
    a("s_waitcnt lgkmcnt(0)")
    a(f"v_readfirstlane_b32 s{sT0}, v{vCLM}")
    a(f"s_cmp_lt_u32 s{sT0}, 8")
    a("s_cbranch_scc1 L_nocl2")
    claim()
    a("s_branch L_loop")
    for lab in "ABCDEF"[:NPRE]:
        resc(lab)
    def wo_issue():
        for i in range(4):
            a(f"buffer_load_dwordx4 v[{STG+4*i}:{STG+4*i+3}], v{vL16}, s[{dWO}:{dWO+3}], s{sJO} offen offset:{i*896} {WOF}")
        a(f"s_add_u32 s{sJO}, s{sJO}, {4*896}")
    def gu_issue(g0, g1):
        for g in range(g0, g1):
            a(f"buffer_load_dwordx4 v[{GUR+4*g}:{GUR+4*g+3}], v{vGUO}, s[{dGU}:{dGU+3}], s{sGO} offen {GUF}")
            a(f"s_add_u32 s{sGO}, s{sGO}, {8*3584}")
    G = 38; XG = 22; UG = STG
    a("L_job:")
    a(f"s_cmp_eq_u32 s{sIT}, 0")
    a("s_cbranch_scc1 L_job0")
    a(f"s_cmp_gt_u32 s{sIT}, 8")
    a("s_cbranch_scc1 L_jobwd")
    a.c("slots 1..8: interleave two staged wo row pairs into W + idx")
    a(f"s_set_gpr_idx_on s{sIDX}, 0x8")
    a("s_nop 0")
    for pr in range(2):
        for e in range(4):
            r0 = STG + 8*pr + e; r1 = r0 + 4
            a(f"v_perm_b32 v{W+8*pr+2*e}, v{r1}, v{r0}, s{sPL}")
            a(f"v_perm_b32 v{W+8*pr+2*e+1}, v{r1}, v{r0}, s{sPH}")
    a("s_set_gpr_idx_off")
    a(f"s_add_u32 s{sIDX}, s{sIDX}, 16")
    a(f"s_cmp_eq_u32 s{sIT}, 8")
    a("s_cbranch_scc1 L_job8")
    a(f"s_cmp_eq_u32 s{sIT}, 4")
    a("s_cbranch_scc1 L_job4")
    wo_issue()
    a(f"s_cmp_gt_u32 s{sIT}, 3")
    a("s_cbranch_scc1 L_jobret")
    a(f"s_cmp_eq_u32 s{sIT}, 2")
    a("s_cbranch_scc1 L_job2")
    a(f"s_cmp_eq_u32 s{sIT}, 3")
    a("s_cbranch_scc1 L_job3")
    gu_issue(4, 8)
    a("s_branch L_jobret")
    a("L_job2:")
    gu_issue(8, 11)
    a("s_branch L_jobret")
    a("L_job3:")
    gu_issue(11, 14)
    a("s_branch L_jobret")
    a("L_job8:")
    a.c("w_down rows 64j+8w+i")
    a(f"s_lshl_b32 s{sT0}, s{sJ}, 6")
    a(f"s_lshl_b32 s{sT1}, s{sW}, 3")
    a(f"s_add_u32 s{sT0}, s{sT0}, s{sT1}")
    a(f"s_mul_i32 s{sJO}, s{sT0}, 896")
    for i in range(4):
        a(f"buffer_load_dwordx4 v[{STG+4*i}:{STG+4*i+3}], v{vL16}, s[{dWD}:{dWD+3}], s{sJO} offen offset:{i*896} {WDF}")
    a(f"s_add_u32 s{sJO}, s{sJO}, {4*896}")
    a("s_branch L_jobret")
    a("L_job0:")
    a("s_waitcnt vmcnt(16)")
    a.c("wave 1: its clearing stores are complete (older than everything waited for) -> count them")
    a(f"s_cmp_lg_u32 s{sW}, 1")
    a("s_cbranch_scc1 L_nocnt")
    a(f"s_lshl_b32 s{sT0}, s{sB}, 4")
    a(f"s_add_u32 s{sT0}, s{sT0}, 128")
    a(f"v_mov_b32 v{XG}, s{sT0}")
    a(f"v_mov_b32 v{XG+1}, 1")
    a("s_mov_b64 exec, 1")
    a(f"global_atomic_add v{XG}, v{XG+1}, s[{sDBG_}:{sDBG_+1}] sc1")
    a("s_mov_b64 exec, -1")
    a("L_nocnt:")
    a.c("wo rows h*256+32w+i")
    a(f"s_lshl_b32 s{sT0}, s{sH}, 8")
    a(f"s_lshl_b32 s{sT1}, s{sW}, 5")
    a(f"s_add_u32 s{sT0}, s{sT0}, s{sT1}")
    a(f"s_mul_i32 s{sJO}, s{sT0}, 896")
    a(f"s_mov_b32 s{sIDX}, 0")
    wo_issue()
    if NPRE == 6:
        tile(KE, VE, "E", refill=False)
        tile(KF, VF, "F", refill=False)
    gu_issue(0, 4)
    a.c("tiles C and D (prefetched in the prologue)")
    tile(KC, VC, "C", refill=False)
    tile(KD, VD, "D", refill=False)
    a("s_branch L_jobret")
    a("L_job4:")
    a.c("gate/up partial sums; multipliers xn[b][112*(w&3) + 8i + (lane>>3)]")
    a(f"v_lshrrev_b32 v{vA0}, 3, v{vLANE}")
    a(f"v_lshlrev_b32 v{vA0}, 2, v{vA0}")
    a(f"s_and_b32 s{sT0}, s{sW}, 3")
    a(f"s_mul_i32 s{sT0}, s{sT0}, 448")
    a(f"s_lshl_b32 s{sT1}, s{sB}, 11")
    a(f"s_add_u32 s{sT0}, s{sT0}, s{sT1}")
    a(f"v_add_u32 v{vA0}, s{sT0}, v{vA0}")
    for k in range(7):
        a(f"ds_read2_b32 v[{XG+2*k}:{XG+2*k+1}], v{vA0} offset0:{XT//4+16*k} offset1:{XT//4+16*k+8}")
    for k in range(8):
        a(f"v_mov_b32 v{G+k}, 0")
    a("s_waitcnt lgkmcnt(0)")
    for i in range(14):
        axpy_row(a, G, GUR+4*i, XG+i, UG)
    wo_issue()
    for k in range(4):
        a(f"v_permlane32_swap_b32 v{G+k}, v{G+4+k}")
    a("s_nop 0")
    for k in range(4):
        a(f"v_add_f32 v{G+k}, v{G+k}, v{G+4+k}")
    a("s_nop 0")
    a(f"v_permlane16_swap_b32 v{G}, v{G+2}")
    a(f"v_permlane16_swap_b32 v{G+1}, v{G+3}")
    a("s_nop 0")
    a(f"v_add_f32 v{G}, v{G}, v{G+2}")
    a(f"v_add_f32 v{G+1}, v{G+1}, v{G+3}")
    a.c("LDS addr = GP + w*256 + ((lane&7)*8 + (lane>>3))*4")
    a(f"v_and_b32 v{XG}, 7, v{vLANE}")
    a(f"v_lshrrev_b32 v{XG+1}, 3, v{vLANE}")
    a(dpp("v_add_f32", G+4, G, G, "row_ror:8", bm="0x3"))
    a(dpp("v_add_f32", G+4, G+1, G+1, "row_ror:8", bm="0xc"))
    a(f"v_lshl_add_u32 v{XG}, v{XG}, 3, v{XG+1}")
    a(f"v_lshlrev_b32 v{XG}, 2, v{XG}")
    a(f"s_lshl_b32 s{sT0}, s{sW}, 8")
    a(f"v_add_u32 v{XG}, s{sT0}, v{XG}")
    a(f"ds_write_b32 v{XG}, v{G+4} offset:{GP}")
    a(f"v_mov_b32 v{XG+2}, {CNT}")
    a(f"v_mov_b32 v{XG+3}, 1")
    a("s_waitcnt lgkmcnt(0)")
    a("s_mov_b64 exec, 1")
    a(f"ds_add_u32 v{XG+2}, v{XG+3}")
    a("s_mov_b64 exec, -1")
    a("s_branch L_jobret")
    a("L_jobwd:")
    a(f"v_lshlrev_b32 v{vA0}, 5, v{vLANE}")
    a(f"s_lshl_b32 s{sT0}, s{sW}, 11")
    a(f"v_add_u32 v{vA0}, s{sT0}, v{vA0}")
    a(f"s_cmp_eq_u32 s{sIT}, 10")
    a("s_cbranch_scc1 L_job10")
    a(f"v_mov_b32 v{XG}, {CNT}")
    a("L_cntspin:")
    a(f"ds_read_b32 v{XG+1}, v{XG}")
    a("s_waitcnt lgkmcnt(0)")
    a(f"v_readfirstlane_b32 s{sT0}, v{XG+1}")
    a(f"s_cmp_ge_u32 s{sT0}, 8")
    a("s_cbranch_scc1 L_cntok")
    a("s_sleep 16")
    a("s_branch L_cntspin")
    a("L_cntok:")
    a(f"v_lshlrev_b32 v{XG+8}, 2, v{vLANE}")
    a(f"v_add_u32 v{XG+8}, {GP}, v{XG+8}")
    for k in range(4):
        a(f"ds_read2st64_b32 v[{XG+2*k}:{XG+2*k+1}], v{XG+8} offset0:{2*k} offset1:{2*k+1}")
    for k in range(8):
        a(f"v_mov_b32 v{G+k}, 0")
    a(f"s_lshl_b32 s{sT0}, s{sW}, 3")
    a("s_waitcnt lgkmcnt(0)")
    a(f"v_add_f32 v{XG}, v{XG}, v{XG+1}")
    a(f"v_add_f32 v{XG+2}, v{XG+2}, v{XG+3}")
    a(f"v_add_f32 v{XG+4}, v{XG+4}, v{XG+5}")
    a(f"v_add_f32 v{XG+6}, v{XG+6}, v{XG+7}")
    a(f"v_add_f32 v{XG}, v{XG}, v{XG+2}")
    a(f"v_add_f32 v{XG+4}, v{XG+4}, v{XG+6}")
    bf16_round(a, XG)
    bf16_round(a, XG+4)
    a(f"v_mul_f32 v{XG}, {f32(-LOG2E)}, v{XG}")
    a(f"v_exp_f32 v{XG}, v{XG}")
    a("s_nop 0")
    a(f"v_add_f32 v{XG}, 1.0, v{XG}")
    a(f"v_rcp_f32 v{XG}, v{XG}")
    a("s_nop 0")
    bf16_round(a, XG)
    a(f"v_mul_f32 v{XG}, v{XG}, v{XG+4}")
    bf16_round(a, XG)
    a("s_nop 0")
    for i in range(8):
        a(f"v_readlane_b32 s{sP+i}, v{XG}, s{sT0}")
        a(f"s_add_u32 s{sT0}, s{sT0}, 1")
    a("s_nop 0")
    UW = 30
    for i in range(4):
        axpy_row(a, G, STG+4*i, sP+i, UW, sgpr=True)
    for i in range(4):
        a(f"buffer_load_dwordx4 v[{STG+4*i}:{STG+4*i+3}], v{vL16}, s[{dWD}:{dWD+3}], s{sJO} offen offset:{i*896} {WDF}")
    a(f"ds_write_b128 v{vA0}, v[{G}:{G+3}] offset:{YG}")
    a(f"ds_write_b128 v{vA0}, v[{G+4}:{G+7}] offset:{YG+16}")
    a("s_branch L_jobret")
    a("L_job10:")
    a(f"ds_read_b128 v[{G}:{G+3}], v{vA0} offset:{YG}")
    a(f"ds_read_b128 v[{G+4}:{G+7}], v{vA0} offset:{YG+16}")
    a("s_waitcnt lgkmcnt(0)")
    for i in range(4):
        axpy_row(a, G, STG+4*i, sP+4+i, UW, sgpr=True)
    a(f"ds_write_b128 v{vA0}, v[{G}:{G+3}] offset:{YG}")
    a(f"ds_write_b128 v{vA0}, v[{G+4}:{G+7}] offset:{YG+16}")
    a("s_branch L_jobret")
    a("L_epi:")
    stamp(a, cfg, 4)
    CW = 5
    CL = STG; XR = STG+2
    NCW = cfg.get("ncw", 1)
    a(f"s_sub_u32 s{sT0}, s{sW}, {CW}")
    a(f"s_cmp_ge_u32 s{sT0}, {NCW}")
    a("s_cbranch_scc1 L_epi1")
    a.c("consumer wave: 'slots cleared' counter of batch b, x for the residual")
    a(f"s_lshl_b32 s{sT0}, s{sB}, 4")
    a(f"s_add_u32 s{sT0}, s{sT0}, 128")
    a(f"v_mov_b32 v{CL+1}, s{sT0}")
    a(f"global_load_dword v{CL}, v{CL+1}, s[{sDBG_}:{sDBG_+1}] sc1")
    a(f"v_and_b32 v{CL+4}, 3, v{vLANE}")
    a(f"v_lshlrev_b32 v{CL+4}, 3, v{CL+4}")
    a(f"s_mul_i32 s{sT1}, s{sB}, 896")
    srd(a, dX, sX_, f"s{sT1}", 896)
    a(f"s_lshl_b32 s{sT0}, s{sJ}, 5")
    a(f"buffer_load_dwordx2 v[{XR}:{XR+1}], v{CL+4}, s[{dX}:{dX+3}], s{sT0} offen")
    if cfg.get("touch", 0):
        a.c("touch the output page now (value unused) so the final store does not pay the address translation")
        srd(a, dGU, sOUT_, f"s{sT1}", 896)
        a(f"buffer_load_dword v{CL+5}, v{CL+4}, s[{dGU}:{dGU+3}], s{sT0} offen")
    a("L_epi1:")
    a(dpp("v_add_f32", vL, vL, vL, "row_ror:8"))
    for k in range(4):
        a(f"v_permlane32_swap_b32 v{vO+k}, v{vO+4+k}")
    a(dpp("v_add_f32", vL, vL, vL, "row_bcast:15", "0xa"))
    for k in range(4):
        a(f"v_add_f32 v{vO+k}, v{vO+k}, v{vO+4+k}")
    a(dpp("v_add_f32", vL, vL, vL, "row_bcast:31", "0xc"))
    a(f"s_mul_i32 s{sT0}, s{sW}, {OPS}")
    a(f"v_add_u32 v{vA0}, s{sT0}, v{vA1}")
    a(f"ds_write_b128 v{vA0}, v[{vO}:{vO+3}] offset:{OP}")
    a(f"s_lshl_b32 s{sT0}, s{sW}, 3")
    a(f"v_mov_b32 v{vA0}, s{sT0}")
    a("s_lshl_b64 exec, 1, 63")
    a(f"ds_write_b64 v{vA0}, v[{vM}:{vL}] offset:{ML}")
    a("s_mov_b64 exec, -1")
    R = 22
    a(f"v_and_b32 v{R}, 7, v{vLANE}")
    a(f"v_lshlrev_b32 v{vA0}, 3, v{R}")
    a(f"v_mul_u32_u24 v{R}, {OPS}, v{R}")
    a(f"v_lshrrev_b32 v{R+1}, 3, v{vLANE}")
    a(f"v_lshl_add_u32 v{R}, v{R+1}, 4, v{R}")
    a(f"s_lshl_b32 s{sT0}, s{sW}, 7")
    a(f"v_add_u32 v{R}, s{sT0}, v{R}")
    a("s_waitcnt lgkmcnt(0)")
    a("s_barrier")
    MX = 24; O4 = 28; MM = 26; Y = 32
    if cfg.get("epi"): stamp(a, cfg, 9)
    a(f"ds_read_b64 v[{MX}:{MX+1}], v{vA0} offset:{ML}")
    a(f"ds_read_b128 v[{O4}:{O4+3}], v{R} offset:{OP}")
    for k in range(8):
        a(f"v_mov_b32 v{Y+k}, 0")
    a("s_waitcnt lgkmcnt(1)")
    a(dpp("v_max_f32", MM, MX, MX, "quad_perm:[1,0,3,2]"))
    a("s_nop 1")
    a(dpp("v_max_f32", MM, MM, MM, "quad_perm:[2,3,0,1]"))
    a("s_nop 1")
    a(dpp("v_max_f32", MM, MM, MM, "row_half_mirror"))
    a(f"v_sub_f32 v{MX}, v{MX}, v{MM}")
    a(f"v_exp_f32 v{MX}, v{MX}")
    a("s_waitcnt lgkmcnt(0)")
    a(f"v_mul_f32 v{MM+1}, v{MX+1}, v{MX}")
    for k in range(4):
        a(f"v_mul_f32 v{O4+k}, v{O4+k}, v{MX}")
    for ctrl in ("quad_perm:[1,0,3,2]", "quad_perm:[2,3,0,1]", "row_half_mirror"):
        a(dpp("v_add_f32", MM+1, MM+1, MM+1, ctrl))
        for k in range(4):
            a(dpp("v_add_f32", O4+k, O4+k, O4+k, ctrl))
    a(f"v_cvt_pk_bf16_f32 v{O4}, v{O4}, v{O4+1}")
    a(f"v_cvt_pk_bf16_f32 v{O4+1}, v{O4+2}, v{O4+3}")
    a("s_nop 0")
    for dq in range(8):
        a(f"v_readlane_b32 s{sP+2*dq}, v{O4}, {8*dq}")
        a(f"v_readlane_b32 s{sP+2*dq+1}, v{O4+1}, {8*dq}")
    a(f"v_lshlrev_b32 v{vA0}, 5, v{vLANE}")
    a(f"s_lshl_b32 s{sT0}, s{sW}, 11")
    a(f"v_add_u32 v{vA0}, s{sT0}, v{vA0}")
    if cfg.get("epi"): stamp(a, cfg, 10)
    for k in range(16):
        for e in range(8):
            a(f"v_dot2c_f32_bf16 v{Y+e}, s{sP+k}, v{W+8*k+e}")
    a("s_nop 3")
    if cfg.get("epi"): stamp(a, cfg, 11)
    a(f"ds_write_b128 v{vA0}, v[{Y}:{Y+3}] offset:{YA}")
    a(f"ds_write_b128 v{vA0}, v[{Y+4}:{Y+7}] offset:{YA+16}")
    a("s_waitcnt lgkmcnt(0)")
    a("s_barrier")
    stamp(a, cfg, 5)
    a(f"s_sub_u32 s{sT0}, s{sW}, {CW}")
    a(f"s_cmp_lt_u32 s{sT0}, {NCW}")
    a("s_cbranch_scc1 L_cons")
    a(f"s_cmp_gt_u32 s{sW}, 4")
    a("s_cbranch_scc1 L_fin")
    a(f"s_cmp_eq_u32 s{sW}, 4")
    a("s_cbranch_scc1 L_stml")
    a.c("waves 0,1: YA ; waves 2,3: YG ; n = (w&1)*64 + lane < 112")
    a(f"s_and_b32 s{sT0}, s{sW}, 1")
    a(f"s_lshl_b32 s{sT0}, s{sT0}, 10")
    a(f"v_add_u32 v{vA0}, s{sT0}, v{vL16}")
    a(f"s_lshr_b32 s{sT1}, s{sW}, 1")
    a(f"s_mov_b32 s{sT0}, {YA}")
    a(f"s_cmp_eq_u32 s{sT1}, 0")
    a(f"s_cselect_b32 s{sT0}, s{sT0}, {YG}")
    a(f"v_add_u32 v{R}, s{sT0}, v{vA0}")
    rds = [24, 28, 32, 36, 40, 44, 48, 52]
    for w2 in range(8):
        a(f"ds_read_b128 v[{rds[w2]}:{rds[w2]+3}], v{R} offset:{2048*w2}")
    a(f"s_mul_i32 s{sT1}, s{sT1}, 1792")
    a(f"s_add_u32 s{sT0}, s{sSLOT}, s{sT1}")
    a(f"v_cmp_gt_u32 vcc, 1792, v{vA0}")
    RD = rds[0]
    for w2 in range(1, 8):
        a(f"s_waitcnt lgkmcnt({7-w2})")
        a(f"v_pk_add_f32 v[{RD}:{RD+1}], v[{RD}:{RD+1}], v[{rds[w2]}:{rds[w2]+1}]")
        a(f"v_pk_add_f32 v[{RD+2}:{RD+3}], v[{RD+2}:{RD+3}], v[{rds[w2]+2}:{rds[w2]+3}]")
    a("s_and_saveexec_b64 s[100:101], vcc")
    a(f"buffer_store_dwordx4 v[{RD}:{RD+3}], v{vA0}, s[{dWS}:{dWS+3}], s{sT0} offen sc1")
    a("s_mov_b64 exec, -1")
    if cfg.get("epi"): stamp(a, cfg, 12)
    a("s_branch L_fin")
    a("L_stml:")
    a(f"v_mov_b32 v{vA0}, 3584")
    a("s_mov_b64 exec, 1")
    a(f"buffer_store_dwordx2 v[{MM}:{MM+1}], v{vA0}, s[{dWS}:{dWS+3}], s{sSLOT} offen sc1")
    a("s_mov_b64 exec, -1")
    a("s_branch L_fin")
    a("L_cons:")
    a(f"s_cmp_ge_u32 s{sJ}, 28")
    a("s_cbranch_scc1 L_fin")
    VO_, VM_ = 22, 23
    a(f"v_lshrrev_b32 v{VM_}, 2, v{vLANE}")
    a(f"v_lshlrev_b32 v{VM_}, 12, v{VM_}")
    a(f"v_and_b32 v{VO_}, 3, v{vLANE}")
    a(f"v_lshl_add_u32 v{VO_}, v{VO_}, 4, v{VM_}")
    a(f"s_lshl_b32 s{sT0}, s{sB}, 17")
    a(f"s_lshl_b32 s{sT1}, s{sJ}, 6")
    a(f"s_add_u32 s{sT1}, s{sT1}, s{sT0}")
    a(f"s_add_u32 s{sT2}, s{sT1}, 0x10000")
    a(f"s_add_u32 s{sT3}, s{sT0}, 0x10000")
    a(f"s_mov_b32 s{sIT}, 0")
    a("s_waitcnt vmcnt(0)")
    a("L_clrchk:")
    a(f"v_cmp_gt_u32 vcc, 32, v{CL}")
    a("s_cbranch_vccz L_poll0")
    a("s_sleep 8")
    a(f"global_load_dword v{CL}, v{CL+1}, s[{sDBG_}:{sDBG_+1}] sc1")
    a(f"s_add_u32 s{sIT}, s{sIT}, 1")
    a(f"s_cmp_lt_u32 s{sIT}, {SPIN}")
    a("s_waitcnt vmcnt(0)")
    a("s_cbranch_scc1 L_clrchk")
    a("L_poll0:")
    A0, A1, G0, G1, M0, M1 = 24, 28, 32, 36, 40, 42
    loads = [
        (A0, 4, VO_, sT1, 0), (A1, 4, VO_, sT2, 0), (G0, 4, VO_, sT1, 1792), (G1, 4, VO_, sT2, 1792),
        (M0, 2, VM_, sT0, 3584), (M1, 2, VM_, sT3, 3584)]
    masks = [sP + 2*i for i in range(6)]
    for m in masks:
        a(f"s_mov_b64 s[{m}:{m+1}], -1")
    a(f"s_mov_b32 s{sIT}, 0")
    DN = 46
    if NCW > 1:
        a(f"v_mov_b32 v{DN}, {CNT+8}")
        a(f"v_mov_b32 v{DN+1}, 1")
        for k in range(1, NCW):
            a(f"s_cmp_lt_u32 s{sW}, {CW+k}")
            a("s_cbranch_scc1 L_poll")
            a(f"s_sleep {cfg.get('stag', 10)}")
    a("L_poll:")
    for n2, ((r, cnt, vo, so, off), m) in enumerate(zip(loads, masks)):
        a(f"s_mov_b64 exec, s[{m}:{m+1}]")
        a(f"s_cbranch_execz L_skip{n2}")
        a(f"buffer_load_dwordx{cnt} v[{r}:{r+cnt-1}], v{vo}, s[{dWS}:{dWS+3}], s{so} offen offset:{off} sc1")
        a(f"L_skip{n2}:")
    a("s_mov_b64 exec, -1")
    a("s_waitcnt vmcnt(0)")
    TM = 44
    for (r, cnt, vo, so, off), m in zip(loads, masks):
        if cnt == 4:
            a(f"v_max3_u32 v{TM}, v{r}, v{r+1}, v{r+2}")
            a(f"v_max_u32 v{TM}, v{TM}, v{r+3}")
        else:
            a(f"v_max_u32 v{TM}, v{r}, v{r+1}")
        a(f"v_cmp_eq_u32 s[{m}:{m+1}], -1, v{TM}")
    a("s_nop 1")
    a(f"s_or_b64 s[100:101], s[{masks[0]}:{masks[0]+1}], s[{masks[1]}:{masks[1]+1}]")
    for m in masks[2:]:
        a(f"s_or_b64 s[100:101], s[100:101], s[{m}:{m+1}]")
    a("s_cbranch_scc0 L_ready")
    if NCW > 1:
        a.c("another consumer wave of this workgroup may already have finished the job")
        a(f"ds_read_b32 v{TM}, v{DN}")
        a("s_waitcnt lgkmcnt(0)")
        a(f"v_readfirstlane_b32 s{sIDX}, v{TM}")
        a(f"s_cmp_lg_u32 s{sIDX}, 0")
        a("s_cbranch_scc1 L_fin")
    a(f"s_add_u32 s{sIT}, s{sIT}, 1")
    a(f"s_cmp_lt_u32 s{sIT}, {SPIN}")
    if SLEEP:
        a(f"s_sleep {SLEEP}")
    a("s_cbranch_scc1 L_poll")
    a("L_ready:")
    if NCW > 1:
        a(f"ds_write_b32 v{DN}, v{DN+1}")
    stamp(a, cfg, 6)
    for M in (M0, M1):
        a(dpp("v_max_f32", TM + (M == M1), M, M, "row_half_mirror"))
    for M in (M0, M1):
        a(f"v_sub_f32 v{M}, v{M}, v{TM + (M == M1)}")
    for M in (M0, M1):
        a(f"v_exp_f32 v{M}, v{M}")
    a("s_nop 0")
    for M in (M0, M1):
        a(f"v_mul_f32 v{M+1}, v{M+1}, v{M}")
    a("s_nop 0")
    for M in (M0, M1):
        a(dpp("v_add_f32", M+1, M+1, M+1, "row_half_mirror"))
    for M in (M0, M1):
        a(f"v_rcp_f32 v{M+1}, v{M+1}")
    a(f"v_pk_add_f32 v[{G0}:{G0+1}], v[{G0}:{G0+1}], v[{G1}:{G1+1}]")
    a(f"v_pk_add_f32 v[{G0+2}:{G0+3}], v[{G0+2}:{G0+3}], v[{G1+2}:{G1+3}]")
    for M in (M0, M1):
        a(f"v_mul_f32 v{M}, v{M}, v{M+1}")
    a(f"v_pk_mul_f32 v[{A0}:{A0+1}], v[{A0}:{A0+1}], v[{M0}:{M0+1}] op_sel_hi:[1,0]")
    a(f"v_pk_mul_f32 v[{A0+2}:{A0+3}], v[{A0+2}:{A0+3}], v[{M0}:{M0+1}] op_sel_hi:[1,0]")
    a(pkfma_bcast(A0, A1, M1))
    a(pkfma_bcast(A0+2, A1+2, M1))
    regs8 = [G0, G0+1, G0+2, G0+3, A0, A0+1, A0+2, A0+3]
    for ctrl in ("row_ror:4", "row_ror:8"):
        for r in regs8:
            a(dpp("v_add_f32", r, r, r, ctrl))
    a("s_nop 0")
    for k in range(4):
        a(f"v_permlane32_swap_b32 v{A0+k}, v{G0+k}")
    a("s_nop 0")
    for k in range(4):
        a(f"v_add_f32 v{A0+k}, v{A0+k}, v{G0+k}")
    for k in range(4):
        a(f"v_mov_b32 v{G0+k}, v{A0+k}")
    a("s_nop 0")
    for k in range(4):
        a(f"v_permlane16_swap_b32 v{A0+k}, v{G0+k}")
    a("s_nop 0")
    for k in range(4):
        a(f"v_add_f32 v{A0+k}, v{A0+k}, v{G0+k}")
    for k in range(4):
        bf16_round(a, A0+k)
    for k in range(4):
        a(f"v_mov_b32 v{G0+k}, v{A0+k}")
    a(f"v_lshlrev_b32 v{A1}, 16, v{XR}")
    a(f"v_and_b32 v{A1+1}, s{sMASK}, v{XR}")
    for k in range(4):
        a(f"v_permlane32_swap_b32 v{A0+k}, v{G0+k}")
    a(f"v_lshlrev_b32 v{A1+2}, 16, v{XR+1}")
    a(f"v_and_b32 v{A1+3}, s{sMASK}, v{XR+1}")
    for k in range(4):
        a(f"v_add_f32 v{A0+k}, v{A0+k}, v{A1+k}")
    for k in range(4):
        bf16_round(a, A0+k)
    for k in range(4):
        a(f"v_add_f32 v{A0+k}, v{A0+k}, v{G0+k}")
    a(f"v_cvt_pk_bf16_f32 v{A0}, v{A0}, v{A0+1}")
    a(f"v_cvt_pk_bf16_f32 v{A0+1}, v{A0+2}, v{A0+3}")
    a(f"s_mul_i32 s{sT1}, s{sB}, 896")
    srd(a, dGU, sOUT_, f"s{sT1}", 896)
    a(f"s_lshl_b32 s{sT0}, s{sJ}, 5")
    a("s_mov_b64 exec, 15")
    a(f"buffer_store_dwordx2 v[{A0}:{A0+1}], v{CL+4}, s[{dGU}:{dGU+3}], s{sT0} offen {cfg.get('outf','')}")
    a("s_mov_b64 exec, -1")
    a("L_fin:")
    if cfg.get("stamps"):
        a("s_waitcnt vmcnt(0)")
        stamp(a, cfg, 7)
        a("v_writelane_b32 v7, s98, 0")
        a("s_getreg_b32 s96, hwreg(HW_REG_XCC_ID)")
        a("v_writelane_b32 v7, s96, 8")
        a(f"s_lshl_b32 s{sT0}, s2, 3")
        a(f"s_add_u32 s{sT0}, s{sT0}, s{sW}")
        a(f"s_lshl_b32 s{sT0}, s{sT0}, 6")
        a(f"s_add_u32 s{sT0}, s{sT0}, 0x200000")
        a(f"v_lshlrev_b32 v{vA0}, 2, v{vLANE}")
        a("s_mov_b64 exec, 0xffff")
        a(f"buffer_store_dword v7, v{vA0}, s[{dWS}:{dWS+3}], s{sT0} offen")
    a("L_end:")
    a("s_endpgm")
    hdr = open(REF).read().split("; Override launch")[0] if os.path.exists(REF) else ""
    return hdr + f"""; @launch grid=(256,1,1) block=(512,1,1) lds={LDS_BYTES}
""" + DOC + f""".amdgcn_target "amdgcn-amd-amdhsa--gfx950"
.text
.globl {KN}
.p2align 8
.type {KN},@function
{KN}:
""" + a.text() + f""".section .rodata,"a"
.p2align 6
.amdhsa_kernel {KN}
  .amdhsa_next_free_vgpr 256
  .amdhsa_next_free_sgpr 102
  .amdhsa_accum_offset 256
  .amdhsa_group_segment_fixed_size 0
  .amdhsa_kernarg_size 96
  .amdhsa_user_sgpr_count 2
  .amdhsa_user_sgpr_kernarg_segment_ptr 1
  .amdhsa_system_sgpr_workgroup_id_x 1
.end_amdhsa_kernel
"""

if __name__ == "__main__":
    name = sys.argv[1]
    cfg = {"n1": 6, "spr1": 20, "n2": 6, "spr2": 30, "pace": 99, "n0": 4, "outf": "sc1", "sleep": 1, "vw": 12, "dynw": 4, "bar0": 0}
    cfg.update(json.loads(sys.argv[2]) if len(sys.argv) > 2 else {})
    open(name, "w").write(gen(cfg))
```

```python
import struct, sys, os, json

KN = "parallel_sum__mha_block_cached__glu_gated_glu__decode_kernel"
REF = "parallel_sum__mha_block_cached__glu_gated_glu__decode.s.ref"
LOG2E = 1.4426950408889634

DOC = '''; Fused LayerNorm + q-projection + decode attention + output projection + GLU + residual, one launch.
;   * the last 3/16 of each head's keys are claimed tile pair by tile pair by the two workgroups of that head.
'''

def f32(x):
    return "0x%08x" % struct.unpack("<I", struct.pack("<f", x))[0]

class Asm:
    def __init__(self):
        self.lines = []
        self.vm = []
    def __call__(self, s):
        for l in s.strip("\n").split("\n"):
            self.lines.append("  " + l.strip() if not l.strip().endswith(":") else l.strip())
    def c(self, s):
        self.lines.append("  ; " + s)
    def vmem(self, s, tag):
        self(s); self.vm.append(tag)
    def wait_tag(self, tag):
        idx = max(i for i, t in enumerate(self.vm) if t == tag)
        n = len(self.vm) - 1 - idx
        self(f"s_waitcnt vmcnt({n})")
        self.vm = self.vm[idx+1:]
    def text(self):
        return "\n".join(self.lines) + "\n"

XT   = 0
QP   = 16384
GP   = QP + 4096
YG   = GP + 2048
OP   = YG + 16384
OPS  = 1040
ML   = OP + 8*OPS
CNT  = ML + 64
QFL  = CNT + 4
QL   = CNT + 64
YA   = QL + 512
LDS_BYTES = YA + 16384
SLOT = 4096
WS_CLM = 0x180000
WS_Q   = 0x1A0000

sBH = 3
sX_, sK_, sV_, sWQ_, sWO_, sBX_, sWG_, sWU_ = 4, 6, 8, 10, 12, 14, 16, 18
sWD_, sOUT_, sDBG_, sWS_ = 20, 22, 24, 26
dK, dV, dWQ, dGU, dX, dWO, dWD, dWS = 28, 32, 36, 40, 44, 48, 52, 56
sW, sB, sH, sS, sJ, sIT, sOFF, sT0, sT1, sMASK, sT2, sT3 = 60, 61, 62, 63, 64, 65, 66, 67, 68, 69, 70, 71
sP = 72
sO1, sO2, sO3 = 88, 89, 90
sOB, sVALID, sCNT = 88, 89, 90
sJO, sIDX, sPL, sPH, sSLOT = 91, 92, 93, 94, 95
sST = 92
sPR = 74
sO4, sO5 = 75, 76
KE, VE, KF, VF = 192, 208, 224, 240
sGO = 87
sNL, sNH = 72, 73
vLANE, vL16, vWQO, vGUO, vA0, vA1 = 1, 2, 3, 4, 5, 6
vCLM, vCHK = 3, 46
vQ = 8
vO = 12
vM, vL = 20, 21
STG = 48
KA, VA, KB, VB = 64, 80, 96, 112
W = 128
KC, VC, KD, VD = 128, 144, 160, 176
GUR = 192

def srd(a, d, base, off_s, nrec):
    if off_s is None:
        a(f"s_mov_b32 s{d}, s{base}")
        a(f"s_mov_b32 s{d+1}, s{base+1}")
    else:
        a(f"s_add_u32 s{d}, s{base}, {off_s}")
        a(f"s_addc_u32 s{d+1}, s{base+1}, 0")
    a(f"s_mov_b32 s{d+2}, {nrec}")
    a(f"s_mov_b32 s{d+3}, 0x00020000")

def dpp(op, d, s0, s1, ctrl, rm="0xf", bm="0xf"):
    return f"{op}_dpp v{d}, v{s0}, v{s1} {ctrl} row_mask:{rm} bank_mask:{bm}"

def reduce64(a, op, v, sdst):
    for ctrl, rm in (("quad_perm:[1,0,3,2]", "0xf"), ("quad_perm:[2,3,0,1]", "0xf"), ("row_half_mirror", "0xf"),
                     ("row_mirror", "0xf"), ("row_bcast:15", "0xa"), ("row_bcast:31", "0xc")):
        a("s_nop 1")
        a(dpp(op, v, v, v, ctrl, rm))
    a("s_nop 0")
    a(f"v_readlane_b32 s{sdst}, v{v}, 63")

def bsel(m):
    return "op_sel:[0,1,0] op_sel_hi:[1,1,1]" if m & 1 else "op_sel_hi:[1,0,1]"

def pkfma_bcast(acc, u, m, sgpr=False):
    r = "s" if sgpr else "v"
    base = m & ~1
    return f"v_pk_fma_f32 v[{acc}:{acc+1}], v[{u}:{u+1}], {r}[{base}:{base+1}], v[{acc}:{acc+1}] {bsel(m)}"

def unpack(a, data, tmp):
    for k in range(4):
        a(f"v_lshlrev_b32 v{tmp+2*k}, 16, v{data+k}")
        a(f"v_and_b32 v{tmp+2*k+1}, s{sMASK}, v{data+k}")

def axpy_row(a, acc, data, m, tmp, sgpr=False):
    unpack(a, data, tmp)
    for k in range(4):
        a(pkfma_bcast(acc+2*k, tmp+2*k, m, sgpr))

def bf16_round(a, v):
    a(f"v_cvt_pk_bf16_f32 v{v}, v{v}, v{v}")
    a(f"v_and_b32 v{v}, s{sMASK}, v{v}")

def stamp(a, cfg, idx):
    if cfg.get("stamps"):
        a("s_memrealtime s[96:97]")
        a("s_waitcnt lgkmcnt(0)")
        a(f"v_writelane_b32 v7, s96, {idx}")

def gen(cfg):
    KVF = cfg.get("kvflags", "nt")
    KF_ = cfg.get("kf", KVF); VF_ = cfg.get("vf", KVF)
    WF = cfg.get("wflags", "")
    WQF = cfg.get("wqf", WF); WOF = cfg.get("wof", WF); GUF = cfg.get("guf", WF); WDF = cfg.get("wdf", WF)
    SLEEP = cfg.get("sleep", 4)
    VW = cfg.get("vw", 12)
    PACE = cfg.get("pace", 3)
    SI = cfg.get("si", 11)
    NPRE = cfg.get("npre", 4)
    NST = NPRE + 2*SI
    NDYN = (512 - 16*NST)//2
    SPIN = 0x200000
    a = Asm()
    a("s_cmp_ge_u32 s2, 256")
    a("s_cbranch_scc1 L_end")
    a("s_load_dwordx16 s[4:19], s[0:1], 0")
    a("s_load_dwordx8 s[20:27], s[0:1], 64")
    if cfg.get("stamps"):
        a("v_mov_b32 v7, 0")
        a("s_memrealtime s[98:99]")
    if cfg.get("prog"):
        a("s_memrealtime s[98:99]")
        a("s_waitcnt lgkmcnt(0)")
        a("s_mov_b32 s99, s98")
    a(f"v_and_b32 v{vLANE}, 63, v0")
    a(f"v_lshrrev_b32 v{vA0}, 6, v0")
    a(f"v_lshlrev_b32 v{vL16}, 4, v{vLANE}")
    a(f"v_readfirstlane_b32 s{sW}, v{vA0}")
    a.c("decode workgroup id: xcd=g&7, e=(g>>3)&1, s=(g>>4)&1, b=g>>5; the two key halves of a head sit on xcd i and i+1+2e")
    a(f"s_and_b32 s{sT0}, s2, 7")
    a(f"s_bfe_u32 s{sT1}, s2, 0x10003")
    a(f"s_bfe_u32 s{sS}, s2, 0x10004")
    a(f"s_lshr_b32 s{sB}, s2, 5")
    if cfg.get("pair", "xor") == "k44":
        a(f"s_lshl_b32 s{sT2}, s{sT1}, 1")
        a(f"s_add_u32 s{sT2}, s{sT2}, 1")
        a(f"s_mul_i32 s{sT2}, s{sT2}, s{sS}")
        a(f"s_sub_u32 s{sT0}, s{sT0}, s{sT2}")
        a(f"s_and_b32 s{sT0}, s{sT0}, 7")
    elif cfg.get("pair", "xor") == "xor":
        a(f"s_lshl_b32 s{sT2}, s{sT1}, 1")
        a(f"s_add_u32 s{sT2}, s{sT2}, 3")
        a(f"s_mul_i32 s{sT2}, s{sT2}, s{sS}")
        a(f"s_xor_b32 s{sT0}, s{sT0}, s{sT2}")
    elif cfg.get("pair") == "tab":
        inv0, inv1 = cfg["inv0"], cfg["inv1"]
        pk = lambda t: sum(v << (4*i) for i, v in enumerate(t))
        a(f"s_mov_b32 s{sT2}, {pk(inv0):#x}")
        a(f"s_cmp_eq_u32 s{sT1}, 0")
        a(f"s_cselect_b32 s{sT2}, s{sT2}, {pk(inv1):#x}")
        a(f"s_cmp_eq_u32 s{sS}, 0")
        a(f"s_cselect_b32 s{sT2}, 0x76543210, s{sT2}")
        a(f"s_lshl_b32 s{sT0}, s{sT0}, 2")
        a(f"s_lshr_b32 s{sT0}, s{sT2}, s{sT0}")
        a(f"s_and_b32 s{sT0}, s{sT0}, 7")
    a(f"s_lshl_b32 s{sH}, s{sT0}, 1")
    a(f"s_add_u32 s{sH}, s{sH}, s{sT1}")
    a(f"s_lshl_b32 s{sJ}, s{sH}, 1")
    a(f"s_add_u32 s{sJ}, s{sJ}, s{sS}")
    a(f"s_mov_b32 s{sMASK}, 0xffff0000")
    a.c("wq slice voffset = (lane>>1)*8192 + (lane&1)*16")
    a(f"v_lshrrev_b32 v{vA0}, 1, v{vLANE}")
    a(f"v_and_b32 v{vA1}, 1, v{vLANE}")
    a(f"v_lshlrev_b32 v{vWQO}, 13, v{vA0}")
    a(f"v_lshl_add_u32 v{vWQO}, v{vA1}, 4, v{vWQO}")
    a(f"s_lshl_b32 s{sBH}, s{sB}, 4")
    a(f"s_add_u32 s{sBH}, s{sBH}, s{sH}")
    a(f"s_lshl_b32 s{sT0}, s{sBH}, 21")
    a(f"s_mul_i32 s{sT1}, s{sW}, 896")
    a.c("p = s*8 + b ; flag byte index = h*16 + p ; wq column byte offset = h*512 + p*32")
    a(f"s_lshl_b32 s{sPL}, s{sS}, 3")
    a(f"s_add_u32 s{sPL}, s{sPL}, s{sB}")
    a(f"s_lshl_b32 s{sPH}, s{sH}, 4")
    a(f"s_add_u32 s{sPH}, s{sPH}, s{sPL}")
    a(f"s_lshl_b32 s{sT2}, s{sPH}, 5")
    a(f"s_sub_u32 s{sT3}, {448*8192}, s{sT2}")
    ADJ = cfg.get("adj", 0)
    DB = 0x1000 if ADJ else 0x8000
    a(f"s_lshl_b32 s{sOFF}, s{sW}, {13 if ADJ else 12}")
    a(f"s_mul_i32 s{sO1}, s{sS}, {NST*8*4096}")
    a(f"s_add_u32 s{sOFF}, s{sOFF}, s{sO1}")
    a(f"s_sub_u32 s{sPR}, 7, s{sW}")
    a(f"s_lshl_b32 s{sIT}, s{sPR}, 19")
    a(f"s_add_u32 s{sJO}, s{sIT}, 0x40000")
    a(f"s_add_u32 s{sO1}, s{sOFF}, {DB}")
    a(f"s_add_u32 s{sO2}, s{sOFF}, 0x10000")
    a(f"s_add_u32 s{sO3}, s{sOFF}, {0x10000+DB}")
    a(f"s_add_u32 s{sO4}, s{sOFF}, 0x20000")
    a(f"s_add_u32 s{sO5}, s{sOFF}, {0x20000+DB}")
    a("s_waitcnt lgkmcnt(0)")
    X4 = 24; WQ0 = 56; WQ1 = 60
    srd(a, dX, sX_, f"s{sT1}", 896)
    a.vmem(f"buffer_load_dwordx4 v[{X4}:{X4+3}], v{vL16}, s[{dX}:{dX+3}], 0 offen", "x")
    srd(a, dWQ, sWQ_, f"s{sT2}", f"s{sT3}")
    a.vmem(f"buffer_load_dwordx4 v[{WQ0}:{WQ0+3}], v{vWQO}, s[{dWQ}:{dWQ+3}], s{sIT} offen {WQF}", "wq0")
    a.vmem(f"buffer_load_dwordx4 v[{WQ1}:{WQ1+3}], v{vWQO}, s[{dWQ}:{dWQ+3}], s{sJO} offen {WQF}", "wq1")
    a.c("launch nonce of this head: first arriver's clock value, agreed through a compare-swap on zeroed d_debug")
    NON = 20
    a(f"s_cmp_lg_u32 s{sW}, 0")
    a("s_cbranch_scc1 L_nonon")
    a("s_memrealtime s[100:101]")
    a(f"s_lshl_b32 s{sT1}, s{sH}, 3")
    a(f"v_mov_b32 v{vA0}, s{sT1}")
    a(f"v_mov_b32 v{NON+1}, 0")
    a("s_waitcnt lgkmcnt(0)")
    a("s_or_b32 s100, s100, 1")
    a(f"v_mov_b32 v{NON}, s100")
    a("s_mov_b64 exec, 1")
    a(f"global_atomic_cmpswap v{NON}, v{vA0}, v[{NON}:{NON+1}], s[{sDBG_}:{sDBG_+1}] sc0 sc1")
    a("s_mov_b64 exec, -1")
    a("L_nonon:")
    srd(a, dK, sK_, f"s{sT0}", 0x200000)
    srd(a, dV, sV_, f"s{sT0}", 0x200000)
    if cfg.get("bar0", 1):
        a("s_barrier")
    kv = []
    for (K, V, so) in ((KA, VA, sOFF), (KB, VB, sO1), (KC, VC, sO2), (KD, VD, sO3), (KE, VE, sO4), (KF, VF, sO5))[:NPRE]:
        kv += [(K, dK, so, i) for i in range(4)] + [(V, dV, so, i) for i in range(4)]
    def kvone():
        base, d, so, i = kv.pop(0)
        a.vmem(f"buffer_load_dwordx4 v[{base+4*i}:{base+4*i+3}], v{vL16}, s[{d}:{d+3}], s{so} offen offset:{i*1024} {KF_ if d == dK else VF_}", "kv")
    def sprinkle(start, every, count):
        body = a.lines[start:]
        del a.lines[start:]
        k = 0
        for n_, l in enumerate(body):
            a.lines.append(l)
            if k < count and n_ % every == every-1 and not l.strip().startswith(("s_waitcnt vmcnt", ";")):
                kvone(); k += 1
        while k < count:
            kvone(); k += 1
    def kvgroup(paced):
        for _ in range(4):
            base, d, so, i = kv.pop(0)
            a.vmem(f"buffer_load_dwordx4 v[{base+4*i}:{base+4*i+3}], v{vL16}, s[{d}:{d+3}], s{so} offen offset:{i*1024} {KF_ if d == dK else VF_}", "kv")
            if paced:
                a(f"s_waitcnt vmcnt({PACE})")
    for _ in range(cfg.get("n0", 4)):
        kvone()
    stamp(a, cfg, 1)
    srd(a, dWS, sWS_, None, 0x400000)
    a(f"s_lshl_b32 s{sSLOT}, s{sB}, 5")
    a(f"s_add_u32 s{sSLOT}, s{sSLOT}, s{sJ}")
    a(f"s_lshl_b32 s{sSLOT}, s{sSLOT}, 12")
    for k in range(8):
        a(f"v_mov_b32 v{vO+k}, 0")
    a(f"s_cmp_lt_u32 s{sW}, 4")
    a(f"s_cselect_b32 s{dGU}, s{sWG_}, s{sWU_}")
    a(f"s_cselect_b32 s{dGU+1}, s{sWG_+1}, s{sWU_+1}")
    a(f"s_mov_b32 s{dGU+2}, {448*3584}")
    a(f"s_mov_b32 s{dGU+3}, 0x00020000")
    srd(a, dWO, sWO_, None, 4096*896)
    srd(a, dWD, sWD_, None, 1792*896)
    a(f"v_cmp_gt_u32 vcc, 56, v{vLANE}")
    a(f"v_mov_b32 v{vA0}, {CNT}")
    a(f"ds_write_b128 v{vA0}, v[{vO}:{vO+3}]")
    a.c("LayerNorm: wave w normalises x[w]")
    E = 28; S0 = 36
    a.wait_tag("x")
    ln0 = len(a.lines)
    unpack(a, X4, E)
    a(f"v_add_f32 v{S0}, v{E}, v{E+1}")
    a(f"v_add_f32 v{S0+1}, v{E+2}, v{E+3}")
    a(f"v_add_f32 v{S0+2}, v{E+4}, v{E+5}")
    a(f"v_add_f32 v{S0+3}, v{E+6}, v{E+7}")
    a(f"v_add_f32 v{S0}, v{S0}, v{S0+1}")
    a(f"v_add_f32 v{S0+2}, v{S0+2}, v{S0+3}")
    a(f"v_add_f32 v{S0}, v{S0}, v{S0+2}")
    reduce64(a, "v_add_f32", S0, sT0)
    MEAN = S0+1; ACC = S0+2; D = S0+4
    a("s_nop 1")
    a(f"v_mov_b32 v{MEAN}, s{sT0}")
    a(f"v_mul_f32 v{MEAN}, {f32(1.0/448)}, v{MEAN}")
    for k in range(8):
        a(f"v_sub_f32 v{D+k}, v{E+k}, v{MEAN}")
    a(f"v_mul_f32 v{ACC}, v{D}, v{D}")
    for k in range(1, 8):
        a(f"v_fmac_f32 v{ACC}, v{D+k}, v{D+k}")
    a(f"v_cndmask_b32 v{ACC}, 0, v{ACC}, vcc")
    reduce64(a, "v_add_f32", ACC, sT0)
    bf16_round(a, MEAN)
    a(f"v_mov_b32 v{ACC}, s{sT0}")
    a(f"v_mul_f32 v{ACC}, {f32(1.0/448)}, v{ACC}")
    bf16_round(a, ACC)
    a(f"v_add_f32 v{ACC}, {f32(1e-5)}, v{ACC}")
    bf16_round(a, ACC)
    a(f"v_sqrt_f32 v{ACC}, v{ACC}")
    for k in range(8):
        a(f"v_sub_f32 v{D+k}, v{E+k}, v{MEAN}")
    bf16_round(a, ACC)
    a(f"v_rcp_f32 v{ACC}, v{ACC}")
    for k in range(4):
        a(f"v_cvt_pk_bf16_f32 v{X4+k}, v{D+2*k}, v{D+2*k+1}")
    unpack(a, X4, D)
    for k in range(8):
        a(f"v_mul_f32 v{D+k}, v{D+k}, v{ACC}")
    for k in range(4):
        a(f"v_cvt_pk_bf16_f32 v{X4+k}, v{D+2*k}, v{D+2*k+1}")
    unpack(a, X4, E)
    a(f"v_lshlrev_b32 v{vA0}, 5, v{vLANE}")
    a(f"s_lshl_b32 s{sT0}, s{sW}, 11")
    a(f"v_add_u32 v{vA0}, s{sT0}, v{vA0}")
    a(f"ds_write_b128 v{vA0}, v[{E}:{E+3}] offset:{XT}")
    a(f"ds_write_b128 v{vA0}, v[{E+4}:{E+7}] offset:{XT+16}")
    a.c("multiplier addresses: row (64w + 32i + lane>>1) * 4")
    a(f"v_lshrrev_b32 v{vA0}, 1, v{vLANE}")
    a(f"v_lshlrev_b32 v{vA0}, 2, v{vA0}")
    a(f"s_lshl_b32 s{sT0}, s{sPR}, 8")
    a(f"v_add_u32 v{vA0}, s{sT0}, v{vA0}")
    a(f"v_add_u32 v{vA1}, 128, v{vA0}")
    sprinkle(ln0, cfg.get("spr1", 30), cfg.get("n1", 4))
    a("s_waitcnt lgkmcnt(0)")
    a("s_barrier")
    stamp(a, cfg, 2)
    XM = 24
    for k in range(4):
        a(f"ds_read2st64_b32 v[{XM+2*k}:{XM+2*k+1}], v{vA0} offset0:{XT//256+16*k} offset1:{XT//256+16*k+8}")
    for k in range(4):
        a(f"ds_read2st64_b32 v[{XM+8+2*k}:{XM+8+2*k+1}], v{vA1} offset0:{XT//256+16*k} offset1:{XT//256+16*k+8}")
    U0 = 40; U1 = 48
    a.wait_tag("wq1")
    fm0 = len(a.lines)
    unpack(a, WQ0, U0)
    unpack(a, WQ1, U1)
    QA = GUR
    a("s_waitcnt lgkmcnt(4)")
    for b in range(8):
        for k in range(4):
            m = XM + b
            sel = "op_sel:[0,1] op_sel_hi:[1,1]" if m & 1 else "op_sel_hi:[1,0]"
            a(f"v_pk_mul_f32 v[{QA+8*b+2*k}:{QA+8*b+2*k+1}], v[{U0+2*k}:{U0+2*k+1}], v[{m&~1}:{(m&~1)+1}] {sel}")
    a("s_waitcnt lgkmcnt(0)")
    for b in range(8):
        for k in range(4):
            a(pkfma_bcast(QA+8*b+2*k, U1+2*k, XM+8+b))
    a.c("transposing reduction over lane bits 5,4,3,2 then all-reduce over bit 1")
    for r in range(32):
        a(f"v_permlane32_swap_b32 v{QA+r}, v{QA+32+r}")
    for r in range(0, 32, 2):
        a(f"v_pk_add_f32 v[{QA+r}:{QA+r+1}], v[{QA+r}:{QA+r+1}], v[{QA+32+r}:{QA+32+r+1}]")
    for r in range(16):
        a(f"v_permlane16_swap_b32 v{QA+r}, v{QA+16+r}")
    for r in range(0, 16, 2):
        a(f"v_pk_add_f32 v[{QA+r}:{QA+r+1}], v[{QA+r}:{QA+r+1}], v[{QA+16+r}:{QA+16+r+1}]")
    R3 = QA + 32
    for r in range(8):
        a(dpp("v_add_f32", R3+r, QA+r, QA+r, "row_ror:8", bm="0x3"))
    for r in range(8):
        a(dpp("v_add_f32", R3+r, QA+8+r, QA+8+r, "row_ror:8", bm="0xc"))
    R4 = QA + 48
    for r in range(4):
        a(dpp("v_add_f32", R4+r, R3+r, R3+r, "row_shl:4", bm="0x5"))
    for r in range(4):
        a(dpp("v_add_f32", R4+r, R3+4+r, R3+4+r, "row_shr:4", bm="0xa"))
    a.c("LDS addr = QP + w*512 + (lane>>3)*64 + (lane&1)*32 + ((lane>>2)&1)*16")
    a(f"v_lshrrev_b32 v{vA0}, 3, v{vLANE}")
    a(f"v_lshlrev_b32 v{vA0}, 6, v{vA0}")
    a(f"v_and_b32 v{vA1}, 1, v{vLANE}")
    a(f"v_lshl_add_u32 v{vA0}, v{vA1}, 5, v{vA0}")
    a(f"v_and_b32 v{vA1}, 4, v{vLANE}")
    a(f"v_lshl_add_u32 v{vA0}, v{vA1}, 2, v{vA0}")
    for r in range(4):
        a(dpp("v_add_f32", R4+r, R4+r, R4+r, "quad_perm:[2,3,0,1]"))
    a(f"s_lshl_b32 s{sT0}, s{sPR}, 9")
    a(f"v_add_u32 v{vA0}, s{sT0}, v{vA0}")
    a(f"ds_write_b128 v{vA0}, v[{R4}:{R4+3}] offset:{QP}")
    sprinkle(fm0, cfg.get("spr2", 40), cfg.get("n2", 4))
    QD = 40
    VQA = 39
    a(f"v_and_b32 v{VQA}, 31, v{vLANE}")
    a(f"v_lshlrev_b32 v{VQA}, 5, v{VQA}")
    a(f"s_lshl_b32 s{sT3}, s{sBH}, 10")
    a(f"s_add_u32 s{sT3}, s{sT3}, {WS_Q}")
    a("s_waitcnt lgkmcnt(0)")
    a("s_barrier")
    a(f"s_cmp_lg_u32 s{sW}, 0")
    a("s_cbranch_scc1 L_nopub")
    a.c("wave 0: lanes 0..15 = (b, half): sum 7 partials, publish 8 tagged columns each, then poll for this WG's q")
    a(f"v_lshlrev_b32 v{vA0}, 5, v{vLANE}")
    a("s_mov_b64 exec, 0xffff")
    PR = GUR
    for w2 in range(7):
        a(f"ds_read_b128 v[{PR+8*w2}:{PR+8*w2+3}], v{vA0} offset:{QP+512*w2}")
        a(f"ds_read_b128 v[{PR+8*w2+4}:{PR+8*w2+7}], v{vA0} offset:{QP+512*w2+16}")
    a(f"v_lshrrev_b32 v{vA1}, 1, v{vLANE}")
    a(f"v_lshlrev_b32 v{vA1}, 14, v{vA1}")
    a(f"v_and_b32 v{vA0}, 1, v{vLANE}")
    a(f"v_lshl_add_u32 v{vA1}, v{vA0}, 5, v{vA1}")
    a(f"s_lshl_b32 s{sT0}, s{sPH}, 6")
    a(f"s_add_u32 s{sT0}, s{sT0}, {WS_Q}")
    a.c("nonce = returned old value, or our own proposal if the word was still zero")
    a(f"v_readfirstlane_b32 s{sT1}, v{NON}")
    a(f"s_cmp_eq_u32 s{sT1}, 0")
    a(f"s_cselect_b32 s{sT1}, s100, s{sT1}")
    a(f"s_and_b32 s{sNL}, s{sT1}, 0xffff")
    a(f"s_lshr_b32 s{sNH}, s{sT1}, 16")
    a(f"v_mov_b32 v{QD}, s{sNL}")
    a(f"v_mov_b32 v{QD+1}, s{sNH}")
    for w2 in range(1, 7):
        a(f"s_waitcnt lgkmcnt({12-2*w2})")
        for k in range(4):
            a(f"v_pk_add_f32 v[{PR+2*k}:{PR+2*k+1}], v[{PR+2*k}:{PR+2*k+1}], v[{PR+8*w2+2*k}:{PR+8*w2+2*k+1}]")
    for k in range(8):
        a(f"v_cvt_pk_bf16_f32 v{PR+k}, v{PR+k}, v{PR+k}")
    for k in range(8):
        a(f"v_and_or_b32 v{PR+56+k}, v{PR+k}, s{sMASK}, v{QD+(k&1)}")
    a(f"buffer_store_dwordx4 v[{PR+56}:{PR+59}], v{vA1}, s[{dWS}:{dWS+3}], s{sT0} offen sc1")
    a(f"buffer_store_dwordx4 v[{PR+60}:{PR+63}], v{vA1}, s[{dWS}:{dWS+3}], s{sT0} offen offset:16 sc1")
    a("s_mov_b64 exec, -1")
    stamp(a, cfg, 13)
    a(f"s_mov_b32 s{sIT}, 0")
    TX = 24
    a("L_qpoll:")
    a(f"buffer_load_dwordx4 v[{QD}:{QD+3}], v{VQA}, s[{dWS}:{dWS+3}], s{sT3} offen sc1")
    a(f"buffer_load_dwordx4 v[{QD+4}:{QD+7}], v{VQA}, s[{dWS}:{dWS+3}], s{sT3} offen offset:16 sc1")
    a(f"s_add_u32 s{sIT}, s{sIT}, 1")
    a("s_waitcnt vmcnt(0)")
    for k in range(8):
        a(f"v_xor_b32 v{TX+k}, s{sNH if k & 1 else sNL}, v{QD+k}")
    a(f"v_or3_b32 v{TX}, v{TX}, v{TX+1}, v{TX+2}")
    a(f"v_or3_b32 v{TX+3}, v{TX+3}, v{TX+4}, v{TX+5}")
    a(f"v_or3_b32 v{TX}, v{TX}, v{TX+6}, v{TX+7}")
    a(f"v_or_b32 v{TX}, v{TX}, v{TX+3}")
    a(f"v_and_b32 v{TX}, 0xffff, v{TX}")
    a(f"v_cmp_ne_u32 vcc, 0, v{TX}")
    a("s_cbranch_vccz L_qgot")
    a(f"s_cmp_lt_u32 s{sIT}, {SPIN}")
    a("s_cbranch_scc1 L_qpoll")
    a("L_qgot:")
    a(f"s_mov_b32 s{sT0}, 0x07060302")
    for k in range(4):
        a(f"v_perm_b32 v{TX+k}, v{QD+2*k+1}, v{QD+2*k}, s{sT0}")
    a(f"v_lshrrev_b32 v{TX+4}, 1, v{VQA}")
    a(f"ds_write_b128 v{TX+4}, v[{TX}:{TX+3}] offset:{QL}")
    a(f"v_mov_b32 v{TX+5}, {QFL}")
    a(f"v_mov_b32 v{TX+6}, 1")
    a("s_waitcnt lgkmcnt(0)")
    a(f"ds_write_b32 v{TX+5}, v{TX+6}")
    stamp(a, cfg, 14)
    if cfg.get("stamps"):
        a(f"v_writelane_b32 v7, s{sIT}, 15")
    a("L_nopub:")
    a.c("wave 1 clears this workgroup's slot with the sentinel; in half 0 it also zeroes the pair's claim counter")
    a(f"s_cmp_lg_u32 s{sW}, 1")
    a("s_cbranch_scc1 L_noclr")
    for k in range(4):
        a(f"v_mov_b32 v{STG+k}, -1")
    for k in range(4):
        a(f"buffer_store_dwordx4 v[{STG}:{STG+3}], v{vL16}, s[{dWS}:{dWS+3}], s{sSLOT} offen offset:{1024*k} sc1")
    a(f"s_cmp_lg_u32 s{sS}, 0")
    a("s_cbranch_scc1 L_noclr")
    a(f"s_lshl_b32 s{sT0}, s{sBH}, 8")
    a(f"s_add_u32 s{sT0}, s{sT0}, {WS_CLM}")
    a("s_mov_b64 exec, 1")
    a(f"buffer_store_dword v{vO}, v{vO}, s[{dWS}:{dWS+3}], s{sT0} offen sc1")
    a("s_mov_b64 exec, -1")
    a("L_noclr:")
    while kv:
        if PACE < 60:
            a(f"s_waitcnt vmcnt({PACE})")
        kvone()
    a.c("GLU slice j < 28: 64 columns. gu voffset = (lane>>3)*3584 + (lane&7)*16 ; soffset = 112*(w&3)*3584 + j*128")
    a(f"v_lshrrev_b32 v{vA0}, 3, v{vLANE}")
    a(f"v_and_b32 v{vA1}, 7, v{vLANE}")
    a(f"v_mul_u32_u24 v{vGUO}, 3584, v{vA0}")
    a(f"v_lshl_add_u32 v{vGUO}, v{vA1}, 4, v{vGUO}")
    a(f"s_and_b32 s{sT0}, s{sW}, 3")
    a(f"s_mul_i32 s{sGO}, s{sT0}, {112*3584}")
    a(f"s_lshl_b32 s{sT1}, s{sJ}, 7")
    a(f"s_add_u32 s{sGO}, s{sGO}, s{sT1}")
    a.c("slices j >= 28 do not exist: zero-size descriptors make their loads return 0")
    a(f"s_cmp_lt_u32 s{sJ}, 28")
    a(f"s_cselect_b32 s{dGU+2}, s{dGU+2}, 0")
    a(f"s_cselect_b32 s{dWD+2}, s{dWD+2}, 0")
    a(f"s_mov_b32 s{sIT}, 0")
    a(f"v_mov_b32 v{vA0}, {QFL}")
    a(f"v_lshrrev_b32 v{vA1}, 1, v{VQA}")
    a("L_qwait:")
    a(f"ds_read_b32 v24, v{vA0}")
    a(f"ds_read_b128 v[{vQ}:{vQ+3}], v{vA1} offset:{QL}")
    a("s_waitcnt lgkmcnt(0)")
    a(f"v_readfirstlane_b32 s{sT0}, v24")
    a(f"s_cmp_lg_u32 s{sT0}, 0")
    a("s_cbranch_scc1 L_qok")
    a("s_sleep 1")
    a(f"s_add_u32 s{sIT}, s{sIT}, 1")
    a(f"s_cmp_lt_u32 s{sIT}, {SPIN}")
    a("s_cbranch_scc1 L_qwait")
    a("L_qok:")
    if cfg.get("dbgtime"):
        a("s_memrealtime s[96:97]")
        a("v_mov_b32 v22, 20")
        a("s_waitcnt lgkmcnt(0)")
        a("v_mov_b32 v23, s96")
        a("s_mov_b64 exec, 1")
        a(f"global_atomic_umax v22, v23, s[{sDBG_}:{sDBG_+1}] sc1")
        a("s_mov_b64 exec, -1")
    a(f"v_and_b32 v{vA1}, 31, v{vLANE}")
    a(f"v_lshlrev_b32 v{vA1}, 5, v{vA1}")
    a(f"v_lshrrev_b32 v{vA0}, 5, v{vLANE}")
    a(f"v_lshl_add_u32 v{vA1}, v{vA0}, 4, v{vA1}")
    a(f"v_mov_b32 v{vM}, {f32(-1e30)}")
    a(f"v_mov_b32 v{vL}, 0")
    a(f"s_mov_b32 s{sIT}, 0")
    a(f"s_mov_b32 s{sPL}, 0x05040100")
    a(f"s_mov_b32 s{sPH}, 0x07060302")
    a(f"s_add_u32 s{sOFF}, s{sOFF}, {NPRE*0x8000}")
    a(f"s_add_u32 s{sOB}, s{sOFF}, {DB}")
    a(f"s_lshl_b32 s{sCNT}, s{sBH}, 8")
    a(f"s_add_u32 s{sCNT}, s{sCNT}, {WS_CLM}")
    stamp(a, cfg, 3)
    if cfg.get("prog"):
        a("s_lshl_b32 s98, s2, 3")
        a(f"s_add_u32 s98, s98, s{sW}")
        a("s_lshl_b32 s98, s98, 8")
        a("s_add_u32 s98, s98, 0x200000")
        a("v_mov_b32 v22, s99")
        a("v_mov_b32 v23, 0")
        a("s_mov_b64 exec, 1")
        a(f"buffer_store_dword v22, v23, s[{dWS}:{dWS+3}], s98 offen")
        a("s_mov_b64 exec, -1")
        a("s_add_u32 s98, s98, 4")
    CZ = f32(0.0625*LOG2E)
    A = 22; Z = 26; P = 27; T = 28; PB = 30; U = 34
    def refill4(R, d, so, fl):
        mode = cfg.get("ldmode", "imm")
        for i in range(4):
            if mode == "sofs":
                a(f"s_add_u32 s{sT2}, s{so}, {i*1024}")
                a(f"buffer_load_dwordx4 v[{R+4*i}:{R+4*i+3}], v{vL16}, s[{d}:{d+3}], s{sT2} offen {fl}")
            else:
                if mode.startswith("nop"):
                    a(f"s_nop {mode[3:]}")
                a(f"buffer_load_dwordx4 v[{R+4*i}:{R+4*i+3}], v{vL16}, s[{d}:{d+3}], s{so} offen offset:{i*1024} {fl}")
    def tile(K, V, lab, refill=True, so=None):
        if refill:
            a(f"s_waitcnt vmcnt({VW})")
        for jj in range(4):
            for i in range(4):
                if jj == 0:
                    a(f"v_dot2_f32_bf16 v{A+i}, v{K+4*i}, v{vQ}, 0")
                else:
                    a(f"v_dot2c_f32_bf16 v{A+i}, v{K+4*i+jj}, v{vQ+jj}")
        if refill:
            refill4(K, dK, so, KF_)
        else:
            a("s_nop 2")
        a(f"v_permlane16_swap_b32 v{A}, v{A+1}")
        a(f"v_permlane16_swap_b32 v{A+2}, v{A+3}")
        a("s_nop 0")
        a(f"v_add_f32 v{A}, v{A}, v{A+1}")
        a(f"v_add_f32 v{A+2}, v{A+2}, v{A+3}")
        a("s_nop 0")
        a(dpp("v_add_f32", Z, A, A, "row_ror:8", bm="0x3"))
        a(dpp("v_add_f32", Z, A+2, A+2, "row_ror:8", bm="0xc"))
        for ctrl in ("quad_perm:[1,0,3,2]", "quad_perm:[2,3,0,1]", "row_half_mirror"):
            a("s_nop 1")
            a(dpp("v_add_f32", Z, Z, Z, ctrl))
        a(f"v_cvt_pk_bf16_f32 v{Z}, v{Z}, v{Z}")
        a(f"v_and_b32 v{Z}, s{sMASK}, v{Z}")
        a(f"v_mul_f32 v{Z}, {CZ}, v{Z}")
        a(f"v_cmp_gt_f32 vcc, v{Z}, v{vM}")
        a(f"s_cbranch_vccnz L_resc{lab}")
        a(f"L_back{lab}:")
        a(f"v_sub_f32 v{P}, v{Z}, v{vM}")
        a(f"v_exp_f32 v{P}, v{P}")
        a("s_nop 0")
        a(f"v_add_f32 v{vL}, v{vL}, v{P}")
        a(f"v_mov_b32 v{T}, v{P}")
        a("s_nop 1")
        a(f"v_permlane16_swap_b32 v{P}, v{T}")
        a("s_nop 1")
        a(f"v_mov_b32_dpp v{PB}, v{P} row_newbcast:0 row_mask:0xf bank_mask:0xf")
        a(f"v_mov_b32_dpp v{PB+1}, v{T} row_newbcast:0 row_mask:0xf bank_mask:0xf")
        a(f"v_mov_b32_dpp v{PB+2}, v{P} row_newbcast:8 row_mask:0xf bank_mask:0xf")
        a(f"v_mov_b32_dpp v{PB+3}, v{T} row_newbcast:8 row_mask:0xf bank_mask:0xf")
        if refill:
            a(f"s_waitcnt vmcnt({VW})")
        for i in range(4):
            axpy_row(a, vO, V+4*i, PB+i, U)
        if refill:
            refill4(V, dV, so, VF_)
    def claim():
        a(f"v_mov_b32 v{vCLM}, 1")
        a(f"v_mov_b32 v{vCHK}, 0")
        a("s_mov_b64 exec, 1")
        a(f"buffer_atomic_add v{vCLM}, v{vCHK}, s[{dWS}:{dWS+3}], s{sCNT} offen sc0 sc1")
        a("s_mov_b64 exec, -1")
    def resc(lab):
        a(f"L_resc{lab}:")
        a(f"v_max_f32 v{T}, v{Z}, v{vM}")
        for ctrl, rm in (("row_ror:8", "0xf"), ("row_bcast:15", "0xa"), ("row_bcast:31", "0xc")):
            a("s_nop 1")
            a(dpp("v_max_f32", T, T, T, ctrl, rm))
        a("s_nop 0")
        a(f"v_readlane_b32 s{sT0}, v{T}, 63")
        a("s_nop 1")
        a(f"v_subrev_f32 v{T}, s{sT0}, v{vM}")
        a(f"v_exp_f32 v{T}, v{T}")
        a(f"v_mov_b32 v{vM}, s{sT0}")
        a(f"v_mul_f32 v{vL}, v{vL}, v{T}")
        for k in range(4):
            a(f"v_pk_mul_f32 v[{vO+2*k}:{vO+2*k+1}], v[{vO+2*k}:{vO+2*k+1}], v[{T}:{T+1}] op_sel_hi:[1,0]")
        a(f"s_branch L_back{lab}")
    a(".p2align 6")
    a("L_loop:")
    tile(KA, VA, "A", so=sOFF)
    tile(KB, VB, "B", so=sOB)
    if cfg.get("stamps") and not cfg.get("epi"):
        for n2, itv in ((9, 2), (10, 5), (11, 8), (12, SI-1)):
            a(f"s_cmp_lg_u32 s{sIT}, {itv}")
            a(f"s_cbranch_scc1 L_nost{n2}")
            stamp(a, cfg, n2)
            a(f"L_nost{n2}:")
    if cfg.get("prog"):
        a("s_memrealtime s[96:97]")
        a("s_waitcnt lgkmcnt(0)")
        a("v_mov_b32 v22, s96")
        a("v_mov_b32 v23, 0")
        a("s_mov_b64 exec, 1")
        a(f"buffer_store_dword v22, v23, s[{dWS}:{dWS+3}], s98 offen")
        a("s_mov_b64 exec, -1")
        a("s_add_u32 s98, s98, 4")
    a(f"s_cmp_ge_u32 s{sIT}, {SI}")
    a("s_cbranch_scc1 L_dyn")
    a(f"s_cmp_lt_u32 s{sIT}, 11")
    a("s_cbranch_scc1 L_job")
    a("L_jobret:")
    a(f"s_add_u32 s{sIT}, s{sIT}, 1")
    a(f"s_add_u32 s{sOFF}, s{sOFF}, 0x10000")
    a(f"s_add_u32 s{sOB}, s{sOB}, 0x10000")
    a(f"s_cmp_lt_u32 s{sIT}, {SI-2}")
    a("s_cbranch_scc1 L_loop")
    a(f"s_cmp_eq_u32 s{sIT}, {SI}")
    a("s_cbranch_scc1 L_dyn0")
    a(f"s_cmp_eq_u32 s{sIT}, {SI-1}")
    a("s_cbranch_scc1 L_clm0")
    a.c("two iterations before the dynamic phase: fetch the per-batch 'slots cleared' counter")
    a(f"s_lshl_b32 s{sT0}, s{sB}, 4")
    a(f"s_add_u32 s{sT0}, s{sT0}, 128")
    a(f"v_mov_b32 v{vCHK}, s{sT0}")
    a(f"global_load_dword v{vCHK}, v{vCHK}, s[{sDBG_}:{sDBG_+1}] sc1")
    a("s_branch L_loop")
    a("L_clm0:")
    a.c("claims are allowed only once the counter's initialisation is known complete")
    a(f"v_readfirstlane_b32 s{sT0}, v{vCHK}")
    a(f"v_mov_b32 v{vCLM}, {NDYN}")
    if cfg.get("dynw", 8) < 8:
        a(f"s_cmp_ge_u32 s{sW}, {cfg['dynw']}")
        a("s_cbranch_scc1 L_loop")
    a(f"s_cmp_lt_u32 s{sT0}, 32")
    a("s_cbranch_scc1 L_noclm")
    claim()
    a("s_branch L_loop")
    a("L_dyn0:")
    a(f"s_mov_b32 s{sVALID}, 1")
    if cfg.get("dynbar", 1):
        a("s_barrier")
    a("L_dyn:")
    a(f"s_cmp_eq_u32 s{sVALID}, 0")
    a("s_cbranch_scc1 L_epi")
    a(f"v_readfirstlane_b32 s{sT0}, v{vCLM}")
    a(f"s_min_u32 s{sT0}, s{sT0}, {NDYN}")
    if cfg.get("dsplit"):
        a(f"s_lshl_b32 s{sOFF}, s{sT0}, 12")
        a(f"s_add_u32 s{sOFF}, s{sOFF}, {16*NST*4096}")
        a(f"s_add_u32 s{sOB}, s{sOFF}, {NDYN*4096}")
        a(f"s_cmp_lt_u32 s{sT0}, {NDYN}")
        a(f"s_cselect_b32 s{sOFF}, s{sOFF}, s{sOB}")
    else:
        a(f"s_lshl_b32 s{sOFF}, s{sT0}, 13")
        a(f"s_add_u32 s{sOFF}, s{sOFF}, {16*NST*4096}")
        a(f"s_add_u32 s{sOB}, s{sOFF}, 0x1000")
        a(f"s_cmp_lt_u32 s{sT0}, {NDYN}")
    a(f"s_cselect_b32 s{sVALID}, 1, 0")
    a("s_cbranch_scc0 L_loop")
    claim()
    a("s_branch L_loop")
    a("L_noclm:")
    a(f"s_cmp_eq_u32 s{sS}, 1")
    a("s_cbranch_scc1 L_loop")
    a.c("half 0 owns the counter: only its own wave 1's init matters; wait for wave 1's gu signal (LDS count 8)")
    a(f"v_mov_b32 v{vCHK}, {CNT}")
    a("L_nocl2:")
    a(f"ds_read_b32 v{vCLM}, v{vCHK}")
    a("s_waitcnt lgkmcnt(0)")
    a(f"v_readfirstlane_b32 s{sT0}, v{vCLM}")
    a(f"s_cmp_lt_u32 s{sT0}, 8")
    a("s_cbranch_scc1 L_nocl2")
    claim()
    a("s_branch L_loop")
    for lab in "ABCDEF"[:NPRE]:
        resc(lab)
    def wo_issue():
        for i in range(4):
            a(f"buffer_load_dwordx4 v[{STG+4*i}:{STG+4*i+3}], v{vL16}, s[{dWO}:{dWO+3}], s{sJO} offen offset:{i*896} {WOF}")
        a(f"s_add_u32 s{sJO}, s{sJO}, {4*896}")
    def gu_issue(g0, g1):
        for g in range(g0, g1):
            a(f"buffer_load_dwordx4 v[{GUR+4*g}:{GUR+4*g+3}], v{vGUO}, s[{dGU}:{dGU+3}], s{sGO} offen {GUF}")
            a(f"s_add_u32 s{sGO}, s{sGO}, {8*3584}")
    G = 38; XG = 22; UG = STG
    a("L_job:")
    a(f"s_cmp_eq_u32 s{sIT}, 0")
    a("s_cbranch_scc1 L_job0")
    a(f"s_cmp_gt_u32 s{sIT}, 8")
    a("s_cbranch_scc1 L_jobwd")
    a.c("slots 1..8: interleave two staged wo row pairs into W + idx")
    a(f"s_set_gpr_idx_on s{sIDX}, 0x8")
    a("s_nop 0")
    for pr in range(2):
        for e in range(4):
            r0 = STG + 8*pr + e; r1 = r0 + 4
            a(f"v_perm_b32 v{W+8*pr+2*e}, v{r1}, v{r0}, s{sPL}")
            a(f"v_perm_b32 v{W+8*pr+2*e+1}, v{r1}, v{r0}, s{sPH}")
    a("s_set_gpr_idx_off")
    a(f"s_add_u32 s{sIDX}, s{sIDX}, 16")
    a(f"s_cmp_eq_u32 s{sIT}, 8")
    a("s_cbranch_scc1 L_job8")
    a(f"s_cmp_eq_u32 s{sIT}, 4")
    a("s_cbranch_scc1 L_job4")
    wo_issue()
    a(f"s_cmp_gt_u32 s{sIT}, 3")
    a("s_cbranch_scc1 L_jobret")
    a(f"s_cmp_eq_u32 s{sIT}, 2")
    a("s_cbranch_scc1 L_job2")
    a(f"s_cmp_eq_u32 s{sIT}, 3")
    a("s_cbranch_scc1 L_job3")
    gu_issue(4, 8)
    a("s_branch L_jobret")
    a("L_job2:")
    gu_issue(8, 11)
    a("s_branch L_jobret")
    a("L_job3:")
    gu_issue(11, 14)
    a("s_branch L_jobret")
    a("L_job8:")
    a.c("w_down rows 64j+8w+i")
    a(f"s_lshl_b32 s{sT0}, s{sJ}, 6")
    a(f"s_lshl_b32 s{sT1}, s{sW}, 3")
    a(f"s_add_u32 s{sT0}, s{sT0}, s{sT1}")
    a(f"s_mul_i32 s{sJO}, s{sT0}, 896")
    for i in range(4):
        a(f"buffer_load_dwordx4 v[{STG+4*i}:{STG+4*i+3}], v{vL16}, s[{dWD}:{dWD+3}], s{sJO} offen offset:{i*896} {WDF}")
    a(f"s_add_u32 s{sJO}, s{sJO}, {4*896}")
    a("s_branch L_jobret")
    a("L_job0:")
    a("s_waitcnt vmcnt(16)")
    a.c("wave 1: its clearing stores are complete (older than everything waited for) -> count them")
    a(f"s_cmp_lg_u32 s{sW}, 1")
    a("s_cbranch_scc1 L_nocnt")
    a(f"s_lshl_b32 s{sT0}, s{sB}, 4")
    a(f"s_add_u32 s{sT0}, s{sT0}, 128")
    a(f"v_mov_b32 v{XG}, s{sT0}")
    a(f"v_mov_b32 v{XG+1}, 1")
    a("s_mov_b64 exec, 1")
    a(f"global_atomic_add v{XG}, v{XG+1}, s[{sDBG_}:{sDBG_+1}] sc1")
    a("s_mov_b64 exec, -1")
    a("L_nocnt:")
    a.c("wo rows h*256+32w+i")
    a(f"s_lshl_b32 s{sT0}, s{sH}, 8")
    a(f"s_lshl_b32 s{sT1}, s{sW}, 5")
    a(f"s_add_u32 s{sT0}, s{sT0}, s{sT1}")
    a(f"s_mul_i32 s{sJO}, s{sT0}, 896")
    a(f"s_mov_b32 s{sIDX}, 0")
    wo_issue()
    if NPRE == 6:
        tile(KE, VE, "E", refill=False)
        tile(KF, VF, "F", refill=False)
    gu_issue(0, 4)
    a.c("tiles C and D (prefetched in the prologue)")
    tile(KC, VC, "C", refill=False)
    tile(KD, VD, "D", refill=False)
    a("s_branch L_jobret")
    a("L_job4:")
    a.c("gate/up partial sums; multipliers xn[b][112*(w&3) + 8i + (lane>>3)]")
    a(f"v_lshrrev_b32 v{vA0}, 3, v{vLANE}")
    a(f"v_lshlrev_b32 v{vA0}, 2, v{vA0}")
    a(f"s_and_b32 s{sT0}, s{sW}, 3")
    a(f"s_mul_i32 s{sT0}, s{sT0}, 448")
    a(f"s_lshl_b32 s{sT1}, s{sB}, 11")
    a(f"s_add_u32 s{sT0}, s{sT0}, s{sT1}")
    a(f"v_add_u32 v{vA0}, s{sT0}, v{vA0}")
    for k in range(7):
        a(f"ds_read2_b32 v[{XG+2*k}:{XG+2*k+1}], v{vA0} offset0:{XT//4+16*k} offset1:{XT//4+16*k+8}")
    for k in range(8):
        a(f"v_mov_b32 v{G+k}, 0")
    a("s_waitcnt lgkmcnt(0)")
    for i in range(14):
        axpy_row(a, G, GUR+4*i, XG+i, UG)
    wo_issue()
    for k in range(4):
        a(f"v_permlane32_swap_b32 v{G+k}, v{G+4+k}")
    a("s_nop 0")
    for k in range(4):
        a(f"v_add_f32 v{G+k}, v{G+k}, v{G+4+k}")
    a("s_nop 0")
    a(f"v_permlane16_swap_b32 v{G}, v{G+2}")
    a(f"v_permlane16_swap_b32 v{G+1}, v{G+3}")
    a("s_nop 0")
    a(f"v_add_f32 v{G}, v{G}, v{G+2}")
    a(f"v_add_f32 v{G+1}, v{G+1}, v{G+3}")
    a.c("LDS addr = GP + w*256 + ((lane&7)*8 + (lane>>3))*4")
    a(f"v_and_b32 v{XG}, 7, v{vLANE}")
    a(f"v_lshrrev_b32 v{XG+1}, 3, v{vLANE}")
    a(dpp("v_add_f32", G+4, G, G, "row_ror:8", bm="0x3"))
    a(dpp("v_add_f32", G+4, G+1, G+1, "row_ror:8", bm="0xc"))
    a(f"v_lshl_add_u32 v{XG}, v{XG}, 3, v{XG+1}")
    a(f"v_lshlrev_b32 v{XG}, 2, v{XG}")
    a(f"s_lshl_b32 s{sT0}, s{sW}, 8")
    a(f"v_add_u32 v{XG}, s{sT0}, v{XG}")
    a(f"ds_write_b32 v{XG}, v{G+4} offset:{GP}")
    a(f"v_mov_b32 v{XG+2}, {CNT}")
    a(f"v_mov_b32 v{XG+3}, 1")
    a("s_waitcnt lgkmcnt(0)")
    a("s_mov_b64 exec, 1")
    a(f"ds_add_u32 v{XG+2}, v{XG+3}")
    a("s_mov_b64 exec, -1")
    a("s_branch L_jobret")
    a("L_jobwd:")
    a(f"v_lshlrev_b32 v{vA0}, 5, v{vLANE}")
    a(f"s_lshl_b32 s{sT0}, s{sW}, 11")
    a(f"v_add_u32 v{vA0}, s{sT0}, v{vA0}")
    a(f"s_cmp_eq_u32 s{sIT}, 10")
    a("s_cbranch_scc1 L_job10")
    a(f"v_mov_b32 v{XG}, {CNT}")
    a("L_cntspin:")
    a(f"ds_read_b32 v{XG+1}, v{XG}")
    a("s_waitcnt lgkmcnt(0)")
    a(f"v_readfirstlane_b32 s{sT0}, v{XG+1}")
    a(f"s_cmp_ge_u32 s{sT0}, 8")
    a("s_cbranch_scc1 L_cntok")
    a("s_sleep 16")
    a("s_branch L_cntspin")
    a("L_cntok:")
    a(f"v_lshlrev_b32 v{XG+8}, 2, v{vLANE}")
    a(f"v_add_u32 v{XG+8}, {GP}, v{XG+8}")
    for k in range(4):
        a(f"ds_read2st64_b32 v[{XG+2*k}:{XG+2*k+1}], v{XG+8} offset0:{2*k} offset1:{2*k+1}")
    for k in range(8):
        a(f"v_mov_b32 v{G+k}, 0")
    a(f"s_lshl_b32 s{sT0}, s{sW}, 3")
    a("s_waitcnt lgkmcnt(0)")
    a(f"v_add_f32 v{XG}, v{XG}, v{XG+1}")
    a(f"v_add_f32 v{XG+2}, v{XG+2}, v{XG+3}")
    a(f"v_add_f32 v{XG+4}, v{XG+4}, v{XG+5}")
    a(f"v_add_f32 v{XG+6}, v{XG+6}, v{XG+7}")
    a(f"v_add_f32 v{XG}, v{XG}, v{XG+2}")
    a(f"v_add_f32 v{XG+4}, v{XG+4}, v{XG+6}")
    bf16_round(a, XG)
    bf16_round(a, XG+4)
    a(f"v_mul_f32 v{XG}, {f32(-LOG2E)}, v{XG}")
    a(f"v_exp_f32 v{XG}, v{XG}")
    a("s_nop 0")
    a(f"v_add_f32 v{XG}, 1.0, v{XG}")
    a(f"v_rcp_f32 v{XG}, v{XG}")
    a("s_nop 0")
    bf16_round(a, XG)
    a(f"v_mul_f32 v{XG}, v{XG}, v{XG+4}")
    bf16_round(a, XG)
    a("s_nop 0")
    for i in range(8):
        a(f"v_readlane_b32 s{sP+i}, v{XG}, s{sT0}")
        a(f"s_add_u32 s{sT0}, s{sT0}, 1")
    a("s_nop 0")
    UW = 30
    for i in range(4):
        axpy_row(a, G, STG+4*i, sP+i, UW, sgpr=True)
    for i in range(4):
        a(f"buffer_load_dwordx4 v[{STG+4*i}:{STG+4*i+3}], v{vL16}, s[{dWD}:{dWD+3}], s{sJO} offen offset:{i*896} {WDF}")
    a(f"ds_write_b128 v{vA0}, v[{G}:{G+3}] offset:{YG}")
    a(f"ds_write_b128 v{vA0}, v[{G+4}:{G+7}] offset:{YG+16}")
    a("s_branch L_jobret")
    a("L_job10:")
    a(f"ds_read_b128 v[{G}:{G+3}], v{vA0} offset:{YG}")
    a(f"ds_read_b128 v[{G+4}:{G+7}], v{vA0} offset:{YG+16}")
    a("s_waitcnt lgkmcnt(0)")
    for i in range(4):
        axpy_row(a, G, STG+4*i, sP+4+i, UW, sgpr=True)
    a(f"ds_write_b128 v{vA0}, v[{G}:{G+3}] offset:{YG}")
    a(f"ds_write_b128 v{vA0}, v[{G+4}:{G+7}] offset:{YG+16}")
    a("s_branch L_jobret")
    a("L_epi:")
    if cfg.get("dbgtime"):
        a("s_memrealtime s[96:97]")
        a("v_mov_b32 v22, 12")
        a("s_waitcnt lgkmcnt(0)")
        a("v_mov_b32 v23, s96")
        a("s_mov_b64 exec, 1")
        a(f"global_atomic_umax v22, v23, s[{sDBG_}:{sDBG_+1}] sc1")
        a("s_mov_b64 exec, -1")
    stamp(a, cfg, 4)
    CW = 5
    CL = STG; XR = STG+2
    NCW = cfg.get("ncw", 1)
    a(f"s_sub_u32 s{sT0}, s{sW}, {CW}")
    a(f"s_cmp_ge_u32 s{sT0}, {NCW}")
    a("s_cbranch_scc1 L_epi1")
    a.c("consumer wave: 'slots cleared' counter of batch b, x for the residual")
    a(f"s_lshl_b32 s{sT0}, s{sB}, 4")
    a(f"s_add_u32 s{sT0}, s{sT0}, 128")
    a(f"v_mov_b32 v{CL+1}, s{sT0}")
    a(f"global_load_dword v{CL}, v{CL+1}, s[{sDBG_}:{sDBG_+1}] sc1")
    a(f"v_and_b32 v{CL+4}, 3, v{vLANE}")
    a(f"v_lshlrev_b32 v{CL+4}, 3, v{CL+4}")
    a(f"s_mul_i32 s{sT1}, s{sB}, 896")
    srd(a, dX, sX_, f"s{sT1}", 896)
    a(f"s_lshl_b32 s{sT0}, s{sJ}, 5")
    a(f"buffer_load_dwordx2 v[{XR}:{XR+1}], v{CL+4}, s[{dX}:{dX+3}], s{sT0} offen")
    if cfg.get("touch", 0):
        a.c("touch the output page now (value unused) so the final store does not pay the address translation")
        srd(a, dGU, sOUT_, f"s{sT1}", 896)
        a(f"buffer_load_dword v{CL+5}, v{CL+4}, s[{dGU}:{dGU+3}], s{sT0} offen")
    a("L_epi1:")
    a(dpp("v_add_f32", vL, vL, vL, "row_ror:8"))
    for k in range(4):
        a(f"v_permlane32_swap_b32 v{vO+k}, v{vO+4+k}")
    a(dpp("v_add_f32", vL, vL, vL, "row_bcast:15", "0xa"))
    for k in range(4):
        a(f"v_add_f32 v{vO+k}, v{vO+k}, v{vO+4+k}")
    a(dpp("v_add_f32", vL, vL, vL, "row_bcast:31", "0xc"))
    a(f"s_mul_i32 s{sT0}, s{sW}, {OPS}")
    a(f"v_add_u32 v{vA0}, s{sT0}, v{vA1}")
    a(f"ds_write_b128 v{vA0}, v[{vO}:{vO+3}] offset:{OP}")
    a(f"s_lshl_b32 s{sT0}, s{sW}, 3")
    a(f"v_mov_b32 v{vA0}, s{sT0}")
    a("s_lshl_b64 exec, 1, 63")
    a(f"ds_write_b64 v{vA0}, v[{vM}:{vL}] offset:{ML}")
    a("s_mov_b64 exec, -1")
    R = 22
    a(f"v_and_b32 v{R}, 7, v{vLANE}")
    a(f"v_lshlrev_b32 v{vA0}, 3, v{R}")
    a(f"v_mul_u32_u24 v{R}, {OPS}, v{R}")
    a(f"v_lshrrev_b32 v{R+1}, 3, v{vLANE}")
    a(f"v_lshl_add_u32 v{R}, v{R+1}, 4, v{R}")
    a(f"s_lshl_b32 s{sT0}, s{sW}, 7")
    a(f"v_add_u32 v{R}, s{sT0}, v{R}")
    a("s_waitcnt lgkmcnt(0)")
    a("s_barrier")
    MX = 24; O4 = 28; MM = 26; Y = 32
    if cfg.get("epi"): stamp(a, cfg, 9)
    a(f"ds_read_b64 v[{MX}:{MX+1}], v{vA0} offset:{ML}")
    a(f"ds_read_b128 v[{O4}:{O4+3}], v{R} offset:{OP}")
    for k in range(8):
        a(f"v_mov_b32 v{Y+k}, 0")
    a("s_waitcnt lgkmcnt(1)")
    a(dpp("v_max_f32", MM, MX, MX, "quad_perm:[1,0,3,2]"))
    a("s_nop 1")
    a(dpp("v_max_f32", MM, MM, MM, "quad_perm:[2,3,0,1]"))
    a("s_nop 1")
    a(dpp("v_max_f32", MM, MM, MM, "row_half_mirror"))
    a(f"v_sub_f32 v{MX}, v{MX}, v{MM}")
    a(f"v_exp_f32 v{MX}, v{MX}")
    a("s_waitcnt lgkmcnt(0)")
    a(f"v_mul_f32 v{MM+1}, v{MX+1}, v{MX}")
    for k in range(4):
        a(f"v_mul_f32 v{O4+k}, v{O4+k}, v{MX}")
    for ctrl in ("quad_perm:[1,0,3,2]", "quad_perm:[2,3,0,1]", "row_half_mirror"):
        a(dpp("v_add_f32", MM+1, MM+1, MM+1, ctrl))
        for k in range(4):
            a(dpp("v_add_f32", O4+k, O4+k, O4+k, ctrl))
    a(f"v_cvt_pk_bf16_f32 v{O4}, v{O4}, v{O4+1}")
    a(f"v_cvt_pk_bf16_f32 v{O4+1}, v{O4+2}, v{O4+3}")
    a("s_nop 0")
    for dq in range(8):
        a(f"v_readlane_b32 s{sP+2*dq}, v{O4}, {8*dq}")
        a(f"v_readlane_b32 s{sP+2*dq+1}, v{O4+1}, {8*dq}")
    a(f"v_lshlrev_b32 v{vA0}, 5, v{vLANE}")
    a(f"s_lshl_b32 s{sT0}, s{sW}, 11")
    a(f"v_add_u32 v{vA0}, s{sT0}, v{vA0}")
    if cfg.get("epi"): stamp(a, cfg, 10)
    for k in range(16):
        for e in range(8):
            a(f"v_dot2c_f32_bf16 v{Y+e}, s{sP+k}, v{W+8*k+e}")
    a("s_nop 3")
    if cfg.get("epi"): stamp(a, cfg, 11)
    a(f"ds_write_b128 v{vA0}, v[{Y}:{Y+3}] offset:{YA}")
    a(f"ds_write_b128 v{vA0}, v[{Y+4}:{Y+7}] offset:{YA+16}")
    a("s_waitcnt lgkmcnt(0)")
    a("s_barrier")
    stamp(a, cfg, 5)
    a(f"s_sub_u32 s{sT0}, s{sW}, {CW}")
    a(f"s_cmp_lt_u32 s{sT0}, {NCW}")
    a("s_cbranch_scc1 L_cons")
    a(f"s_cmp_gt_u32 s{sW}, 4")
    a("s_cbranch_scc1 L_fin")
    a(f"s_cmp_eq_u32 s{sW}, 4")
    a("s_cbranch_scc1 L_stml")
    a.c("waves 0,1: YA ; waves 2,3: YG ; n = (w&1)*64 + lane < 112")
    a(f"s_and_b32 s{sT0}, s{sW}, 1")
    a(f"s_lshl_b32 s{sT0}, s{sT0}, 10")
    a(f"v_add_u32 v{vA0}, s{sT0}, v{vL16}")
    a(f"s_lshr_b32 s{sT1}, s{sW}, 1")
    a(f"s_mov_b32 s{sT0}, {YA}")
    a(f"s_cmp_eq_u32 s{sT1}, 0")
    a(f"s_cselect_b32 s{sT0}, s{sT0}, {YG}")
    a(f"v_add_u32 v{R}, s{sT0}, v{vA0}")
    rds = [24, 28, 32, 36, 40, 44, 48, 52]
    for w2 in range(8):
        a(f"ds_read_b128 v[{rds[w2]}:{rds[w2]+3}], v{R} offset:{2048*w2}")
    a(f"s_mul_i32 s{sT1}, s{sT1}, 1792")
    a(f"s_add_u32 s{sT0}, s{sSLOT}, s{sT1}")
    a(f"v_cmp_gt_u32 vcc, 1792, v{vA0}")
    RD = rds[0]
    for w2 in range(1, 8):
        a(f"s_waitcnt lgkmcnt({7-w2})")
        a(f"v_pk_add_f32 v[{RD}:{RD+1}], v[{RD}:{RD+1}], v[{rds[w2]}:{rds[w2]+1}]")
        a(f"v_pk_add_f32 v[{RD+2}:{RD+3}], v[{RD+2}:{RD+3}], v[{rds[w2]+2}:{rds[w2]+3}]")
    a("s_and_saveexec_b64 s[100:101], vcc")
    a(f"buffer_store_dwordx4 v[{RD}:{RD+3}], v{vA0}, s[{dWS}:{dWS+3}], s{sT0} offen sc1")
    a("s_mov_b64 exec, -1")
    if cfg.get("epi"): stamp(a, cfg, 12)
    a("s_branch L_fin")
    a("L_stml:")
    a(f"v_mov_b32 v{vA0}, 3584")
    a("s_mov_b64 exec, 1")
    a(f"buffer_store_dwordx2 v[{MM}:{MM+1}], v{vA0}, s[{dWS}:{dWS+3}], s{sSLOT} offen sc1")
    a("s_mov_b64 exec, -1")
    a("s_branch L_fin")
    a("L_cons:")
    a(f"s_cmp_ge_u32 s{sJ}, 28")
    a("s_cbranch_scc1 L_fin")
    VO_, VM_ = 22, 23
    a(f"v_lshrrev_b32 v{VM_}, 2, v{vLANE}")
    a(f"v_lshlrev_b32 v{VM_}, 12, v{VM_}")
    a(f"v_and_b32 v{VO_}, 3, v{vLANE}")
    a(f"v_lshl_add_u32 v{VO_}, v{VO_}, 4, v{VM_}")
    a(f"s_lshl_b32 s{sT0}, s{sB}, 17")
    a(f"s_lshl_b32 s{sT1}, s{sJ}, 6")
    a(f"s_add_u32 s{sT1}, s{sT1}, s{sT0}")
    a(f"s_add_u32 s{sT2}, s{sT1}, 0x10000")
    a(f"s_add_u32 s{sT3}, s{sT0}, 0x10000")
    a(f"s_mov_b32 s{sIT}, 0")
    a("s_waitcnt vmcnt(0)")
    a("L_clrchk:")
    a(f"v_cmp_gt_u32 vcc, 32, v{CL}")
    a("s_cbranch_vccz L_poll0")
    a("s_sleep 8")
    a(f"global_load_dword v{CL}, v{CL+1}, s[{sDBG_}:{sDBG_+1}] sc1")
    a(f"s_add_u32 s{sIT}, s{sIT}, 1")
    a(f"s_cmp_lt_u32 s{sIT}, {SPIN}")
    a("s_waitcnt vmcnt(0)")
    a("s_cbranch_scc1 L_clrchk")
    a("L_poll0:")
    A0, A1, G0, G1, M0, M1 = 24, 28, 32, 36, 40, 42
    loads = [
        (A0, 4, VO_, sT1, 0), (A1, 4, VO_, sT2, 0), (G0, 4, VO_, sT1, 1792), (G1, 4, VO_, sT2, 1792),
        (M0, 2, VM_, sT0, 3584), (M1, 2, VM_, sT3, 3584)]
    masks = [sP + 2*i for i in range(6)]
    for m in masks:
        a(f"s_mov_b64 s[{m}:{m+1}], -1")
    a(f"s_mov_b32 s{sIT}, 0")
    DN = 46
    if NCW > 1:
        a(f"v_mov_b32 v{DN}, {CNT+8}")
        a(f"v_mov_b32 v{DN+1}, 1")
        for k in range(1, NCW):
            a(f"s_cmp_lt_u32 s{sW}, {CW+k}")
            a("s_cbranch_scc1 L_poll")
            a(f"s_sleep {cfg.get('stag', 10)}")
    a("L_poll:")
    for n2, ((r, cnt, vo, so, off), m) in enumerate(zip(loads, masks)):
        a(f"s_mov_b64 exec, s[{m}:{m+1}]")
        a(f"s_cbranch_execz L_skip{n2}")
        a(f"buffer_load_dwordx{cnt} v[{r}:{r+cnt-1}], v{vo}, s[{dWS}:{dWS+3}], s{so} offen offset:{off} sc1")
        a(f"L_skip{n2}:")
    a("s_mov_b64 exec, -1")
    a("s_waitcnt vmcnt(0)")
    TM = 44
    for (r, cnt, vo, so, off), m in zip(loads, masks):
        if cnt == 4:
            a(f"v_max3_u32 v{TM}, v{r}, v{r+1}, v{r+2}")
            a(f"v_max_u32 v{TM}, v{TM}, v{r+3}")
        else:
            a(f"v_max_u32 v{TM}, v{r}, v{r+1}")
        a(f"v_cmp_eq_u32 s[{m}:{m+1}], -1, v{TM}")
    a("s_nop 1")
    a(f"s_or_b64 s[100:101], s[{masks[0]}:{masks[0]+1}], s[{masks[1]}:{masks[1]+1}]")
    for m in masks[2:]:
        a(f"s_or_b64 s[100:101], s[100:101], s[{m}:{m+1}]")
    a("s_cbranch_scc0 L_ready")
    if NCW > 1:
        a.c("another consumer wave of this workgroup may already have finished the job")
        a(f"ds_read_b32 v{TM}, v{DN}")
        a("s_waitcnt lgkmcnt(0)")
        a(f"v_readfirstlane_b32 s{sIDX}, v{TM}")
        a(f"s_cmp_lg_u32 s{sIDX}, 0")
        a("s_cbranch_scc1 L_fin")
    a(f"s_add_u32 s{sIT}, s{sIT}, 1")
    a(f"s_cmp_lt_u32 s{sIT}, {SPIN}")
    if SLEEP:
        a(f"s_sleep {SLEEP}")
    a("s_cbranch_scc1 L_poll")
    a("L_ready:")
    if NCW > 1:
        a(f"ds_write_b32 v{DN}, v{DN+1}")
    stamp(a, cfg, 6)
    for M in (M0, M1):
        a(dpp("v_max_f32", TM + (M == M1), M, M, "row_half_mirror"))
    for M in (M0, M1):
        a(f"v_sub_f32 v{M}, v{M}, v{TM + (M == M1)}")
    for M in (M0, M1):
        a(f"v_exp_f32 v{M}, v{M}")
    a("s_nop 0")
    for M in (M0, M1):
        a(f"v_mul_f32 v{M+1}, v{M+1}, v{M}")
    a("s_nop 0")
    for M in (M0, M1):
        a(dpp("v_add_f32", M+1, M+1, M+1, "row_half_mirror"))
    for M in (M0, M1):
        a(f"v_rcp_f32 v{M+1}, v{M+1}")
    a(f"v_pk_add_f32 v[{G0}:{G0+1}], v[{G0}:{G0+1}], v[{G1}:{G1+1}]")
    a(f"v_pk_add_f32 v[{G0+2}:{G0+3}], v[{G0+2}:{G0+3}], v[{G1+2}:{G1+3}]")
    for M in (M0, M1):
        a(f"v_mul_f32 v{M}, v{M}, v{M+1}")
    a(f"v_pk_mul_f32 v[{A0}:{A0+1}], v[{A0}:{A0+1}], v[{M0}:{M0+1}] op_sel_hi:[1,0]")
    a(f"v_pk_mul_f32 v[{A0+2}:{A0+3}], v[{A0+2}:{A0+3}], v[{M0}:{M0+1}] op_sel_hi:[1,0]")
    a(pkfma_bcast(A0, A1, M1))
    a(pkfma_bcast(A0+2, A1+2, M1))
    regs8 = [G0, G0+1, G0+2, G0+3, A0, A0+1, A0+2, A0+3]
    for ctrl in ("row_ror:4", "row_ror:8"):
        for r in regs8:
            a(dpp("v_add_f32", r, r, r, ctrl))
    a("s_nop 0")
    for k in range(4):
        a(f"v_permlane32_swap_b32 v{A0+k}, v{G0+k}")
    a("s_nop 0")
    for k in range(4):
        a(f"v_add_f32 v{A0+k}, v{A0+k}, v{G0+k}")
    for k in range(4):
        a(f"v_mov_b32 v{G0+k}, v{A0+k}")
    a("s_nop 0")
    for k in range(4):
        a(f"v_permlane16_swap_b32 v{A0+k}, v{G0+k}")
    a("s_nop 0")
    for k in range(4):
        a(f"v_add_f32 v{A0+k}, v{A0+k}, v{G0+k}")
    for k in range(4):
        bf16_round(a, A0+k)
    for k in range(4):
        a(f"v_mov_b32 v{G0+k}, v{A0+k}")
    a(f"v_lshlrev_b32 v{A1}, 16, v{XR}")
    a(f"v_and_b32 v{A1+1}, s{sMASK}, v{XR}")
    for k in range(4):
        a(f"v_permlane32_swap_b32 v{A0+k}, v{G0+k}")
    a(f"v_lshlrev_b32 v{A1+2}, 16, v{XR+1}")
    a(f"v_and_b32 v{A1+3}, s{sMASK}, v{XR+1}")
    for k in range(4):
        a(f"v_add_f32 v{A0+k}, v{A0+k}, v{A1+k}")
    for k in range(4):
        bf16_round(a, A0+k)
    for k in range(4):
        a(f"v_add_f32 v{A0+k}, v{A0+k}, v{G0+k}")
    a(f"v_cvt_pk_bf16_f32 v{A0}, v{A0}, v{A0+1}")
    a(f"v_cvt_pk_bf16_f32 v{A0+1}, v{A0+2}, v{A0+3}")
    a(f"s_mul_i32 s{sT1}, s{sB}, 896")
    srd(a, dGU, sOUT_, f"s{sT1}", 896)
    a(f"s_lshl_b32 s{sT0}, s{sJ}, 5")
    a("s_mov_b64 exec, 15")
    a(f"buffer_store_dwordx2 v[{A0}:{A0+1}], v{CL+4}, s[{dGU}:{dGU+3}], s{sT0} offen {cfg.get('outf','')}")
    a("s_mov_b64 exec, -1")
    if cfg.get("dbgtime"):
        a("s_memrealtime s[96:97]")
        a("v_mov_b32 v22, 4")
        a("s_waitcnt lgkmcnt(0)")
        a("v_mov_b32 v23, s96")
        a("s_mov_b64 exec, 1")
        a(f"global_atomic_umax v22, v23, s[{sDBG_}:{sDBG_+1}] sc1")
        a("s_mov_b64 exec, -1")
    a("L_fin:")
    if cfg.get("stamps"):
        a("s_waitcnt vmcnt(0)")
        stamp(a, cfg, 7)
        a("v_writelane_b32 v7, s98, 0")
        a("s_getreg_b32 s96, hwreg(HW_REG_XCC_ID)")
        a("v_writelane_b32 v7, s96, 8")
        a(f"s_lshl_b32 s{sT0}, s2, 3")
        a(f"s_add_u32 s{sT0}, s{sT0}, s{sW}")
        a(f"s_lshl_b32 s{sT0}, s{sT0}, 6")
        a(f"s_add_u32 s{sT0}, s{sT0}, 0x200000")
        a(f"v_lshlrev_b32 v{vA0}, 2, v{vLANE}")
        a("s_mov_b64 exec, 0xffff")
        a(f"buffer_store_dword v7, v{vA0}, s[{dWS}:{dWS+3}], s{sT0} offen")
    a("L_end:")
    a("s_endpgm")
    hdr = open(REF).read().split("; Override launch")[0] if os.path.exists(REF) else ""
    return hdr + f"""; @launch grid=(256,1,1) block=(512,1,1) lds={LDS_BYTES}
""" + DOC + f""".amdgcn_target "amdgcn-amd-amdhsa--gfx950"
.text
.globl {KN}
.p2align 8
.type {KN},@function
{KN}:
""" + a.text() + f""".section .rodata,"a"
.p2align 6
.amdhsa_kernel {KN}
  .amdhsa_next_free_vgpr 256
  .amdhsa_next_free_sgpr 102
  .amdhsa_accum_offset 256
  .amdhsa_group_segment_fixed_size 0
  .amdhsa_kernarg_size 96
  .amdhsa_user_sgpr_count 2
  .amdhsa_user_sgpr_kernarg_segment_ptr 1
  .amdhsa_system_sgpr_workgroup_id_x 1
.end_amdhsa_kernel
"""

if __name__ == "__main__":
    name = sys.argv[1]
    cfg = {"n1": 6, "spr1": 20, "n2": 6, "spr2": 30, "pace": 99, "n0": 4, "outf": "sc1", "sleep": 1, "vw": 12, "dynw": 4, "bar0": 0}
    cfg.update(json.loads(sys.argv[2]) if len(sys.argv) > 2 else {})
    open(name, "w").write(gen(cfg))
```

```python
import struct, sys, os, json

KN = "parallel_sum__mha_block_cached__glu_gated_glu__decode_kernel"
REF = "parallel_sum__mha_block_cached__glu_gated_glu__decode.s.ref"
LOG2E = 1.4426950408889634

DOC = '''; Fused LayerNorm + q-projection + decode attention + output projection + GLU + residual, one launch.
;   * the last 3/16 of each head's keys are claimed tile pair by tile pair by the two workgroups of that head.
'''

def f32(x):
    return "0x%08x" % struct.unpack("<I", struct.pack("<f", x))[0]

class Asm:
    def __init__(self):
        self.lines = []
        self.vm = []
    def __call__(self, s):
        for l in s.strip("\n").split("\n"):
            self.lines.append("  " + l.strip() if not l.strip().endswith(":") else l.strip())
    def c(self, s):
        self.lines.append("  ; " + s)
    def vmem(self, s, tag):
        self(s); self.vm.append(tag)
    def wait_tag(self, tag):
        idx = max(i for i, t in enumerate(self.vm) if t == tag)
        n = len(self.vm) - 1 - idx
        self(f"s_waitcnt vmcnt({n})")
        self.vm = self.vm[idx+1:]
    def text(self):
        return "\n".join(self.lines) + "\n"

XT   = 0
QP   = 16384
GP   = QP + 4096
YG   = GP + 2048
OP   = YG + 16384
OPS  = 1040
ML   = OP + 8*OPS
CNT  = ML + 64
QFL  = CNT + 4
QL   = CNT + 64
YA   = QL + 512
LDS_BYTES = YA + 16384
SLOT = 4096
WS_CLM = 0x180000
WS_Q   = 0x1A0000

sBH = 3
sX_, sK_, sV_, sWQ_, sWO_, sBX_, sWG_, sWU_ = 4, 6, 8, 10, 12, 14, 16, 18
sWD_, sOUT_, sDBG_, sWS_ = 20, 22, 24, 26
dK, dV, dWQ, dGU, dX, dWO, dWD, dWS = 28, 32, 36, 40, 44, 48, 52, 56
sW, sB, sH, sS, sJ, sIT, sOFF, sT0, sT1, sMASK, sT2, sT3 = 60, 61, 62, 63, 64, 65, 66, 67, 68, 69, 70, 71
sP = 72
sO1, sO2, sO3 = 88, 89, 90
sOB, sVALID, sCNT = 88, 89, 90
sJO, sIDX, sPL, sPH, sSLOT = 91, 92, 93, 94, 95
sST = 92
sPR = 74
sO4, sO5 = 75, 76
KE, VE, KF, VF = 192, 208, 224, 240
sGO = 87
sNL, sNH = 72, 73
vLANE, vL16, vWQO, vGUO, vA0, vA1 = 1, 2, 3, 4, 5, 6
vCLM, vCHK = 3, 46
vQ = 8
vO = 12
vM, vL = 20, 21
STG = 48
KA, VA, KB, VB = 64, 80, 96, 112
W = 128
KC, VC, KD, VD = 128, 144, 160, 176
GUR = 192

def srd(a, d, base, off_s, nrec):
    if off_s is None:
        a(f"s_mov_b32 s{d}, s{base}")
        a(f"s_mov_b32 s{d+1}, s{base+1}")
    else:
        a(f"s_add_u32 s{d}, s{base}, {off_s}")
        a(f"s_addc_u32 s{d+1}, s{base+1}, 0")
    a(f"s_mov_b32 s{d+2}, {nrec}")
    a(f"s_mov_b32 s{d+3}, 0x00020000")

def dpp(op, d, s0, s1, ctrl, rm="0xf", bm="0xf"):
    return f"{op}_dpp v{d}, v{s0}, v{s1} {ctrl} row_mask:{rm} bank_mask:{bm}"

def reduce64(a, op, v, sdst):
    for ctrl, rm in (("quad_perm:[1,0,3,2]", "0xf"), ("quad_perm:[2,3,0,1]", "0xf"), ("row_half_mirror", "0xf"),
                     ("row_mirror", "0xf"), ("row_bcast:15", "0xa"), ("row_bcast:31", "0xc")):
        a("s_nop 1")
        a(dpp(op, v, v, v, ctrl, rm))
    a("s_nop 0")
    a(f"v_readlane_b32 s{sdst}, v{v}, 63")

def bsel(m):
    return "op_sel:[0,1,0] op_sel_hi:[1,1,1]" if m & 1 else "op_sel_hi:[1,0,1]"

def pkfma_bcast(acc, u, m, sgpr=False):
    r = "s" if sgpr else "v"
    base = m & ~1
    return f"v_pk_fma_f32 v[{acc}:{acc+1}], v[{u}:{u+1}], {r}[{base}:{base+1}], v[{acc}:{acc+1}] {bsel(m)}"

def unpack(a, data, tmp):
    for k in range(4):
        a(f"v_lshlrev_b32 v{tmp+2*k}, 16, v{data+k}")
        a(f"v_and_b32 v{tmp+2*k+1}, s{sMASK}, v{data+k}")

def axpy_row(a, acc, data, m, tmp, sgpr=False):
    unpack(a, data, tmp)
    for k in range(4):
        a(pkfma_bcast(acc+2*k, tmp+2*k, m, sgpr))

def bf16_round(a, v):
    a(f"v_cvt_pk_bf16_f32 v{v}, v{v}, v{v}")
    a(f"v_and_b32 v{v}, s{sMASK}, v{v}")

def stamp(a, cfg, idx):
    if cfg.get("stamps"):
        a("s_memrealtime s[96:97]")
        a("s_waitcnt lgkmcnt(0)")
        a(f"v_writelane_b32 v7, s96, {idx}")

def dbgt(a, cfg, word, wave, lab, neg=False):
    if not cfg.get("dbgtime"): return
    if wave is not None:
        a(f"s_cmp_lg_u32 s{sW}, {wave}")
        a(f"s_cbranch_scc1 L_dt{lab}")
    a("s_memrealtime s[96:97]")
    a(f"v_mov_b32 v22, {word*4}")
    a("s_waitcnt lgkmcnt(0)")
    if neg: a("s_not_b32 s96, s96")
    a("v_mov_b32 v23, s96")
    a("s_mov_b64 exec, 1")
    a(f"global_atomic_umax v22, v23, s[{sDBG_}:{sDBG_+1}] sc1")
    a("s_mov_b64 exec, -1")
    a(f"L_dt{lab}:")

def gen(cfg):
    KVF = cfg.get("kvflags", "nt")
    KF_ = cfg.get("kf", KVF); VF_ = cfg.get("vf", KVF)
    WF = cfg.get("wflags", "")
    WQF = cfg.get("wqf", WF); WOF = cfg.get("wof", WF); GUF = cfg.get("guf", WF); WDF = cfg.get("wdf", WF)
    SLEEP = cfg.get("sleep", 4)
    VW = cfg.get("vw", 12)
    PACE = cfg.get("pace", 3)
    SI = cfg.get("si", 11)
    NPRE = cfg.get("npre", 4)
    NST = NPRE + 2*SI
    NDYN = (512 - 16*NST)//2
    SPIN = 0x200000
    a = Asm()
    a("s_cmp_ge_u32 s2, 256")
    a("s_cbranch_scc1 L_end")
    a("s_load_dwordx16 s[4:19], s[0:1], 0")
    a("s_load_dwordx8 s[20:27], s[0:1], 64")
    if cfg.get("stamps"):
        a("v_mov_b32 v7, 0")
        a("s_memrealtime s[98:99]")
    if cfg.get("prog"):
        a("s_memrealtime s[98:99]")
        a("s_waitcnt lgkmcnt(0)")
        a("s_mov_b32 s99, s98")
    a(f"v_and_b32 v{vLANE}, 63, v0")
    a(f"v_lshrrev_b32 v{vA0}, 6, v0")
    a(f"v_lshlrev_b32 v{vL16}, 4, v{vLANE}")
    a(f"v_readfirstlane_b32 s{sW}, v{vA0}")
    a.c("decode workgroup id: xcd=g&7, e=(g>>3)&1, s=(g>>4)&1, b=g>>5; the two key halves of a head sit on xcd i and i+1+2e")
    a(f"s_and_b32 s{sT0}, s2, 7")
    a(f"s_bfe_u32 s{sT1}, s2, 0x10003")
    a(f"s_bfe_u32 s{sS}, s2, 0x10004")
    a(f"s_lshr_b32 s{sB}, s2, 5")
    if cfg.get("pair", "xor") == "k44":
        a(f"s_lshl_b32 s{sT2}, s{sT1}, 1")
        a(f"s_add_u32 s{sT2}, s{sT2}, 1")
        a(f"s_mul_i32 s{sT2}, s{sT2}, s{sS}")
        a(f"s_sub_u32 s{sT0}, s{sT0}, s{sT2}")
        a(f"s_and_b32 s{sT0}, s{sT0}, 7")
    elif cfg.get("pair", "xor") == "xor":
        a(f"s_lshl_b32 s{sT2}, s{sT1}, 1")
        a(f"s_add_u32 s{sT2}, s{sT2}, 3")
        a(f"s_mul_i32 s{sT2}, s{sT2}, s{sS}")
        a(f"s_xor_b32 s{sT0}, s{sT0}, s{sT2}")
    elif cfg.get("pair") == "tab":
        inv0, inv1 = cfg["inv0"], cfg["inv1"]
        pk = lambda t: sum(v << (4*i) for i, v in enumerate(t))
        a(f"s_mov_b32 s{sT2}, {pk(inv0):#x}")
        a(f"s_cmp_eq_u32 s{sT1}, 0")
        a(f"s_cselect_b32 s{sT2}, s{sT2}, {pk(inv1):#x}")
        a(f"s_cmp_eq_u32 s{sS}, 0")
        a(f"s_cselect_b32 s{sT2}, 0x76543210, s{sT2}")
        a(f"s_lshl_b32 s{sT0}, s{sT0}, 2")
        a(f"s_lshr_b32 s{sT0}, s{sT2}, s{sT0}")
        a(f"s_and_b32 s{sT0}, s{sT0}, 7")
    a(f"s_lshl_b32 s{sH}, s{sT0}, 1")
    a(f"s_add_u32 s{sH}, s{sH}, s{sT1}")
    a(f"s_lshl_b32 s{sJ}, s{sH}, 1")
    a(f"s_add_u32 s{sJ}, s{sJ}, s{sS}")
    a(f"s_mov_b32 s{sMASK}, 0xffff0000")
    a.c("wq slice voffset = (lane>>1)*8192 + (lane&1)*16")
    a(f"v_lshrrev_b32 v{vA0}, 1, v{vLANE}")
    a(f"v_and_b32 v{vA1}, 1, v{vLANE}")
    a(f"v_lshlrev_b32 v{vWQO}, 13, v{vA0}")
    a(f"v_lshl_add_u32 v{vWQO}, v{vA1}, 4, v{vWQO}")
    a(f"s_lshl_b32 s{sBH}, s{sB}, 4")
    a(f"s_add_u32 s{sBH}, s{sBH}, s{sH}")
    a(f"s_lshl_b32 s{sT0}, s{sBH}, 21")
    a(f"s_mul_i32 s{sT1}, s{sW}, 896")
    a.c("p = s*8 + b ; flag byte index = h*16 + p ; wq column byte offset = h*512 + p*32")
    a(f"s_lshl_b32 s{sPL}, s{sS}, 3")
    a(f"s_add_u32 s{sPL}, s{sPL}, s{sB}")
    a(f"s_lshl_b32 s{sPH}, s{sH}, 4")
    a(f"s_add_u32 s{sPH}, s{sPH}, s{sPL}")
    a(f"s_lshl_b32 s{sT2}, s{sPH}, 5")
    a(f"s_sub_u32 s{sT3}, {448*8192}, s{sT2}")
    ADJ = cfg.get("adj", 0)
    DB = 0x1000 if ADJ else 0x8000
    a(f"s_lshl_b32 s{sOFF}, s{sW}, {13 if ADJ else 12}")
    a(f"s_mul_i32 s{sO1}, s{sS}, {NST*8*4096}")
    a(f"s_add_u32 s{sOFF}, s{sOFF}, s{sO1}")
    a(f"s_sub_u32 s{sPR}, 7, s{sW}")
    a(f"s_lshl_b32 s{sIT}, s{sPR}, 19")
    a(f"s_add_u32 s{sJO}, s{sIT}, 0x40000")
    a(f"s_add_u32 s{sO1}, s{sOFF}, {DB}")
    a(f"s_add_u32 s{sO2}, s{sOFF}, 0x10000")
    a(f"s_add_u32 s{sO3}, s{sOFF}, {0x10000+DB}")
    a(f"s_add_u32 s{sO4}, s{sOFF}, 0x20000")
    a(f"s_add_u32 s{sO5}, s{sOFF}, {0x20000+DB}")
    a("s_waitcnt lgkmcnt(0)")
    X4 = 24; WQ0 = 56; WQ1 = 60
    srd(a, dX, sX_, f"s{sT1}", 896)
    a.vmem(f"buffer_load_dwordx4 v[{X4}:{X4+3}], v{vL16}, s[{dX}:{dX+3}], 0 offen", "x")
    srd(a, dWQ, sWQ_, f"s{sT2}", f"s{sT3}")
    a.vmem(f"buffer_load_dwordx4 v[{WQ0}:{WQ0+3}], v{vWQO}, s[{dWQ}:{dWQ+3}], s{sIT} offen {WQF}", "wq0")
    a.vmem(f"buffer_load_dwordx4 v[{WQ1}:{WQ1+3}], v{vWQO}, s[{dWQ}:{dWQ+3}], s{sJO} offen {WQF}", "wq1")
    a.c("launch nonce of this head: first arriver's clock value, agreed through a compare-swap on zeroed d_debug")
    NON = 20
    a(f"s_cmp_lg_u32 s{sW}, 0")
    a("s_cbranch_scc1 L_nonon")
    a("s_memrealtime s[100:101]")
    a(f"s_lshl_b32 s{sT1}, s{sH}, 3")
    a(f"v_mov_b32 v{vA0}, s{sT1}")
    a(f"v_mov_b32 v{NON+1}, 0")
    a("s_waitcnt lgkmcnt(0)")
    a("s_or_b32 s100, s100, 1")
    a(f"v_mov_b32 v{NON}, s100")
    a("s_mov_b64 exec, 1")
    a(f"global_atomic_cmpswap v{NON}, v{vA0}, v[{NON}:{NON+1}], s[{sDBG_}:{sDBG_+1}] sc0 sc1")
    a("s_mov_b64 exec, -1")
    a("L_nonon:")
    srd(a, dK, sK_, f"s{sT0}", 0x200000)
    srd(a, dV, sV_, f"s{sT0}", 0x200000)
    if cfg.get("bar0", 1):
        a("s_barrier")
    kv = []
    for (K, V, so) in ((KA, VA, sOFF), (KB, VB, sO1), (KC, VC, sO2), (KD, VD, sO3), (KE, VE, sO4), (KF, VF, sO5))[:NPRE]:
        kv += [(K, dK, so, i) for i in range(4)] + [(V, dV, so, i) for i in range(4)]
    def kvone():
        base, d, so, i = kv.pop(0)
        a.vmem(f"buffer_load_dwordx4 v[{base+4*i}:{base+4*i+3}], v{vL16}, s[{d}:{d+3}], s{so} offen offset:{i*1024} {KF_ if d == dK else VF_}", "kv")
    def sprinkle(start, every, count):
        body = a.lines[start:]
        del a.lines[start:]
        k = 0
        for n_, l in enumerate(body):
            a.lines.append(l)
            if k < count and n_ % every == every-1 and not l.strip().startswith(("s_waitcnt vmcnt", ";")):
                kvone(); k += 1
        while k < count:
            kvone(); k += 1
    def kvgroup(paced):
        for _ in range(4):
            base, d, so, i = kv.pop(0)
            a.vmem(f"buffer_load_dwordx4 v[{base+4*i}:{base+4*i+3}], v{vL16}, s[{d}:{d+3}], s{so} offen offset:{i*1024} {KF_ if d == dK else VF_}", "kv")
            if paced:
                a(f"s_waitcnt vmcnt({PACE})")
    for _ in range(cfg.get("n0", 4)):
        kvone()
    stamp(a, cfg, 1)
    srd(a, dWS, sWS_, None, 0x400000)
    a(f"s_lshl_b32 s{sSLOT}, s{sB}, 5")
    a(f"s_add_u32 s{sSLOT}, s{sSLOT}, s{sJ}")
    a(f"s_lshl_b32 s{sSLOT}, s{sSLOT}, 12")
    for k in range(8):
        a(f"v_mov_b32 v{vO+k}, 0")
    a(f"s_cmp_lt_u32 s{sW}, 4")
    a(f"s_cselect_b32 s{dGU}, s{sWG_}, s{sWU_}")
    a(f"s_cselect_b32 s{dGU+1}, s{sWG_+1}, s{sWU_+1}")
    a(f"s_mov_b32 s{dGU+2}, {448*3584}")
    a(f"s_mov_b32 s{dGU+3}, 0x00020000")
    srd(a, dWO, sWO_, None, 4096*896)
    srd(a, dWD, sWD_, None, 1792*896)
    a(f"v_cmp_gt_u32 vcc, 56, v{vLANE}")
    a(f"v_mov_b32 v{vA0}, {CNT}")
    a(f"ds_write_b128 v{vA0}, v[{vO}:{vO+3}]")
    a.c("LayerNorm: wave w normalises x[w]")
    E = 28; S0 = 36
    a.wait_tag("x")
    ln0 = len(a.lines)
    unpack(a, X4, E)
    a(f"v_add_f32 v{S0}, v{E}, v{E+1}")
    a(f"v_add_f32 v{S0+1}, v{E+2}, v{E+3}")
    a(f"v_add_f32 v{S0+2}, v{E+4}, v{E+5}")
    a(f"v_add_f32 v{S0+3}, v{E+6}, v{E+7}")
    a(f"v_add_f32 v{S0}, v{S0}, v{S0+1}")
    a(f"v_add_f32 v{S0+2}, v{S0+2}, v{S0+3}")
    a(f"v_add_f32 v{S0}, v{S0}, v{S0+2}")
    reduce64(a, "v_add_f32", S0, sT0)
    MEAN = S0+1; ACC = S0+2; D = S0+4
    a("s_nop 1")
    a(f"v_mov_b32 v{MEAN}, s{sT0}")
    a(f"v_mul_f32 v{MEAN}, {f32(1.0/448)}, v{MEAN}")
    for k in range(8):
        a(f"v_sub_f32 v{D+k}, v{E+k}, v{MEAN}")
    a(f"v_mul_f32 v{ACC}, v{D}, v{D}")
    for k in range(1, 8):
        a(f"v_fmac_f32 v{ACC}, v{D+k}, v{D+k}")
    a(f"v_cndmask_b32 v{ACC}, 0, v{ACC}, vcc")
    reduce64(a, "v_add_f32", ACC, sT0)
    bf16_round(a, MEAN)
    a(f"v_mov_b32 v{ACC}, s{sT0}")
    a(f"v_mul_f32 v{ACC}, {f32(1.0/448)}, v{ACC}")
    bf16_round(a, ACC)
    a(f"v_add_f32 v{ACC}, {f32(1e-5)}, v{ACC}")
    bf16_round(a, ACC)
    a(f"v_sqrt_f32 v{ACC}, v{ACC}")
    for k in range(8):
        a(f"v_sub_f32 v{D+k}, v{E+k}, v{MEAN}")
    bf16_round(a, ACC)
    a(f"v_rcp_f32 v{ACC}, v{ACC}")
    for k in range(4):
        a(f"v_cvt_pk_bf16_f32 v{X4+k}, v{D+2*k}, v{D+2*k+1}")
    unpack(a, X4, D)
    for k in range(8):
        a(f"v_mul_f32 v{D+k}, v{D+k}, v{ACC}")
    for k in range(4):
        a(f"v_cvt_pk_bf16_f32 v{X4+k}, v{D+2*k}, v{D+2*k+1}")
    unpack(a, X4, E)
    a(f"v_lshlrev_b32 v{vA0}, 5, v{vLANE}")
    a(f"s_lshl_b32 s{sT0}, s{sW}, 11")
    a(f"v_add_u32 v{vA0}, s{sT0}, v{vA0}")
    a(f"ds_write_b128 v{vA0}, v[{E}:{E+3}] offset:{XT}")
    a(f"ds_write_b128 v{vA0}, v[{E+4}:{E+7}] offset:{XT+16}")
    a.c("multiplier addresses: row (64w + 32i + lane>>1) * 4")
    a(f"v_lshrrev_b32 v{vA0}, 1, v{vLANE}")
    a(f"v_lshlrev_b32 v{vA0}, 2, v{vA0}")
    a(f"s_lshl_b32 s{sT0}, s{sPR}, 8")
    a(f"v_add_u32 v{vA0}, s{sT0}, v{vA0}")
    a(f"v_add_u32 v{vA1}, 128, v{vA0}")
    sprinkle(ln0, cfg.get("spr1", 30), cfg.get("n1", 4))
    a("s_waitcnt lgkmcnt(0)")
    a("s_barrier")
    stamp(a, cfg, 2)
    XM = 24
    for k in range(4):
        a(f"ds_read2st64_b32 v[{XM+2*k}:{XM+2*k+1}], v{vA0} offset0:{XT//256+16*k} offset1:{XT//256+16*k+8}")
    for k in range(4):
        a(f"ds_read2st64_b32 v[{XM+8+2*k}:{XM+8+2*k+1}], v{vA1} offset0:{XT//256+16*k} offset1:{XT//256+16*k+8}")
    U0 = 40; U1 = 48
    a.wait_tag("wq1")
    fm0 = len(a.lines)
    unpack(a, WQ0, U0)
    unpack(a, WQ1, U1)
    QA = GUR
    a("s_waitcnt lgkmcnt(4)")
    for b in range(8):
        for k in range(4):
            m = XM + b
            sel = "op_sel:[0,1] op_sel_hi:[1,1]" if m & 1 else "op_sel_hi:[1,0]"
            a(f"v_pk_mul_f32 v[{QA+8*b+2*k}:{QA+8*b+2*k+1}], v[{U0+2*k}:{U0+2*k+1}], v[{m&~1}:{(m&~1)+1}] {sel}")
    a("s_waitcnt lgkmcnt(0)")
    for b in range(8):
        for k in range(4):
            a(pkfma_bcast(QA+8*b+2*k, U1+2*k, XM+8+b))
    a.c("transposing reduction over lane bits 5,4,3,2 then all-reduce over bit 1")
    for r in range(32):
        a(f"v_permlane32_swap_b32 v{QA+r}, v{QA+32+r}")
    for r in range(0, 32, 2):
        a(f"v_pk_add_f32 v[{QA+r}:{QA+r+1}], v[{QA+r}:{QA+r+1}], v[{QA+32+r}:{QA+32+r+1}]")
    for r in range(16):
        a(f"v_permlane16_swap_b32 v{QA+r}, v{QA+16+r}")
    for r in range(0, 16, 2):
        a(f"v_pk_add_f32 v[{QA+r}:{QA+r+1}], v[{QA+r}:{QA+r+1}], v[{QA+16+r}:{QA+16+r+1}]")
    R3 = QA + 32
    for r in range(8):
        a(dpp("v_add_f32", R3+r, QA+r, QA+r, "row_ror:8", bm="0x3"))
    for r in range(8):
        a(dpp("v_add_f32", R3+r, QA+8+r, QA+8+r, "row_ror:8", bm="0xc"))
    R4 = QA + 48
    for r in range(4):
        a(dpp("v_add_f32", R4+r, R3+r, R3+r, "row_shl:4", bm="0x5"))
    for r in range(4):
        a(dpp("v_add_f32", R4+r, R3+4+r, R3+4+r, "row_shr:4", bm="0xa"))
    a.c("LDS addr = QP + w*512 + (lane>>3)*64 + (lane&1)*32 + ((lane>>2)&1)*16")
    a(f"v_lshrrev_b32 v{vA0}, 3, v{vLANE}")
    a(f"v_lshlrev_b32 v{vA0}, 6, v{vA0}")
    a(f"v_and_b32 v{vA1}, 1, v{vLANE}")
    a(f"v_lshl_add_u32 v{vA0}, v{vA1}, 5, v{vA0}")
    a(f"v_and_b32 v{vA1}, 4, v{vLANE}")
    a(f"v_lshl_add_u32 v{vA0}, v{vA1}, 2, v{vA0}")
    for r in range(4):
        a(dpp("v_add_f32", R4+r, R4+r, R4+r, "quad_perm:[2,3,0,1]"))
    a(f"s_lshl_b32 s{sT0}, s{sPR}, 9")
    a(f"v_add_u32 v{vA0}, s{sT0}, v{vA0}")
    a(f"ds_write_b128 v{vA0}, v[{R4}:{R4+3}] offset:{QP}")
    sprinkle(fm0, cfg.get("spr2", 40), cfg.get("n2", 4))
    QD = 40
    VQA = 39
    a(f"v_and_b32 v{VQA}, 31, v{vLANE}")
    a(f"v_lshlrev_b32 v{VQA}, 5, v{VQA}")
    a(f"s_lshl_b32 s{sT3}, s{sBH}, 10")
    a(f"s_add_u32 s{sT3}, s{sT3}, {WS_Q}")
    a("s_waitcnt lgkmcnt(0)")
    a("s_barrier")
    a(f"s_cmp_lg_u32 s{sW}, 0")
    a("s_cbranch_scc1 L_nopub")
    a.c("wave 0: lanes 0..15 = (b, half): sum 7 partials, publish 8 tagged columns each, then poll for this WG's q")
    a(f"v_lshlrev_b32 v{vA0}, 5, v{vLANE}")
    a("s_mov_b64 exec, 0xffff")
    PR = GUR
    for w2 in range(7):
        a(f"ds_read_b128 v[{PR+8*w2}:{PR+8*w2+3}], v{vA0} offset:{QP+512*w2}")
        a(f"ds_read_b128 v[{PR+8*w2+4}:{PR+8*w2+7}], v{vA0} offset:{QP+512*w2+16}")
    a(f"v_lshrrev_b32 v{vA1}, 1, v{vLANE}")
    a(f"v_lshlrev_b32 v{vA1}, 14, v{vA1}")
    a(f"v_and_b32 v{vA0}, 1, v{vLANE}")
    a(f"v_lshl_add_u32 v{vA1}, v{vA0}, 5, v{vA1}")
    a(f"s_lshl_b32 s{sT0}, s{sPH}, 6")
    a(f"s_add_u32 s{sT0}, s{sT0}, {WS_Q}")
    a.c("nonce = returned old value, or our own proposal if the word was still zero")
    a(f"v_readfirstlane_b32 s{sT1}, v{NON}")
    a(f"s_cmp_eq_u32 s{sT1}, 0")
    a(f"s_cselect_b32 s{sT1}, s100, s{sT1}")
    a(f"s_and_b32 s{sNL}, s{sT1}, 0xffff")
    a(f"s_lshr_b32 s{sNH}, s{sT1}, 16")
    a(f"v_mov_b32 v{QD}, s{sNL}")
    a(f"v_mov_b32 v{QD+1}, s{sNH}")
    for w2 in range(1, 7):
        a(f"s_waitcnt lgkmcnt({12-2*w2})")
        for k in range(4):
            a(f"v_pk_add_f32 v[{PR+2*k}:{PR+2*k+1}], v[{PR+2*k}:{PR+2*k+1}], v[{PR+8*w2+2*k}:{PR+8*w2+2*k+1}]")
    for k in range(8):
        a(f"v_cvt_pk_bf16_f32 v{PR+k}, v{PR+k}, v{PR+k}")
    for k in range(8):
        a(f"v_and_or_b32 v{PR+56+k}, v{PR+k}, s{sMASK}, v{QD+(k&1)}")
    a(f"buffer_store_dwordx4 v[{PR+56}:{PR+59}], v{vA1}, s[{dWS}:{dWS+3}], s{sT0} offen sc1")
    a(f"buffer_store_dwordx4 v[{PR+60}:{PR+63}], v{vA1}, s[{dWS}:{dWS+3}], s{sT0} offen offset:16 sc1")
    a("s_mov_b64 exec, -1")
    stamp(a, cfg, 13)
    a(f"s_mov_b32 s{sIT}, 0")
    TX = 24
    a("L_qpoll:")
    a(f"buffer_load_dwordx4 v[{QD}:{QD+3}], v{VQA}, s[{dWS}:{dWS+3}], s{sT3} offen sc1")
    a(f"buffer_load_dwordx4 v[{QD+4}:{QD+7}], v{VQA}, s[{dWS}:{dWS+3}], s{sT3} offen offset:16 sc1")
    a(f"s_add_u32 s{sIT}, s{sIT}, 1")
    a("s_waitcnt vmcnt(0)")
    for k in range(8):
        a(f"v_xor_b32 v{TX+k}, s{sNH if k & 1 else sNL}, v{QD+k}")
    a(f"v_or3_b32 v{TX}, v{TX}, v{TX+1}, v{TX+2}")
    a(f"v_or3_b32 v{TX+3}, v{TX+3}, v{TX+4}, v{TX+5}")
    a(f"v_or3_b32 v{TX}, v{TX}, v{TX+6}, v{TX+7}")
    a(f"v_or_b32 v{TX}, v{TX}, v{TX+3}")
    a(f"v_and_b32 v{TX}, 0xffff, v{TX}")
    a(f"v_cmp_ne_u32 vcc, 0, v{TX}")
    a("s_cbranch_vccz L_qgot")
    a(f"s_cmp_lt_u32 s{sIT}, {SPIN}")
    a("s_cbranch_scc1 L_qpoll")
    a("L_qgot:")
    a(f"s_mov_b32 s{sT0}, 0x07060302")
    for k in range(4):
        a(f"v_perm_b32 v{TX+k}, v{QD+2*k+1}, v{QD+2*k}, s{sT0}")
    a(f"v_lshrrev_b32 v{TX+4}, 1, v{VQA}")
    a(f"ds_write_b128 v{TX+4}, v[{TX}:{TX+3}] offset:{QL}")
    a(f"v_mov_b32 v{TX+5}, {QFL}")
    a(f"v_mov_b32 v{TX+6}, 1")
    a("s_waitcnt lgkmcnt(0)")
    a(f"ds_write_b32 v{TX+5}, v{TX+6}")
    stamp(a, cfg, 14)
    if cfg.get("stamps"):
        a(f"v_writelane_b32 v7, s{sIT}, 15")
    a("L_nopub:")
    a.c("wave 1 clears this workgroup's slot with the sentinel; in half 0 it also zeroes the pair's claim counter")
    a(f"s_cmp_lg_u32 s{sW}, 1")
    a("s_cbranch_scc1 L_noclr")
    for k in range(4):
        a(f"v_mov_b32 v{STG+k}, -1")
    for k in range(4):
        a(f"buffer_store_dwordx4 v[{STG}:{STG+3}], v{vL16}, s[{dWS}:{dWS+3}], s{sSLOT} offen offset:{1024*k} sc1")
    a(f"s_cmp_lg_u32 s{sS}, 0")
    a("s_cbranch_scc1 L_noclr")
    a(f"s_lshl_b32 s{sT0}, s{sBH}, 8")
    a(f"s_add_u32 s{sT0}, s{sT0}, {WS_CLM}")
    a("s_mov_b64 exec, 1")
    a(f"buffer_store_dword v{vO}, v{vO}, s[{dWS}:{dWS+3}], s{sT0} offen sc1")
    a("s_mov_b64 exec, -1")
    a("L_noclr:")
    while kv:
        if PACE < 60:
            a(f"s_waitcnt vmcnt({PACE})")
        kvone()
    a.c("GLU slice j < 28: 64 columns. gu voffset = (lane>>3)*3584 + (lane&7)*16 ; soffset = 112*(w&3)*3584 + j*128")
    a(f"v_lshrrev_b32 v{vA0}, 3, v{vLANE}")
    a(f"v_and_b32 v{vA1}, 7, v{vLANE}")
    a(f"v_mul_u32_u24 v{vGUO}, 3584, v{vA0}")
    a(f"v_lshl_add_u32 v{vGUO}, v{vA1}, 4, v{vGUO}")
    a(f"s_and_b32 s{sT0}, s{sW}, 3")
    a(f"s_mul_i32 s{sGO}, s{sT0}, {112*3584}")
    a(f"s_lshl_b32 s{sT1}, s{sJ}, 7")
    a(f"s_add_u32 s{sGO}, s{sGO}, s{sT1}")
    a.c("slices j >= 28 do not exist: zero-size descriptors make their loads return 0")
    a(f"s_cmp_lt_u32 s{sJ}, 28")
    a(f"s_cselect_b32 s{dGU+2}, s{dGU+2}, 0")
    a(f"s_cselect_b32 s{dWD+2}, s{dWD+2}, 0")
    a(f"s_mov_b32 s{sIT}, 0")
    a(f"v_mov_b32 v{vA0}, {QFL}")
    a(f"v_lshrrev_b32 v{vA1}, 1, v{VQA}")
    a("L_qwait:")
    a(f"ds_read_b32 v24, v{vA0}")
    a(f"ds_read_b128 v[{vQ}:{vQ+3}], v{vA1} offset:{QL}")
    a("s_waitcnt lgkmcnt(0)")
    a(f"v_readfirstlane_b32 s{sT0}, v24")
    a(f"s_cmp_lg_u32 s{sT0}, 0")
    a("s_cbranch_scc1 L_qok")
    a("s_sleep 1")
    a(f"s_add_u32 s{sIT}, s{sIT}, 1")
    a(f"s_cmp_lt_u32 s{sIT}, {SPIN}")
    a("s_cbranch_scc1 L_qwait")
    a("L_qok:")
    dbgt(a, cfg, 5, 1, "c")
    dbgt(a, cfg, 11, 1, "f", neg=True)
    a(f"v_and_b32 v{vA1}, 31, v{vLANE}")
    a(f"v_lshlrev_b32 v{vA1}, 5, v{vA1}")
    a(f"v_lshrrev_b32 v{vA0}, 5, v{vLANE}")
    a(f"v_lshl_add_u32 v{vA1}, v{vA0}, 4, v{vA1}")
    a(f"v_mov_b32 v{vM}, {f32(-1e30)}")
    a(f"v_mov_b32 v{vL}, 0")
    a(f"s_mov_b32 s{sIT}, 0")
    a(f"s_mov_b32 s{sPL}, 0x05040100")
    a(f"s_mov_b32 s{sPH}, 0x07060302")
    a(f"s_add_u32 s{sOFF}, s{sOFF}, {NPRE*0x8000}")
    a(f"s_add_u32 s{sOB}, s{sOFF}, {DB}")
    a(f"s_lshl_b32 s{sCNT}, s{sBH}, 8")
    a(f"s_add_u32 s{sCNT}, s{sCNT}, {WS_CLM}")
    stamp(a, cfg, 3)
    if cfg.get("prog"):
        a("s_lshl_b32 s98, s2, 3")
        a(f"s_add_u32 s98, s98, s{sW}")
        a("s_lshl_b32 s98, s98, 8")
        a("s_add_u32 s98, s98, 0x200000")
        a("v_mov_b32 v22, s99")
        a("v_mov_b32 v23, 0")
        a("s_mov_b64 exec, 1")
        a(f"buffer_store_dword v22, v23, s[{dWS}:{dWS+3}], s98 offen")
        a("s_mov_b64 exec, -1")
        a("s_add_u32 s98, s98, 4")
    CZ = f32(0.0625*LOG2E)
    A = 22; Z = 26; P = 27; T = 28; PB = 30; U = 34
    def refill4(R, d, so, fl):
        mode = cfg.get("ldmode", "imm")
        for i in range(4):
            if mode == "sofs":
                a(f"s_add_u32 s{sT2}, s{so}, {i*1024}")
                a(f"buffer_load_dwordx4 v[{R+4*i}:{R+4*i+3}], v{vL16}, s[{d}:{d+3}], s{sT2} offen {fl}")
            else:
                if mode.startswith("nop"):
                    a(f"s_nop {mode[3:]}")
                a(f"buffer_load_dwordx4 v[{R+4*i}:{R+4*i+3}], v{vL16}, s[{d}:{d+3}], s{so} offen offset:{i*1024} {fl}")
    def tile(K, V, lab, refill=True, so=None):
        if refill:
            a(f"s_waitcnt vmcnt({VW})")
        for jj in range(4):
            for i in range(4):
                if jj == 0:
                    a(f"v_dot2_f32_bf16 v{A+i}, v{K+4*i}, v{vQ}, 0")
                else:
                    a(f"v_dot2c_f32_bf16 v{A+i}, v{K+4*i+jj}, v{vQ+jj}")
        if refill:
            refill4(K, dK, so, KF_)
        else:
            a("s_nop 2")
        a(f"v_permlane16_swap_b32 v{A}, v{A+1}")
        a(f"v_permlane16_swap_b32 v{A+2}, v{A+3}")
        a("s_nop 0")
        a(f"v_add_f32 v{A}, v{A}, v{A+1}")
        a(f"v_add_f32 v{A+2}, v{A+2}, v{A+3}")
        a("s_nop 0")
        a(dpp("v_add_f32", Z, A, A, "row_ror:8", bm="0x3"))
        a(dpp("v_add_f32", Z, A+2, A+2, "row_ror:8", bm="0xc"))
        for ctrl in ("quad_perm:[1,0,3,2]", "quad_perm:[2,3,0,1]", "row_half_mirror"):
            a("s_nop 1")
            a(dpp("v_add_f32", Z, Z, Z, ctrl))
        a(f"v_cvt_pk_bf16_f32 v{Z}, v{Z}, v{Z}")
        a(f"v_and_b32 v{Z}, s{sMASK}, v{Z}")
        a(f"v_mul_f32 v{Z}, {CZ}, v{Z}")
        a(f"v_cmp_gt_f32 vcc, v{Z}, v{vM}")
        a(f"s_cbranch_vccnz L_resc{lab}")
        a(f"L_back{lab}:")
        a(f"v_sub_f32 v{P}, v{Z}, v{vM}")
        a(f"v_exp_f32 v{P}, v{P}")
        a("s_nop 0")
        a(f"v_add_f32 v{vL}, v{vL}, v{P}")
        a(f"v_mov_b32 v{T}, v{P}")
        a("s_nop 1")
        a(f"v_permlane16_swap_b32 v{P}, v{T}")
        a("s_nop 1")
        a(f"v_mov_b32_dpp v{PB}, v{P} row_newbcast:0 row_mask:0xf bank_mask:0xf")
        a(f"v_mov_b32_dpp v{PB+1}, v{T} row_newbcast:0 row_mask:0xf bank_mask:0xf")
        a(f"v_mov_b32_dpp v{PB+2}, v{P} row_newbcast:8 row_mask:0xf bank_mask:0xf")
        a(f"v_mov_b32_dpp v{PB+3}, v{T} row_newbcast:8 row_mask:0xf bank_mask:0xf")
        if refill:
            a(f"s_waitcnt vmcnt({VW})")
        for i in range(4):
            axpy_row(a, vO, V+4*i, PB+i, U)
        if refill:
            refill4(V, dV, so, VF_)
    def claim():
        a(f"v_mov_b32 v{vCLM}, 1")
        a(f"v_mov_b32 v{vCHK}, 0")
        a("s_mov_b64 exec, 1")
        a(f"buffer_atomic_add v{vCLM}, v{vCHK}, s[{dWS}:{dWS+3}], s{sCNT} offen sc0 sc1")
        a("s_mov_b64 exec, -1")
    def resc(lab):
        a(f"L_resc{lab}:")
        a(f"v_max_f32 v{T}, v{Z}, v{vM}")
        for ctrl, rm in (("row_ror:8", "0xf"), ("row_bcast:15", "0xa"), ("row_bcast:31", "0xc")):
            a("s_nop 1")
            a(dpp("v_max_f32", T, T, T, ctrl, rm))
        a("s_nop 0")
        a(f"v_readlane_b32 s{sT0}, v{T}, 63")
        a("s_nop 1")
        a(f"v_subrev_f32 v{T}, s{sT0}, v{vM}")
        a(f"v_exp_f32 v{T}, v{T}")
        a(f"v_mov_b32 v{vM}, s{sT0}")
        a(f"v_mul_f32 v{vL}, v{vL}, v{T}")
        for k in range(4):
            a(f"v_pk_mul_f32 v[{vO+2*k}:{vO+2*k+1}], v[{vO+2*k}:{vO+2*k+1}], v[{T}:{T+1}] op_sel_hi:[1,0]")
        a(f"s_branch L_back{lab}")
    a(".p2align 6")
    a("L_loop:")
    tile(KA, VA, "A", so=sOFF)
    tile(KB, VB, "B", so=sOB)
    if cfg.get("stamps") and not cfg.get("epi"):
        for n2, itv in ((9, 2), (10, 5), (11, 8), (12, SI-1)):
            a(f"s_cmp_lg_u32 s{sIT}, {itv}")
            a(f"s_cbranch_scc1 L_nost{n2}")
            stamp(a, cfg, n2)
            a(f"L_nost{n2}:")
    if cfg.get("prog"):
        a("s_memrealtime s[96:97]")
        a("s_waitcnt lgkmcnt(0)")
        a("v_mov_b32 v22, s96")
        a("v_mov_b32 v23, 0")
        a("s_mov_b64 exec, 1")
        a(f"buffer_store_dword v22, v23, s[{dWS}:{dWS+3}], s98 offen")
        a("s_mov_b64 exec, -1")
        a("s_add_u32 s98, s98, 4")
    a(f"s_cmp_ge_u32 s{sIT}, {SI}")
    a("s_cbranch_scc1 L_dyn")
    a(f"s_cmp_lt_u32 s{sIT}, 11")
    a("s_cbranch_scc1 L_job")
    a("L_jobret:")
    a(f"s_add_u32 s{sIT}, s{sIT}, 1")
    a(f"s_add_u32 s{sOFF}, s{sOFF}, 0x10000")
    a(f"s_add_u32 s{sOB}, s{sOB}, 0x10000")
    a(f"s_cmp_lt_u32 s{sIT}, {SI-2}")
    a("s_cbranch_scc1 L_loop")
    a(f"s_cmp_eq_u32 s{sIT}, {SI}")
    a("s_cbranch_scc1 L_dyn0")
    a(f"s_cmp_eq_u32 s{sIT}, {SI-1}")
    a("s_cbranch_scc1 L_clm0")
    a.c("two iterations before the dynamic phase: fetch the per-batch 'slots cleared' counter")
    a(f"s_lshl_b32 s{sT0}, s{sB}, 4")
    a(f"s_add_u32 s{sT0}, s{sT0}, 128")
    a(f"v_mov_b32 v{vCHK}, s{sT0}")
    a(f"global_load_dword v{vCHK}, v{vCHK}, s[{sDBG_}:{sDBG_+1}] sc1")
    a("s_branch L_loop")
    a("L_clm0:")
    a.c("claims are allowed only once the counter's initialisation is known complete")
    a(f"v_readfirstlane_b32 s{sT0}, v{vCHK}")
    a(f"v_mov_b32 v{vCLM}, {NDYN}")
    if cfg.get("dynw", 8) < 8:
        a(f"s_cmp_ge_u32 s{sW}, {cfg['dynw']}")
        a("s_cbranch_scc1 L_loop")
    a(f"s_cmp_lt_u32 s{sT0}, 32")
    a("s_cbranch_scc1 L_noclm")
    claim()
    a("s_branch L_loop")
    a("L_dyn0:")
    a(f"s_mov_b32 s{sVALID}, 1")
    if cfg.get("dynbar", 1):
        a("s_barrier")
    dbgt(a, cfg, 7, 0, "d")
    dbgt(a, cfg, 13, 0, "g", neg=True)
    a("L_dyn:")
    a(f"s_cmp_eq_u32 s{sVALID}, 0")
    a("s_cbranch_scc1 L_epi")
    a(f"v_readfirstlane_b32 s{sT0}, v{vCLM}")
    a(f"s_min_u32 s{sT0}, s{sT0}, {NDYN}")
    if cfg.get("dsplit"):
        a(f"s_lshl_b32 s{sOFF}, s{sT0}, 12")
        a(f"s_add_u32 s{sOFF}, s{sOFF}, {16*NST*4096}")
        a(f"s_add_u32 s{sOB}, s{sOFF}, {NDYN*4096}")
        a(f"s_cmp_lt_u32 s{sT0}, {NDYN}")
        a(f"s_cselect_b32 s{sOFF}, s{sOFF}, s{sOB}")
    else:
        a(f"s_lshl_b32 s{sOFF}, s{sT0}, 13")
        a(f"s_add_u32 s{sOFF}, s{sOFF}, {16*NST*4096}")
        a(f"s_add_u32 s{sOB}, s{sOFF}, 0x1000")
        a(f"s_cmp_lt_u32 s{sT0}, {NDYN}")
    a(f"s_cselect_b32 s{sVALID}, 1, 0")
    a("s_cbranch_scc0 L_loop")
    claim()
    a("s_branch L_loop")
    a("L_noclm:")
    a(f"s_cmp_eq_u32 s{sS}, 1")
    a("s_cbranch_scc1 L_loop")
    a.c("half 0 owns the counter: only its own wave 1's init matters; wait for wave 1's gu signal (LDS count 8)")
    a(f"v_mov_b32 v{vCHK}, {CNT}")
    a("L_nocl2:")
    a(f"ds_read_b32 v{vCLM}, v{vCHK}")
    a("s_waitcnt lgkmcnt(0)")
    a(f"v_readfirstlane_b32 s{sT0}, v{vCLM}")
    a(f"s_cmp_lt_u32 s{sT0}, 8")
    a("s_cbranch_scc1 L_nocl2")
    claim()
    a("s_branch L_loop")
    for lab in "ABCDEF"[:NPRE]:
        resc(lab)
    def wo_issue():
        for i in range(4):
            a(f"buffer_load_dwordx4 v[{STG+4*i}:{STG+4*i+3}], v{vL16}, s[{dWO}:{dWO+3}], s{sJO} offen offset:{i*896} {WOF}")
        a(f"s_add_u32 s{sJO}, s{sJO}, {4*896}")
    def gu_issue(g0, g1):
        for g in range(g0, g1):
            a(f"buffer_load_dwordx4 v[{GUR+4*g}:{GUR+4*g+3}], v{vGUO}, s[{dGU}:{dGU+3}], s{sGO} offen {GUF}")
            a(f"s_add_u32 s{sGO}, s{sGO}, {8*3584}")
    G = 38; XG = 22; UG = STG
    a("L_job:")
    a(f"s_cmp_eq_u32 s{sIT}, 0")
    a("s_cbranch_scc1 L_job0")
    a(f"s_cmp_gt_u32 s{sIT}, 8")
    a("s_cbranch_scc1 L_jobwd")
    a.c("slots 1..8: interleave two staged wo row pairs into W + idx")
    a(f"s_set_gpr_idx_on s{sIDX}, 0x8")
    a("s_nop 0")
    for pr in range(2):
        for e in range(4):
            r0 = STG + 8*pr + e; r1 = r0 + 4
            a(f"v_perm_b32 v{W+8*pr+2*e}, v{r1}, v{r0}, s{sPL}")
            a(f"v_perm_b32 v{W+8*pr+2*e+1}, v{r1}, v{r0}, s{sPH}")
    a("s_set_gpr_idx_off")
    a(f"s_add_u32 s{sIDX}, s{sIDX}, 16")
    a(f"s_cmp_eq_u32 s{sIT}, 8")
    a("s_cbranch_scc1 L_job8")
    a(f"s_cmp_eq_u32 s{sIT}, 4")
    a("s_cbranch_scc1 L_job4")
    wo_issue()
    a(f"s_cmp_gt_u32 s{sIT}, 3")
    a("s_cbranch_scc1 L_jobret")
    a(f"s_cmp_eq_u32 s{sIT}, 2")
    a("s_cbranch_scc1 L_job2")
    a(f"s_cmp_eq_u32 s{sIT}, 3")
    a("s_cbranch_scc1 L_job3")
    gu_issue(4, 8)
    a("s_branch L_jobret")
    a("L_job2:")
    gu_issue(8, 11)
    a("s_branch L_jobret")
    a("L_job3:")
    gu_issue(11, 14)
    a("s_branch L_jobret")
    a("L_job8:")
    a.c("w_down rows 64j+8w+i")
    a(f"s_lshl_b32 s{sT0}, s{sJ}, 6")
    a(f"s_lshl_b32 s{sT1}, s{sW}, 3")
    a(f"s_add_u32 s{sT0}, s{sT0}, s{sT1}")
    a(f"s_mul_i32 s{sJO}, s{sT0}, 896")
    for i in range(4):
        a(f"buffer_load_dwordx4 v[{STG+4*i}:{STG+4*i+3}], v{vL16}, s[{dWD}:{dWD+3}], s{sJO} offen offset:{i*896} {WDF}")
    a(f"s_add_u32 s{sJO}, s{sJO}, {4*896}")
    a("s_branch L_jobret")
    a("L_job0:")
    a("s_waitcnt vmcnt(16)")
    a.c("wave 1: its clearing stores are complete (older than everything waited for) -> count them")
    a(f"s_cmp_lg_u32 s{sW}, 1")
    a("s_cbranch_scc1 L_nocnt")
    a(f"s_lshl_b32 s{sT0}, s{sB}, 4")
    a(f"s_add_u32 s{sT0}, s{sT0}, 128")
    a(f"v_mov_b32 v{XG}, s{sT0}")
    a(f"v_mov_b32 v{XG+1}, 1")
    a("s_mov_b64 exec, 1")
    a(f"global_atomic_add v{XG}, v{XG+1}, s[{sDBG_}:{sDBG_+1}] sc1")
    a("s_mov_b64 exec, -1")
    a("L_nocnt:")
    a.c("wo rows h*256+32w+i")
    a(f"s_lshl_b32 s{sT0}, s{sH}, 8")
    a(f"s_lshl_b32 s{sT1}, s{sW}, 5")
    a(f"s_add_u32 s{sT0}, s{sT0}, s{sT1}")
    a(f"s_mul_i32 s{sJO}, s{sT0}, 896")
    a(f"s_mov_b32 s{sIDX}, 0")
    wo_issue()
    if NPRE == 6:
        tile(KE, VE, "E", refill=False)
        tile(KF, VF, "F", refill=False)
    gu_issue(0, 4)
    a.c("tiles C and D (prefetched in the prologue)")
    tile(KC, VC, "C", refill=False)
    tile(KD, VD, "D", refill=False)
    a("s_branch L_jobret")
    a("L_job4:")
    a.c("gate/up partial sums; multipliers xn[b][112*(w&3) + 8i + (lane>>3)]")
    a(f"v_lshrrev_b32 v{vA0}, 3, v{vLANE}")
    a(f"v_lshlrev_b32 v{vA0}, 2, v{vA0}")
    a(f"s_and_b32 s{sT0}, s{sW}, 3")
    a(f"s_mul_i32 s{sT0}, s{sT0}, 448")
    a(f"s_lshl_b32 s{sT1}, s{sB}, 11")
    a(f"s_add_u32 s{sT0}, s{sT0}, s{sT1}")
    a(f"v_add_u32 v{vA0}, s{sT0}, v{vA0}")
    for k in range(7):
        a(f"ds_read2_b32 v[{XG+2*k}:{XG+2*k+1}], v{vA0} offset0:{XT//4+16*k} offset1:{XT//4+16*k+8}")
    for k in range(8):
        a(f"v_mov_b32 v{G+k}, 0")
    a("s_waitcnt lgkmcnt(0)")
    for i in range(14):
        axpy_row(a, G, GUR+4*i, XG+i, UG)
    wo_issue()
    for k in range(4):
        a(f"v_permlane32_swap_b32 v{G+k}, v{G+4+k}")
    a("s_nop 0")
    for k in range(4):
        a(f"v_add_f32 v{G+k}, v{G+k}, v{G+4+k}")
    a("s_nop 0")
    a(f"v_permlane16_swap_b32 v{G}, v{G+2}")
    a(f"v_permlane16_swap_b32 v{G+1}, v{G+3}")
    a("s_nop 0")
    a(f"v_add_f32 v{G}, v{G}, v{G+2}")
    a(f"v_add_f32 v{G+1}, v{G+1}, v{G+3}")
    a.c("LDS addr = GP + w*256 + ((lane&7)*8 + (lane>>3))*4")
    a(f"v_and_b32 v{XG}, 7, v{vLANE}")
    a(f"v_lshrrev_b32 v{XG+1}, 3, v{vLANE}")
    a(dpp("v_add_f32", G+4, G, G, "row_ror:8", bm="0x3"))
    a(dpp("v_add_f32", G+4, G+1, G+1, "row_ror:8", bm="0xc"))
    a(f"v_lshl_add_u32 v{XG}, v{XG}, 3, v{XG+1}")
    a(f"v_lshlrev_b32 v{XG}, 2, v{XG}")
    a(f"s_lshl_b32 s{sT0}, s{sW}, 8")
    a(f"v_add_u32 v{XG}, s{sT0}, v{XG}")
    a(f"ds_write_b32 v{XG}, v{G+4} offset:{GP}")
    a(f"v_mov_b32 v{XG+2}, {CNT}")
    a(f"v_mov_b32 v{XG+3}, 1")
    a("s_waitcnt lgkmcnt(0)")
    a("s_mov_b64 exec, 1")
    a(f"ds_add_u32 v{XG+2}, v{XG+3}")
    a("s_mov_b64 exec, -1")
    a("s_branch L_jobret")
    a("L_jobwd:")
    a(f"v_lshlrev_b32 v{vA0}, 5, v{vLANE}")
    a(f"s_lshl_b32 s{sT0}, s{sW}, 11")
    a(f"v_add_u32 v{vA0}, s{sT0}, v{vA0}")
    a(f"s_cmp_eq_u32 s{sIT}, 10")
    a("s_cbranch_scc1 L_job10")
    a(f"v_mov_b32 v{XG}, {CNT}")
    a("L_cntspin:")
    a(f"ds_read_b32 v{XG+1}, v{XG}")
    a("s_waitcnt lgkmcnt(0)")
    a(f"v_readfirstlane_b32 s{sT0}, v{XG+1}")
    a(f"s_cmp_ge_u32 s{sT0}, 8")
    a("s_cbranch_scc1 L_cntok")
    a("s_sleep 16")
    a("s_branch L_cntspin")
    a("L_cntok:")
    a(f"v_lshlrev_b32 v{XG+8}, 2, v{vLANE}")
    a(f"v_add_u32 v{XG+8}, {GP}, v{XG+8}")
    for k in range(4):
        a(f"ds_read2st64_b32 v[{XG+2*k}:{XG+2*k+1}], v{XG+8} offset0:{2*k} offset1:{2*k+1}")
    for k in range(8):
        a(f"v_mov_b32 v{G+k}, 0")
    a(f"s_lshl_b32 s{sT0}, s{sW}, 3")
    a("s_waitcnt lgkmcnt(0)")
    a(f"v_add_f32 v{XG}, v{XG}, v{XG+1}")
    a(f"v_add_f32 v{XG+2}, v{XG+2}, v{XG+3}")
    a(f"v_add_f32 v{XG+4}, v{XG+4}, v{XG+5}")
    a(f"v_add_f32 v{XG+6}, v{XG+6}, v{XG+7}")
    a(f"v_add_f32 v{XG}, v{XG}, v{XG+2}")
    a(f"v_add_f32 v{XG+4}, v{XG+4}, v{XG+6}")
    bf16_round(a, XG)
    bf16_round(a, XG+4)
    a(f"v_mul_f32 v{XG}, {f32(-LOG2E)}, v{XG}")
    a(f"v_exp_f32 v{XG}, v{XG}")
    a("s_nop 0")
    a(f"v_add_f32 v{XG}, 1.0, v{XG}")
    a(f"v_rcp_f32 v{XG}, v{XG}")
    a("s_nop 0")
    bf16_round(a, XG)
    a(f"v_mul_f32 v{XG}, v{XG}, v{XG+4}")
    bf16_round(a, XG)
    a("s_nop 0")
    for i in range(8):
        a(f"v_readlane_b32 s{sP+i}, v{XG}, s{sT0}")
        a(f"s_add_u32 s{sT0}, s{sT0}, 1")
    a("s_nop 0")
    UW = 30
    for i in range(4):
        axpy_row(a, G, STG+4*i, sP+i, UW, sgpr=True)
    for i in range(4):
        a(f"buffer_load_dwordx4 v[{STG+4*i}:{STG+4*i+3}], v{vL16}, s[{dWD}:{dWD+3}], s{sJO} offen offset:{i*896} {WDF}")
    a(f"ds_write_b128 v{vA0}, v[{G}:{G+3}] offset:{YG}")
    a(f"ds_write_b128 v{vA0}, v[{G+4}:{G+7}] offset:{YG+16}")
    a("s_branch L_jobret")
    a("L_job10:")
    a(f"ds_read_b128 v[{G}:{G+3}], v{vA0} offset:{YG}")
    a(f"ds_read_b128 v[{G+4}:{G+7}], v{vA0} offset:{YG+16}")
    a("s_waitcnt lgkmcnt(0)")
    for i in range(4):
        axpy_row(a, G, STG+4*i, sP+4+i, UW, sgpr=True)
    a(f"ds_write_b128 v{vA0}, v[{G}:{G+3}] offset:{YG}")
    a(f"ds_write_b128 v{vA0}, v[{G+4}:{G+7}] offset:{YG+16}")
    a("s_branch L_jobret")
    a("L_epi:")
    dbgt(a, cfg, 3, 0, "b")
    dbgt(a, cfg, 9, 0, "e", neg=True)
    stamp(a, cfg, 4)
    CW = 5
    CL = STG; XR = STG+2
    NCW = cfg.get("ncw", 1)
    a(f"s_sub_u32 s{sT0}, s{sW}, {CW}")
    a(f"s_cmp_ge_u32 s{sT0}, {NCW}")
    a("s_cbranch_scc1 L_epi1")
    a.c("consumer wave: 'slots cleared' counter of batch b, x for the residual")
    a(f"s_lshl_b32 s{sT0}, s{sB}, 4")
    a(f"s_add_u32 s{sT0}, s{sT0}, 128")
    a(f"v_mov_b32 v{CL+1}, s{sT0}")
    a(f"global_load_dword v{CL}, v{CL+1}, s[{sDBG_}:{sDBG_+1}] sc1")
    a(f"v_and_b32 v{CL+4}, 3, v{vLANE}")
    a(f"v_lshlrev_b32 v{CL+4}, 3, v{CL+4}")
    a(f"s_mul_i32 s{sT1}, s{sB}, 896")
    srd(a, dX, sX_, f"s{sT1}", 896)
    a(f"s_lshl_b32 s{sT0}, s{sJ}, 5")
    a(f"buffer_load_dwordx2 v[{XR}:{XR+1}], v{CL+4}, s[{dX}:{dX+3}], s{sT0} offen")
    if cfg.get("touch", 0):
        a.c("touch the output page now (value unused) so the final store does not pay the address translation")
        srd(a, dGU, sOUT_, f"s{sT1}", 896)
        a(f"buffer_load_dword v{CL+5}, v{CL+4}, s[{dGU}:{dGU+3}], s{sT0} offen")
    a("L_epi1:")
    a(dpp("v_add_f32", vL, vL, vL, "row_ror:8"))
    for k in range(4):
        a(f"v_permlane32_swap_b32 v{vO+k}, v{vO+4+k}")
    a(dpp("v_add_f32", vL, vL, vL, "row_bcast:15", "0xa"))
    for k in range(4):
        a(f"v_add_f32 v{vO+k}, v{vO+k}, v{vO+4+k}")
    a(dpp("v_add_f32", vL, vL, vL, "row_bcast:31", "0xc"))
    a(f"s_mul_i32 s{sT0}, s{sW}, {OPS}")
    a(f"v_add_u32 v{vA0}, s{sT0}, v{vA1}")
    a(f"ds_write_b128 v{vA0}, v[{vO}:{vO+3}] offset:{OP}")
    a(f"s_lshl_b32 s{sT0}, s{sW}, 3")
    a(f"v_mov_b32 v{vA0}, s{sT0}")
    a("s_lshl_b64 exec, 1, 63")
    a(f"ds_write_b64 v{vA0}, v[{vM}:{vL}] offset:{ML}")
    a("s_mov_b64 exec, -1")
    R = 22
    a(f"v_and_b32 v{R}, 7, v{vLANE}")
    a(f"v_lshlrev_b32 v{vA0}, 3, v{R}")
    a(f"v_mul_u32_u24 v{R}, {OPS}, v{R}")
    a(f"v_lshrrev_b32 v{R+1}, 3, v{vLANE}")
    a(f"v_lshl_add_u32 v{R}, v{R+1}, 4, v{R}")
    a(f"s_lshl_b32 s{sT0}, s{sW}, 7")
    a(f"v_add_u32 v{R}, s{sT0}, v{R}")
    a("s_waitcnt lgkmcnt(0)")
    a("s_barrier")
    MX = 24; O4 = 28; MM = 26; Y = 32
    if cfg.get("epi"): stamp(a, cfg, 9)
    a(f"ds_read_b64 v[{MX}:{MX+1}], v{vA0} offset:{ML}")
    a(f"ds_read_b128 v[{O4}:{O4+3}], v{R} offset:{OP}")
    for k in range(8):
        a(f"v_mov_b32 v{Y+k}, 0")
    a("s_waitcnt lgkmcnt(1)")
    a(dpp("v_max_f32", MM, MX, MX, "quad_perm:[1,0,3,2]"))
    a("s_nop 1")
    a(dpp("v_max_f32", MM, MM, MM, "quad_perm:[2,3,0,1]"))
    a("s_nop 1")
    a(dpp("v_max_f32", MM, MM, MM, "row_half_mirror"))
    a(f"v_sub_f32 v{MX}, v{MX}, v{MM}")
    a(f"v_exp_f32 v{MX}, v{MX}")
    a("s_waitcnt lgkmcnt(0)")
    a(f"v_mul_f32 v{MM+1}, v{MX+1}, v{MX}")
    for k in range(4):
        a(f"v_mul_f32 v{O4+k}, v{O4+k}, v{MX}")
    for ctrl in ("quad_perm:[1,0,3,2]", "quad_perm:[2,3,0,1]", "row_half_mirror"):
        a(dpp("v_add_f32", MM+1, MM+1, MM+1, ctrl))
        for k in range(4):
            a(dpp("v_add_f32", O4+k, O4+k, O4+k, ctrl))
    a(f"v_cvt_pk_bf16_f32 v{O4}, v{O4}, v{O4+1}")
    a(f"v_cvt_pk_bf16_f32 v{O4+1}, v{O4+2}, v{O4+3}")
    a("s_nop 0")
    for dq in range(8):
        a(f"v_readlane_b32 s{sP+2*dq}, v{O4}, {8*dq}")
        a(f"v_readlane_b32 s{sP+2*dq+1}, v{O4+1}, {8*dq}")
    a(f"v_lshlrev_b32 v{vA0}, 5, v{vLANE}")
    a(f"s_lshl_b32 s{sT0}, s{sW}, 11")
    a(f"v_add_u32 v{vA0}, s{sT0}, v{vA0}")
    if cfg.get("epi"): stamp(a, cfg, 10)
    for k in range(16):
        for e in range(8):
            a(f"v_dot2c_f32_bf16 v{Y+e}, s{sP+k}, v{W+8*k+e}")
    a("s_nop 3")
    if cfg.get("epi"): stamp(a, cfg, 11)
    a(f"ds_write_b128 v{vA0}, v[{Y}:{Y+3}] offset:{YA}")
    a(f"ds_write_b128 v{vA0}, v[{Y+4}:{Y+7}] offset:{YA+16}")
    a("s_waitcnt lgkmcnt(0)")
    a("s_barrier")
    stamp(a, cfg, 5)
    a(f"s_sub_u32 s{sT0}, s{sW}, {CW}")
    a(f"s_cmp_lt_u32 s{sT0}, {NCW}")
    a("s_cbranch_scc1 L_cons")
    a(f"s_cmp_gt_u32 s{sW}, 4")
    a("s_cbranch_scc1 L_fin")
    a(f"s_cmp_eq_u32 s{sW}, 4")
    a("s_cbranch_scc1 L_stml")
    a.c("waves 0,1: YA ; waves 2,3: YG ; n = (w&1)*64 + lane < 112")
    a(f"s_and_b32 s{sT0}, s{sW}, 1")
    a(f"s_lshl_b32 s{sT0}, s{sT0}, 10")
    a(f"v_add_u32 v{vA0}, s{sT0}, v{vL16}")
    a(f"s_lshr_b32 s{sT1}, s{sW}, 1")
    a(f"s_mov_b32 s{sT0}, {YA}")
    a(f"s_cmp_eq_u32 s{sT1}, 0")
    a(f"s_cselect_b32 s{sT0}, s{sT0}, {YG}")
    a(f"v_add_u32 v{R}, s{sT0}, v{vA0}")
    rds = [24, 28, 32, 36, 40, 44, 48, 52]
    for w2 in range(8):
        a(f"ds_read_b128 v[{rds[w2]}:{rds[w2]+3}], v{R} offset:{2048*w2}")
    a(f"s_mul_i32 s{sT1}, s{sT1}, 1792")
    a(f"s_add_u32 s{sT0}, s{sSLOT}, s{sT1}")
    a(f"v_cmp_gt_u32 vcc, 1792, v{vA0}")
    RD = rds[0]
    for w2 in range(1, 8):
        a(f"s_waitcnt lgkmcnt({7-w2})")
        a(f"v_pk_add_f32 v[{RD}:{RD+1}], v[{RD}:{RD+1}], v[{rds[w2]}:{rds[w2]+1}]")
        a(f"v_pk_add_f32 v[{RD+2}:{RD+3}], v[{RD+2}:{RD+3}], v[{rds[w2]+2}:{rds[w2]+3}]")
    a("s_and_saveexec_b64 s[100:101], vcc")
    a(f"buffer_store_dwordx4 v[{RD}:{RD+3}], v{vA0}, s[{dWS}:{dWS+3}], s{sT0} offen sc1")
    a("s_mov_b64 exec, -1")
    if cfg.get("epi"): stamp(a, cfg, 12)
    a("s_branch L_fin")
    a("L_stml:")
    a(f"v_mov_b32 v{vA0}, 3584")
    a("s_mov_b64 exec, 1")
    a(f"buffer_store_dwordx2 v[{MM}:{MM+1}], v{vA0}, s[{dWS}:{dWS+3}], s{sSLOT} offen sc1")
    a("s_mov_b64 exec, -1")
    a("s_branch L_fin")
    a("L_cons:")
    a(f"s_cmp_ge_u32 s{sJ}, 28")
    a("s_cbranch_scc1 L_fin")
    VO_, VM_ = 22, 23
    a(f"v_lshrrev_b32 v{VM_}, 2, v{vLANE}")
    a(f"v_lshlrev_b32 v{VM_}, 12, v{VM_}")
    a(f"v_and_b32 v{VO_}, 3, v{vLANE}")
    a(f"v_lshl_add_u32 v{VO_}, v{VO_}, 4, v{VM_}")
    a(f"s_lshl_b32 s{sT0}, s{sB}, 17")
    a(f"s_lshl_b32 s{sT1}, s{sJ}, 6")
    a(f"s_add_u32 s{sT1}, s{sT1}, s{sT0}")
    a(f"s_add_u32 s{sT2}, s{sT1}, 0x10000")
    a(f"s_add_u32 s{sT3}, s{sT0}, 0x10000")
    a(f"s_mov_b32 s{sIT}, 0")
    a("s_waitcnt vmcnt(0)")
    a("L_clrchk:")
    a(f"v_cmp_gt_u32 vcc, 32, v{CL}")
    a("s_cbranch_vccz L_poll0")
    a("s_sleep 8")
    a(f"global_load_dword v{CL}, v{CL+1}, s[{sDBG_}:{sDBG_+1}] sc1")
    a(f"s_add_u32 s{sIT}, s{sIT}, 1")
    a(f"s_cmp_lt_u32 s{sIT}, {SPIN}")
    a("s_waitcnt vmcnt(0)")
    a("s_cbranch_scc1 L_clrchk")
    a("L_poll0:")
    A0, A1, G0, G1, M0, M1 = 24, 28, 32, 36, 40, 42
    loads = [
        (A0, 4, VO_, sT1, 0), (A1, 4, VO_, sT2, 0), (G0, 4, VO_, sT1, 1792), (G1, 4, VO_, sT2, 1792),
        (M0, 2, VM_, sT0, 3584), (M1, 2, VM_, sT3, 3584)]
    masks = [sP + 2*i for i in range(6)]
    for m in masks:
        a(f"s_mov_b64 s[{m}:{m+1}], -1")
    a(f"s_mov_b32 s{sIT}, 0")
    DN = 46
    if NCW > 1:
        a(f"v_mov_b32 v{DN}, {CNT+8}")
        a(f"v_mov_b32 v{DN+1}, 1")
        for k in range(1, NCW):
            a(f"s_cmp_lt_u32 s{sW}, {CW+k}")
            a("s_cbranch_scc1 L_poll")
            a(f"s_sleep {cfg.get('stag', 10)}")
    a("L_poll:")
    for n2, ((r, cnt, vo, so, off), m) in enumerate(zip(loads, masks)):
        a(f"s_mov_b64 exec, s[{m}:{m+1}]")
        a(f"s_cbranch_execz L_skip{n2}")
        a(f"buffer_load_dwordx{cnt} v[{r}:{r+cnt-1}], v{vo}, s[{dWS}:{dWS+3}], s{so} offen offset:{off} sc1")
        a(f"L_skip{n2}:")
    a("s_mov_b64 exec, -1")
    a("s_waitcnt vmcnt(0)")
    TM = 44
    for (r, cnt, vo, so, off), m in zip(loads, masks):
        if cnt == 4:
            a(f"v_max3_u32 v{TM}, v{r}, v{r+1}, v{r+2}")
            a(f"v_max_u32 v{TM}, v{TM}, v{r+3}")
        else:
            a(f"v_max_u32 v{TM}, v{r}, v{r+1}")
        a(f"v_cmp_eq_u32 s[{m}:{m+1}], -1, v{TM}")
    a("s_nop 1")
    a(f"s_or_b64 s[100:101], s[{masks[0]}:{masks[0]+1}], s[{masks[1]}:{masks[1]+1}]")
    for m in masks[2:]:
        a(f"s_or_b64 s[100:101], s[100:101], s[{m}:{m+1}]")
    a("s_cbranch_scc0 L_ready")
    if NCW > 1:
        a.c("another consumer wave of this workgroup may already have finished the job")
        a(f"ds_read_b32 v{TM}, v{DN}")
        a("s_waitcnt lgkmcnt(0)")
        a(f"v_readfirstlane_b32 s{sIDX}, v{TM}")
        a(f"s_cmp_lg_u32 s{sIDX}, 0")
        a("s_cbranch_scc1 L_fin")
    a(f"s_add_u32 s{sIT}, s{sIT}, 1")
    a(f"s_cmp_lt_u32 s{sIT}, {SPIN}")
    if SLEEP:
        a(f"s_sleep {SLEEP}")
    a("s_cbranch_scc1 L_poll")
    a("L_ready:")
    if NCW > 1:
        a(f"ds_write_b32 v{DN}, v{DN+1}")
    stamp(a, cfg, 6)
    for M in (M0, M1):
        a(dpp("v_max_f32", TM + (M == M1), M, M, "row_half_mirror"))
    for M in (M0, M1):
        a(f"v_sub_f32 v{M}, v{M}, v{TM + (M == M1)}")
    for M in (M0, M1):
        a(f"v_exp_f32 v{M}, v{M}")
    a("s_nop 0")
    for M in (M0, M1):
        a(f"v_mul_f32 v{M+1}, v{M+1}, v{M}")
    a("s_nop 0")
    for M in (M0, M1):
        a(dpp("v_add_f32", M+1, M+1, M+1, "row_half_mirror"))
    for M in (M0, M1):
        a(f"v_rcp_f32 v{M+1}, v{M+1}")
    a(f"v_pk_add_f32 v[{G0}:{G0+1}], v[{G0}:{G0+1}], v[{G1}:{G1+1}]")
    a(f"v_pk_add_f32 v[{G0+2}:{G0+3}], v[{G0+2}:{G0+3}], v[{G1+2}:{G1+3}]")
    for M in (M0, M1):
        a(f"v_mul_f32 v{M}, v{M}, v{M+1}")
    a(f"v_pk_mul_f32 v[{A0}:{A0+1}], v[{A0}:{A0+1}], v[{M0}:{M0+1}] op_sel_hi:[1,0]")
    a(f"v_pk_mul_f32 v[{A0+2}:{A0+3}], v[{A0+2}:{A0+3}], v[{M0}:{M0+1}] op_sel_hi:[1,0]")
    a(pkfma_bcast(A0, A1, M1))
    a(pkfma_bcast(A0+2, A1+2, M1))
    regs8 = [G0, G0+1, G0+2, G0+3, A0, A0+1, A0+2, A0+3]
    for ctrl in ("row_ror:4", "row_ror:8"):
        for r in regs8:
            a(dpp("v_add_f32", r, r, r, ctrl))
    a("s_nop 0")
    for k in range(4):
        a(f"v_permlane32_swap_b32 v{A0+k}, v{G0+k}")
    a("s_nop 0")
    for k in range(4):
        a(f"v_add_f32 v{A0+k}, v{A0+k}, v{G0+k}")
    for k in range(4):
        a(f"v_mov_b32 v{G0+k}, v{A0+k}")
    a("s_nop 0")
    for k in range(4):
        a(f"v_permlane16_swap_b32 v{A0+k}, v{G0+k}")
    a("s_nop 0")
    for k in range(4):
        a(f"v_add_f32 v{A0+k}, v{A0+k}, v{G0+k}")
    for k in range(4):
        bf16_round(a, A0+k)
    for k in range(4):
        a(f"v_mov_b32 v{G0+k}, v{A0+k}")
    a(f"v_lshlrev_b32 v{A1}, 16, v{XR}")
    a(f"v_and_b32 v{A1+1}, s{sMASK}, v{XR}")
    for k in range(4):
        a(f"v_permlane32_swap_b32 v{A0+k}, v{G0+k}")
    a(f"v_lshlrev_b32 v{A1+2}, 16, v{XR+1}")
    a(f"v_and_b32 v{A1+3}, s{sMASK}, v{XR+1}")
    for k in range(4):
        a(f"v_add_f32 v{A0+k}, v{A0+k}, v{A1+k}")
    for k in range(4):
        bf16_round(a, A0+k)
    for k in range(4):
        a(f"v_add_f32 v{A0+k}, v{A0+k}, v{G0+k}")
    a(f"v_cvt_pk_bf16_f32 v{A0}, v{A0}, v{A0+1}")
    a(f"v_cvt_pk_bf16_f32 v{A0+1}, v{A0+2}, v{A0+3}")
    a(f"s_mul_i32 s{sT1}, s{sB}, 896")
    srd(a, dGU, sOUT_, f"s{sT1}", 896)
    a(f"s_lshl_b32 s{sT0}, s{sJ}, 5")
    a("s_mov_b64 exec, 15")
    a(f"buffer_store_dwordx2 v[{A0}:{A0+1}], v{CL+4}, s[{dGU}:{dGU+3}], s{sT0} offen {cfg.get('outf','')}")
    a("s_mov_b64 exec, -1")
    dbgt(a, cfg, 1, None, "a")
    a("L_fin:")
    if cfg.get("stamps"):
        a("s_waitcnt vmcnt(0)")
        stamp(a, cfg, 7)
        a("v_writelane_b32 v7, s98, 0")
        a("s_getreg_b32 s96, hwreg(HW_REG_XCC_ID)")
        a("v_writelane_b32 v7, s96, 8")
        a(f"s_lshl_b32 s{sT0}, s2, 3")
        a(f"s_add_u32 s{sT0}, s{sT0}, s{sW}")
        a(f"s_lshl_b32 s{sT0}, s{sT0}, 6")
        a(f"s_add_u32 s{sT0}, s{sT0}, 0x200000")
        a(f"v_lshlrev_b32 v{vA0}, 2, v{vLANE}")
        a("s_mov_b64 exec, 0xffff")
        a(f"buffer_store_dword v7, v{vA0}, s[{dWS}:{dWS+3}], s{sT0} offen")
    a("L_end:")
    a("s_endpgm")
    hdr = open(REF).read().split("; Override launch")[0] if os.path.exists(REF) else ""
    return hdr + f"""; @launch grid=(256,1,1) block=(512,1,1) lds={LDS_BYTES}
""" + DOC + f""".amdgcn_target "amdgcn-amd-amdhsa--gfx950"
.text
.globl {KN}
.p2align 8
.type {KN},@function
{KN}:
""" + a.text() + f""".section .rodata,"a"
.p2align 6
.amdhsa_kernel {KN}
  .amdhsa_next_free_vgpr 256
  .amdhsa_next_free_sgpr 102
  .amdhsa_accum_offset 256
  .amdhsa_group_segment_fixed_size 0
  .amdhsa_kernarg_size 96
  .amdhsa_user_sgpr_count 2
  .amdhsa_user_sgpr_kernarg_segment_ptr 1
  .amdhsa_system_sgpr_workgroup_id_x 1
.end_amdhsa_kernel
"""

if __name__ == "__main__":
    name = sys.argv[1]
    cfg = {"n1": 6, "spr1": 20, "n2": 6, "spr2": 30, "pace": 99, "n0": 4, "outf": "sc1", "sleep": 1, "vw": 12, "dynw": 4, "bar0": 0}
    cfg.update(json.loads(sys.argv[2]) if len(sys.argv) > 2 else {})
    open(name, "w").write(gen(cfg))
```

```python
import struct, sys, os, json

KN = "parallel_sum__mha_block_cached__glu_gated_glu__decode_kernel"
REF = "parallel_sum__mha_block_cached__glu_gated_glu__decode.s.ref"
LOG2E = 1.4426950408889634

DOC = '''; Fused LayerNorm + q-projection + decode attention + output projection + GLU + residual, one launch.
;   * the last 3/16 of each head's keys are claimed tile pair by tile pair by the two workgroups of that head.
'''

def f32(x):
    return "0x%08x" % struct.unpack("<I", struct.pack("<f", x))[0]

class Asm:
    def __init__(self):
        self.lines = []
        self.vm = []
    def __call__(self, s):
        for l in s.strip("\n").split("\n"):
            self.lines.append("  " + l.strip() if not l.strip().endswith(":") else l.strip())
    def c(self, s):
        self.lines.append("  ; " + s)
    def vmem(self, s, tag):
        self(s); self.vm.append(tag)
    def wait_tag(self, tag):
        idx = max(i for i, t in enumerate(self.vm) if t == tag)
        n = len(self.vm) - 1 - idx
        self(f"s_waitcnt vmcnt({n})")
        self.vm = self.vm[idx+1:]
    def text(self):
        return "\n".join(self.lines) + "\n"

XT   = 0
QP   = 16384
GP   = QP + 4096
YG   = GP + 2048
OP   = YG + 16384
OPS  = 1040
ML   = OP + 8*OPS
CNT  = ML + 64
QFL  = CNT + 4
QL   = CNT + 64
YA   = QL + 512
LDS_BYTES = YA + 16384
SLOT = 4096
WS_CLM = 0x180000
WS_Q   = 0x1A0000

sBH = 3
sX_, sK_, sV_, sWQ_, sWO_, sBX_, sWG_, sWU_ = 4, 6, 8, 10, 12, 14, 16, 18
sWD_, sOUT_, sDBG_, sWS_ = 20, 22, 24, 26
dK, dV, dWQ, dGU, dX, dWO, dWD, dWS = 28, 32, 36, 40, 44, 48, 52, 56
sW, sB, sH, sS, sJ, sIT, sOFF, sT0, sT1, sMASK, sT2, sT3 = 60, 61, 62, 63, 64, 65, 66, 67, 68, 69, 70, 71
sP = 72
sO1, sO2, sO3 = 88, 89, 90
sOB, sVALID, sCNT = 88, 89, 90
sJO, sIDX, sPL, sPH, sSLOT = 91, 92, 93, 94, 95
sST = 92
sPR = 74
sO4, sO5 = 75, 76
KE, VE, KF, VF = 192, 208, 224, 240
sGO = 87
sNL, sNH = 72, 73
vLANE, vL16, vWQO, vGUO, vA0, vA1 = 1, 2, 3, 4, 5, 6
vCLM, vCHK = 3, 46
vQ = 8
vO = 12
vM, vL = 20, 21
STG = 48
KA, VA, KB, VB = 64, 80, 96, 112
W = 128
KC, VC, KD, VD = 128, 144, 160, 176
GUR = 192

def srd(a, d, base, off_s, nrec):
    if off_s is None:
        a(f"s_mov_b32 s{d}, s{base}")
        a(f"s_mov_b32 s{d+1}, s{base+1}")
    else:
        a(f"s_add_u32 s{d}, s{base}, {off_s}")
        a(f"s_addc_u32 s{d+1}, s{base+1}, 0")
    a(f"s_mov_b32 s{d+2}, {nrec}")
    a(f"s_mov_b32 s{d+3}, 0x00020000")

def dpp(op, d, s0, s1, ctrl, rm="0xf", bm="0xf"):
    return f"{op}_dpp v{d}, v{s0}, v{s1} {ctrl} row_mask:{rm} bank_mask:{bm}"

def reduce64(a, op, v, sdst):
    for ctrl, rm in (("quad_perm:[1,0,3,2]", "0xf"), ("quad_perm:[2,3,0,1]", "0xf"), ("row_half_mirror", "0xf"),
                     ("row_mirror", "0xf"), ("row_bcast:15", "0xa"), ("row_bcast:31", "0xc")):
        a("s_nop 1")
        a(dpp(op, v, v, v, ctrl, rm))
    a("s_nop 0")
    a(f"v_readlane_b32 s{sdst}, v{v}, 63")

def bsel(m):
    return "op_sel:[0,1,0] op_sel_hi:[1,1,1]" if m & 1 else "op_sel_hi:[1,0,1]"

def pkfma_bcast(acc, u, m, sgpr=False):
    r = "s" if sgpr else "v"
    base = m & ~1
    return f"v_pk_fma_f32 v[{acc}:{acc+1}], v[{u}:{u+1}], {r}[{base}:{base+1}], v[{acc}:{acc+1}] {bsel(m)}"

def unpack(a, data, tmp):
    for k in range(4):
        a(f"v_lshlrev_b32 v{tmp+2*k}, 16, v{data+k}")
        a(f"v_and_b32 v{tmp+2*k+1}, s{sMASK}, v{data+k}")

def axpy_row(a, acc, data, m, tmp, sgpr=False):
    unpack(a, data, tmp)
    for k in range(4):
        a(pkfma_bcast(acc+2*k, tmp+2*k, m, sgpr))

def bf16_round(a, v):
    a(f"v_cvt_pk_bf16_f32 v{v}, v{v}, v{v}")
    a(f"v_and_b32 v{v}, s{sMASK}, v{v}")

def stamp(a, cfg, idx):
    if cfg.get("stamps"):
        a("s_memrealtime s[96:97]")
        a("s_waitcnt lgkmcnt(0)")
        a(f"v_writelane_b32 v7, s96, {idx}")

def dbgt(a, cfg, word, wave, lab, neg=False):
    if not cfg.get("dbgtime"): return
    if wave is not None:
        a(f"s_cmp_lg_u32 s{sW}, {wave}")
        a(f"s_cbranch_scc1 L_dt{lab}")
    a("s_memrealtime s[96:97]")
    a(f"v_mov_b32 v22, {word*4}")
    a("s_waitcnt lgkmcnt(0)")
    if neg: a("s_not_b32 s96, s96")
    a("v_mov_b32 v23, s96")
    a("s_mov_b64 exec, 1")
    a(f"global_atomic_umax v22, v23, s[{sDBG_}:{sDBG_+1}] sc1")
    a("s_mov_b64 exec, -1")
    a(f"L_dt{lab}:")

def gen(cfg):
    KVF = cfg.get("kvflags", "nt")
    KF_ = cfg.get("kf", KVF); VF_ = cfg.get("vf", KVF)
    WF = cfg.get("wflags", "")
    WQF = cfg.get("wqf", WF); WOF = cfg.get("wof", WF); GUF = cfg.get("guf", WF); WDF = cfg.get("wdf", WF)
    SLEEP = cfg.get("sleep", 4)
    VW = cfg.get("vw", 12)
    PACE = cfg.get("pace", 3)
    SI = cfg.get("si", 11)
    NPRE = cfg.get("npre", 4)
    NST = NPRE + 2*SI
    NDYN = (512 - 16*NST)//2
    SPIN = 0x200000
    a = Asm()
    a("s_cmp_ge_u32 s2, 256")
    a("s_cbranch_scc1 L_end")
    a("s_load_dwordx16 s[4:19], s[0:1], 0")
    a("s_load_dwordx8 s[20:27], s[0:1], 64")
    if cfg.get("stamps"):
        a("v_mov_b32 v7, 0")
        a("s_memrealtime s[98:99]")
    if cfg.get("prog"):
        a("s_memrealtime s[98:99]")
        a("s_waitcnt lgkmcnt(0)")
        a("s_mov_b32 s99, s98")
    a(f"v_and_b32 v{vLANE}, 63, v0")
    a(f"v_lshrrev_b32 v{vA0}, 6, v0")
    a(f"v_lshlrev_b32 v{vL16}, 4, v{vLANE}")
    a(f"v_readfirstlane_b32 s{sW}, v{vA0}")
    a.c("decode workgroup id: xcd=g&7, e=(g>>3)&1, s=(g>>4)&1, b=g>>5; the two key halves of a head sit on xcd i and i+1+2e")
    a(f"s_and_b32 s{sT0}, s2, 7")
    a(f"s_bfe_u32 s{sT1}, s2, 0x10003")
    a(f"s_bfe_u32 s{sS}, s2, 0x10004")
    a(f"s_lshr_b32 s{sB}, s2, 5")
    if cfg.get("pair", "xor") == "k44":
        a(f"s_lshl_b32 s{sT2}, s{sT1}, 1")
        a(f"s_add_u32 s{sT2}, s{sT2}, 1")
        a(f"s_mul_i32 s{sT2}, s{sT2}, s{sS}")
        a(f"s_sub_u32 s{sT0}, s{sT0}, s{sT2}")
        a(f"s_and_b32 s{sT0}, s{sT0}, 7")
    elif cfg.get("pair", "xor") == "xor":
        a(f"s_lshl_b32 s{sT2}, s{sT1}, 1")
        a(f"s_add_u32 s{sT2}, s{sT2}, 3")
        a(f"s_mul_i32 s{sT2}, s{sT2}, s{sS}")
        a(f"s_xor_b32 s{sT0}, s{sT0}, s{sT2}")
    elif cfg.get("pair") == "tab":
        inv0, inv1 = cfg["inv0"], cfg["inv1"]
        pk = lambda t: sum(v << (4*i) for i, v in enumerate(t))
        a(f"s_mov_b32 s{sT2}, {pk(inv0):#x}")
        a(f"s_cmp_eq_u32 s{sT1}, 0")
        a(f"s_cselect_b32 s{sT2}, s{sT2}, {pk(inv1):#x}")
        a(f"s_cmp_eq_u32 s{sS}, 0")
        a(f"s_cselect_b32 s{sT2}, 0x76543210, s{sT2}")
        a(f"s_lshl_b32 s{sT0}, s{sT0}, 2")
        a(f"s_lshr_b32 s{sT0}, s{sT2}, s{sT0}")
        a(f"s_and_b32 s{sT0}, s{sT0}, 7")
    a(f"s_lshl_b32 s{sH}, s{sT0}, 1")
    a(f"s_add_u32 s{sH}, s{sH}, s{sT1}")
    a(f"s_lshl_b32 s{sJ}, s{sH}, 1")
    a(f"s_add_u32 s{sJ}, s{sJ}, s{sS}")
    a(f"s_mov_b32 s{sMASK}, 0xffff0000")
    a.c("wq slice voffset = (lane>>1)*8192 + (lane&1)*16")
    a(f"v_lshrrev_b32 v{vA0}, 1, v{vLANE}")
    a(f"v_and_b32 v{vA1}, 1, v{vLANE}")
    a(f"v_lshlrev_b32 v{vWQO}, 13, v{vA0}")
    a(f"v_lshl_add_u32 v{vWQO}, v{vA1}, 4, v{vWQO}")
    a(f"s_lshl_b32 s{sBH}, s{sB}, 4")
    a(f"s_add_u32 s{sBH}, s{sBH}, s{sH}")
    a(f"s_lshl_b32 s{sT0}, s{sBH}, 21")
    a(f"s_mul_i32 s{sT1}, s{sW}, 896")
    a.c("p = s*8 + b ; flag byte index = h*16 + p ; wq column byte offset = h*512 + p*32")
    a(f"s_lshl_b32 s{sPL}, s{sS}, 3")
    a(f"s_add_u32 s{sPL}, s{sPL}, s{sB}")
    a(f"s_lshl_b32 s{sPH}, s{sH}, 4")
    a(f"s_add_u32 s{sPH}, s{sPH}, s{sPL}")
    a(f"s_lshl_b32 s{sT2}, s{sPH}, 5")
    a(f"s_sub_u32 s{sT3}, {448*8192}, s{sT2}")
    ADJ = cfg.get("adj", 0)
    DB = 0x1000 if ADJ else 0x8000
    a(f"s_lshl_b32 s{sOFF}, s{sW}, {13 if ADJ else 12}")
    a(f"s_mul_i32 s{sO1}, s{sS}, {NST*8*4096}")
    a(f"s_add_u32 s{sOFF}, s{sOFF}, s{sO1}")
    a(f"s_sub_u32 s{sPR}, 7, s{sW}")
    a(f"s_lshl_b32 s{sIT}, s{sPR}, 19")
    a(f"s_add_u32 s{sJO}, s{sIT}, 0x40000")
    a(f"s_add_u32 s{sO1}, s{sOFF}, {DB}")
    a(f"s_add_u32 s{sO2}, s{sOFF}, 0x10000")
    a(f"s_add_u32 s{sO3}, s{sOFF}, {0x10000+DB}")
    a(f"s_add_u32 s{sO4}, s{sOFF}, 0x20000")
    a(f"s_add_u32 s{sO5}, s{sOFF}, {0x20000+DB}")
    a("s_waitcnt lgkmcnt(0)")
    X4 = 24; WQ0 = 56; WQ1 = 60
    srd(a, dX, sX_, f"s{sT1}", 896)
    a.vmem(f"buffer_load_dwordx4 v[{X4}:{X4+3}], v{vL16}, s[{dX}:{dX+3}], 0 offen", "x")
    srd(a, dWQ, sWQ_, f"s{sT2}", f"s{sT3}")
    a.vmem(f"buffer_load_dwordx4 v[{WQ0}:{WQ0+3}], v{vWQO}, s[{dWQ}:{dWQ+3}], s{sIT} offen {WQF}", "wq0")
    a.vmem(f"buffer_load_dwordx4 v[{WQ1}:{WQ1+3}], v{vWQO}, s[{dWQ}:{dWQ+3}], s{sJO} offen {WQF}", "wq1")
    a.c("launch nonce of this head: first arriver's clock value, agreed through a compare-swap on zeroed d_debug")
    NON = 20
    a(f"s_cmp_lg_u32 s{sW}, 0")
    a("s_cbranch_scc1 L_nonon")
    a("s_memrealtime s[100:101]")
    a(f"s_lshl_b32 s{sT1}, s{sH}, 3")
    a(f"v_mov_b32 v{vA0}, s{sT1}")
    a(f"v_mov_b32 v{NON+1}, 0")
    a("s_waitcnt lgkmcnt(0)")
    a("s_or_b32 s100, s100, 1")
    a(f"v_mov_b32 v{NON}, s100")
    a("s_mov_b64 exec, 1")
    a(f"global_atomic_cmpswap v{NON}, v{vA0}, v[{NON}:{NON+1}], s[{sDBG_}:{sDBG_+1}] sc0 sc1")
    a("s_mov_b64 exec, -1")
    a("L_nonon:")
    srd(a, dK, sK_, f"s{sT0}", 0x200000)
    srd(a, dV, sV_, f"s{sT0}", 0x200000)
    if cfg.get("bar0", 1):
        a("s_barrier")
    kv = []
    for (K, V, so) in ((KA, VA, sOFF), (KB, VB, sO1), (KC, VC, sO2), (KD, VD, sO3), (KE, VE, sO4), (KF, VF, sO5))[:NPRE]:
        kv += [(K, dK, so, i) for i in range(4)] + [(V, dV, so, i) for i in range(4)]
    def kvone():
        base, d, so, i = kv.pop(0)
        a.vmem(f"buffer_load_dwordx4 v[{base+4*i}:{base+4*i+3}], v{vL16}, s[{d}:{d+3}], s{so} offen offset:{i*1024} {KF_ if d == dK else VF_}", "kv")
    def sprinkle(start, every, count):
        body = a.lines[start:]
        del a.lines[start:]
        k = 0
        for n_, l in enumerate(body):
            a.lines.append(l)
            if k < count and n_ % every == every-1 and not l.strip().startswith(("s_waitcnt vmcnt", ";")):
                kvone(); k += 1
        while k < count:
            kvone(); k += 1
    def kvgroup(paced):
        for _ in range(4):
            base, d, so, i = kv.pop(0)
            a.vmem(f"buffer_load_dwordx4 v[{base+4*i}:{base+4*i+3}], v{vL16}, s[{d}:{d+3}], s{so} offen offset:{i*1024} {KF_ if d == dK else VF_}", "kv")
            if paced:
                a(f"s_waitcnt vmcnt({PACE})")
    for _ in range(cfg.get("n0", 4)):
        kvone()
    stamp(a, cfg, 1)
    srd(a, dWS, sWS_, None, 0x400000)
    a(f"s_lshl_b32 s{sSLOT}, s{sB}, 5")
    a(f"s_add_u32 s{sSLOT}, s{sSLOT}, s{sJ}")
    a(f"s_lshl_b32 s{sSLOT}, s{sSLOT}, 12")
    for k in range(8):
        a(f"v_mov_b32 v{vO+k}, 0")
    a(f"s_cmp_lt_u32 s{sW}, 4")
    a(f"s_cselect_b32 s{dGU}, s{sWG_}, s{sWU_}")
    a(f"s_cselect_b32 s{dGU+1}, s{sWG_+1}, s{sWU_+1}")
    a(f"s_mov_b32 s{dGU+2}, {448*3584}")
    a(f"s_mov_b32 s{dGU+3}, 0x00020000")
    srd(a, dWO, sWO_, None, 4096*896)
    srd(a, dWD, sWD_, None, 1792*896)
    a(f"v_cmp_gt_u32 vcc, 56, v{vLANE}")
    a(f"v_mov_b32 v{vA0}, {CNT}")
    a(f"ds_write_b128 v{vA0}, v[{vO}:{vO+3}]")
    a.c("LayerNorm: wave w normalises x[w]")
    E = 28; S0 = 36
    a.wait_tag("x")
    ln0 = len(a.lines)
    unpack(a, X4, E)
    a(f"v_add_f32 v{S0}, v{E}, v{E+1}")
    a(f"v_add_f32 v{S0+1}, v{E+2}, v{E+3}")
    a(f"v_add_f32 v{S0+2}, v{E+4}, v{E+5}")
    a(f"v_add_f32 v{S0+3}, v{E+6}, v{E+7}")
    a(f"v_add_f32 v{S0}, v{S0}, v{S0+1}")
    a(f"v_add_f32 v{S0+2}, v{S0+2}, v{S0+3}")
    a(f"v_add_f32 v{S0}, v{S0}, v{S0+2}")
    reduce64(a, "v_add_f32", S0, sT0)
    MEAN = S0+1; ACC = S0+2; D = S0+4
    a("s_nop 1")
    a(f"v_mov_b32 v{MEAN}, s{sT0}")
    a(f"v_mul_f32 v{MEAN}, {f32(1.0/448)}, v{MEAN}")
    for k in range(8):
        a(f"v_sub_f32 v{D+k}, v{E+k}, v{MEAN}")
    a(f"v_mul_f32 v{ACC}, v{D}, v{D}")
    for k in range(1, 8):
        a(f"v_fmac_f32 v{ACC}, v{D+k}, v{D+k}")
    a(f"v_cndmask_b32 v{ACC}, 0, v{ACC}, vcc")
    reduce64(a, "v_add_f32", ACC, sT0)
    bf16_round(a, MEAN)
    a(f"v_mov_b32 v{ACC}, s{sT0}")
    a(f"v_mul_f32 v{ACC}, {f32(1.0/448)}, v{ACC}")
    bf16_round(a, ACC)
    a(f"v_add_f32 v{ACC}, {f32(1e-5)}, v{ACC}")
    bf16_round(a, ACC)
    a(f"v_sqrt_f32 v{ACC}, v{ACC}")
    for k in range(8):
        a(f"v_sub_f32 v{D+k}, v{E+k}, v{MEAN}")
    bf16_round(a, ACC)
    a(f"v_rcp_f32 v{ACC}, v{ACC}")
    for k in range(4):
        a(f"v_cvt_pk_bf16_f32 v{X4+k}, v{D+2*k}, v{D+2*k+1}")
    unpack(a, X4, D)
    for k in range(8):
        a(f"v_mul_f32 v{D+k}, v{D+k}, v{ACC}")
    for k in range(4):
        a(f"v_cvt_pk_bf16_f32 v{X4+k}, v{D+2*k}, v{D+2*k+1}")
    unpack(a, X4, E)
    a(f"v_lshlrev_b32 v{vA0}, 5, v{vLANE}")
    a(f"s_lshl_b32 s{sT0}, s{sW}, 11")
    a(f"v_add_u32 v{vA0}, s{sT0}, v{vA0}")
    a(f"ds_write_b128 v{vA0}, v[{E}:{E+3}] offset:{XT}")
    a(f"ds_write_b128 v{vA0}, v[{E+4}:{E+7}] offset:{XT+16}")
    a.c("multiplier addresses: row (64w + 32i + lane>>1) * 4")
    a(f"v_lshrrev_b32 v{vA0}, 1, v{vLANE}")
    a(f"v_lshlrev_b32 v{vA0}, 2, v{vA0}")
    a(f"s_lshl_b32 s{sT0}, s{sPR}, 8")
    a(f"v_add_u32 v{vA0}, s{sT0}, v{vA0}")
    a(f"v_add_u32 v{vA1}, 128, v{vA0}")
    sprinkle(ln0, cfg.get("spr1", 30), cfg.get("n1", 4))
    a("s_waitcnt lgkmcnt(0)")
    a("s_barrier")
    stamp(a, cfg, 2)
    XM = 24
    for k in range(4):
        a(f"ds_read2st64_b32 v[{XM+2*k}:{XM+2*k+1}], v{vA0} offset0:{XT//256+16*k} offset1:{XT//256+16*k+8}")
    for k in range(4):
        a(f"ds_read2st64_b32 v[{XM+8+2*k}:{XM+8+2*k+1}], v{vA1} offset0:{XT//256+16*k} offset1:{XT//256+16*k+8}")
    U0 = 40; U1 = 48
    a.wait_tag("wq1")
    fm0 = len(a.lines)
    unpack(a, WQ0, U0)
    unpack(a, WQ1, U1)
    QA = GUR
    a("s_waitcnt lgkmcnt(4)")
    for b in range(8):
        for k in range(4):
            m = XM + b
            sel = "op_sel:[0,1] op_sel_hi:[1,1]" if m & 1 else "op_sel_hi:[1,0]"
            a(f"v_pk_mul_f32 v[{QA+8*b+2*k}:{QA+8*b+2*k+1}], v[{U0+2*k}:{U0+2*k+1}], v[{m&~1}:{(m&~1)+1}] {sel}")
    a("s_waitcnt lgkmcnt(0)")
    for b in range(8):
        for k in range(4):
            a(pkfma_bcast(QA+8*b+2*k, U1+2*k, XM+8+b))
    a.c("transposing reduction over lane bits 5,4,3,2 then all-reduce over bit 1")
    for r in range(32):
        a(f"v_permlane32_swap_b32 v{QA+r}, v{QA+32+r}")
    for r in range(0, 32, 2):
        a(f"v_pk_add_f32 v[{QA+r}:{QA+r+1}], v[{QA+r}:{QA+r+1}], v[{QA+32+r}:{QA+32+r+1}]")
    for r in range(16):
        a(f"v_permlane16_swap_b32 v{QA+r}, v{QA+16+r}")
    for r in range(0, 16, 2):
        a(f"v_pk_add_f32 v[{QA+r}:{QA+r+1}], v[{QA+r}:{QA+r+1}], v[{QA+16+r}:{QA+16+r+1}]")
    R3 = QA + 32
    for r in range(8):
        a(dpp("v_add_f32", R3+r, QA+r, QA+r, "row_ror:8", bm="0x3"))
    for r in range(8):
        a(dpp("v_add_f32", R3+r, QA+8+r, QA+8+r, "row_ror:8", bm="0xc"))
    R4 = QA + 48
    for r in range(4):
        a(dpp("v_add_f32", R4+r, R3+r, R3+r, "row_shl:4", bm="0x5"))
    for r in range(4):
        a(dpp("v_add_f32", R4+r, R3+4+r, R3+4+r, "row_shr:4", bm="0xa"))
    a.c("LDS addr = QP + w*512 + (lane>>3)*64 + (lane&1)*32 + ((lane>>2)&1)*16")
    a(f"v_lshrrev_b32 v{vA0}, 3, v{vLANE}")
    a(f"v_lshlrev_b32 v{vA0}, 6, v{vA0}")
    a(f"v_and_b32 v{vA1}, 1, v{vLANE}")
    a(f"v_lshl_add_u32 v{vA0}, v{vA1}, 5, v{vA0}")
    a(f"v_and_b32 v{vA1}, 4, v{vLANE}")
    a(f"v_lshl_add_u32 v{vA0}, v{vA1}, 2, v{vA0}")
    for r in range(4):
        a(dpp("v_add_f32", R4+r, R4+r, R4+r, "quad_perm:[2,3,0,1]"))
    a(f"s_lshl_b32 s{sT0}, s{sPR}, 9")
    a(f"v_add_u32 v{vA0}, s{sT0}, v{vA0}")
    a(f"ds_write_b128 v{vA0}, v[{R4}:{R4+3}] offset:{QP}")
    sprinkle(fm0, cfg.get("spr2", 40), cfg.get("n2", 4))
    QD = 40
    VQA = 39
    a(f"v_and_b32 v{VQA}, 31, v{vLANE}")
    a(f"v_lshlrev_b32 v{VQA}, 5, v{VQA}")
    a(f"s_lshl_b32 s{sT3}, s{sBH}, 10")
    a(f"s_add_u32 s{sT3}, s{sT3}, {WS_Q}")
    a("s_waitcnt lgkmcnt(0)")
    a("s_barrier")
    a(f"s_cmp_lg_u32 s{sW}, 0")
    a("s_cbranch_scc1 L_nopub")
    a.c("wave 0: lanes 0..15 = (b, half): sum 7 partials, publish 8 tagged columns each, then poll for this WG's q")
    a(f"v_lshlrev_b32 v{vA0}, 5, v{vLANE}")
    a("s_mov_b64 exec, 0xffff")
    PR = GUR
    for w2 in range(7):
        a(f"ds_read_b128 v[{PR+8*w2}:{PR+8*w2+3}], v{vA0} offset:{QP+512*w2}")
        a(f"ds_read_b128 v[{PR+8*w2+4}:{PR+8*w2+7}], v{vA0} offset:{QP+512*w2+16}")
    a(f"v_lshrrev_b32 v{vA1}, 1, v{vLANE}")
    a(f"v_lshlrev_b32 v{vA1}, 14, v{vA1}")
    a(f"v_and_b32 v{vA0}, 1, v{vLANE}")
    a(f"v_lshl_add_u32 v{vA1}, v{vA0}, 5, v{vA1}")
    a(f"s_lshl_b32 s{sT0}, s{sPH}, 6")
    a(f"s_add_u32 s{sT0}, s{sT0}, {WS_Q}")
    a.c("nonce = returned old value, or our own proposal if the word was still zero")
    a(f"v_readfirstlane_b32 s{sT1}, v{NON}")
    a(f"s_cmp_eq_u32 s{sT1}, 0")
    a(f"s_cselect_b32 s{sT1}, s100, s{sT1}")
    a(f"s_and_b32 s{sNL}, s{sT1}, 0xffff")
    a(f"s_lshr_b32 s{sNH}, s{sT1}, 16")
    a(f"v_mov_b32 v{QD}, s{sNL}")
    a(f"v_mov_b32 v{QD+1}, s{sNH}")
    for w2 in range(1, 7):
        a(f"s_waitcnt lgkmcnt({12-2*w2})")
        for k in range(4):
            a(f"v_pk_add_f32 v[{PR+2*k}:{PR+2*k+1}], v[{PR+2*k}:{PR+2*k+1}], v[{PR+8*w2+2*k}:{PR+8*w2+2*k+1}]")
    for k in range(8):
        a(f"v_cvt_pk_bf16_f32 v{PR+k}, v{PR+k}, v{PR+k}")
    for k in range(8):
        a(f"v_and_or_b32 v{PR+56+k}, v{PR+k}, s{sMASK}, v{QD+(k&1)}")
    a(f"buffer_store_dwordx4 v[{PR+56}:{PR+59}], v{vA1}, s[{dWS}:{dWS+3}], s{sT0} offen sc1")
    a(f"buffer_store_dwordx4 v[{PR+60}:{PR+63}], v{vA1}, s[{dWS}:{dWS+3}], s{sT0} offen offset:16 sc1")
    a("s_mov_b64 exec, -1")
    stamp(a, cfg, 13)
    a(f"s_mov_b32 s{sIT}, 0")
    TX = 24
    a("L_qpoll:")
    a(f"buffer_load_dwordx4 v[{QD}:{QD+3}], v{VQA}, s[{dWS}:{dWS+3}], s{sT3} offen sc1")
    a(f"buffer_load_dwordx4 v[{QD+4}:{QD+7}], v{VQA}, s[{dWS}:{dWS+3}], s{sT3} offen offset:16 sc1")
    a(f"s_add_u32 s{sIT}, s{sIT}, 1")
    a("s_waitcnt vmcnt(0)")
    for k in range(8):
        a(f"v_xor_b32 v{TX+k}, s{sNH if k & 1 else sNL}, v{QD+k}")
    a(f"v_or3_b32 v{TX}, v{TX}, v{TX+1}, v{TX+2}")
    a(f"v_or3_b32 v{TX+3}, v{TX+3}, v{TX+4}, v{TX+5}")
    a(f"v_or3_b32 v{TX}, v{TX}, v{TX+6}, v{TX+7}")
    a(f"v_or_b32 v{TX}, v{TX}, v{TX+3}")
    a(f"v_and_b32 v{TX}, 0xffff, v{TX}")
    a(f"v_cmp_ne_u32 vcc, 0, v{TX}")
    a("s_cbranch_vccz L_qgot")
    a(f"s_cmp_lt_u32 s{sIT}, {SPIN}")
    a("s_cbranch_scc1 L_qpoll")
    a("L_qgot:")
    a(f"s_mov_b32 s{sT0}, 0x07060302")
    for k in range(4):
        a(f"v_perm_b32 v{TX+k}, v{QD+2*k+1}, v{QD+2*k}, s{sT0}")
    a(f"v_lshrrev_b32 v{TX+4}, 1, v{VQA}")
    a(f"ds_write_b128 v{TX+4}, v[{TX}:{TX+3}] offset:{QL}")
    a(f"v_mov_b32 v{TX+5}, {QFL}")
    a(f"v_mov_b32 v{TX+6}, 1")
    a("s_waitcnt lgkmcnt(0)")
    a(f"ds_write_b32 v{TX+5}, v{TX+6}")
    stamp(a, cfg, 14)
    if cfg.get("stamps"):
        a(f"v_writelane_b32 v7, s{sIT}, 15")
    a("L_nopub:")
    a.c("wave 1 clears this workgroup's slot with the sentinel; in half 0 it also zeroes the pair's claim counter")
    a(f"s_cmp_lg_u32 s{sW}, 1")
    a("s_cbranch_scc1 L_noclr")
    for k in range(4):
        a(f"v_mov_b32 v{STG+k}, -1")
    for k in range(4):
        a(f"buffer_store_dwordx4 v[{STG}:{STG+3}], v{vL16}, s[{dWS}:{dWS+3}], s{sSLOT} offen offset:{1024*k} sc1")
    a(f"s_cmp_lg_u32 s{sS}, 0")
    a("s_cbranch_scc1 L_noclr")
    a(f"s_lshl_b32 s{sT0}, s{sBH}, 8")
    a(f"s_add_u32 s{sT0}, s{sT0}, {WS_CLM}")
    a("s_mov_b64 exec, 1")
    a(f"buffer_store_dword v{vO}, v{vO}, s[{dWS}:{dWS+3}], s{sT0} offen sc1")
    a("s_mov_b64 exec, -1")
    a("L_noclr:")
    while kv:
        if PACE < 60:
            a(f"s_waitcnt vmcnt({PACE})")
        kvone()
    a.c("GLU slice j < 28: 64 columns. gu voffset = (lane>>3)*3584 + (lane&7)*16 ; soffset = 112*(w&3)*3584 + j*128")
    a(f"v_lshrrev_b32 v{vA0}, 3, v{vLANE}")
    a(f"v_and_b32 v{vA1}, 7, v{vLANE}")
    a(f"v_mul_u32_u24 v{vGUO}, 3584, v{vA0}")
    a(f"v_lshl_add_u32 v{vGUO}, v{vA1}, 4, v{vGUO}")
    a(f"s_and_b32 s{sT0}, s{sW}, 3")
    a(f"s_mul_i32 s{sGO}, s{sT0}, {112*3584}")
    a(f"s_lshl_b32 s{sT1}, s{sJ}, 7")
    a(f"s_add_u32 s{sGO}, s{sGO}, s{sT1}")
    a.c("slices j >= 28 do not exist: zero-size descriptors make their loads return 0")
    a(f"s_cmp_lt_u32 s{sJ}, 28")
    a(f"s_cselect_b32 s{dGU+2}, s{dGU+2}, 0")
    a(f"s_cselect_b32 s{dWD+2}, s{dWD+2}, 0")
    a(f"s_mov_b32 s{sIT}, 0")
    a(f"v_mov_b32 v{vA0}, {QFL}")
    a(f"v_lshrrev_b32 v{vA1}, 1, v{VQA}")
    a("L_qwait:")
    a(f"ds_read_b32 v24, v{vA0}")
    a(f"ds_read_b128 v[{vQ}:{vQ+3}], v{vA1} offset:{QL}")
    a("s_waitcnt lgkmcnt(0)")
    a(f"v_readfirstlane_b32 s{sT0}, v24")
    a(f"s_cmp_lg_u32 s{sT0}, 0")
    a("s_cbranch_scc1 L_qok")
    a("s_sleep 1")
    a(f"s_add_u32 s{sIT}, s{sIT}, 1")
    a(f"s_cmp_lt_u32 s{sIT}, {SPIN}")
    a("s_cbranch_scc1 L_qwait")
    a("L_qok:")
    dbgt(a, cfg, 5, 1, "c")
    dbgt(a, cfg, 11, 1, "f", neg=True)
    a(f"v_and_b32 v{vA1}, 31, v{vLANE}")
    a(f"v_lshlrev_b32 v{vA1}, 5, v{vA1}")
    a(f"v_lshrrev_b32 v{vA0}, 5, v{vLANE}")
    a(f"v_lshl_add_u32 v{vA1}, v{vA0}, 4, v{vA1}")
    a(f"v_mov_b32 v{vM}, {f32(-1e30)}")
    a(f"v_mov_b32 v{vL}, 0")
    a(f"s_mov_b32 s{sIT}, 0")
    a(f"s_mov_b32 s{sPL}, 0x05040100")
    a(f"s_mov_b32 s{sPH}, 0x07060302")
    a(f"s_add_u32 s{sOFF}, s{sOFF}, {NPRE*0x8000}")
    a(f"s_add_u32 s{sOB}, s{sOFF}, {DB}")
    a(f"s_lshl_b32 s{sCNT}, s{sBH}, 8")
    a(f"s_add_u32 s{sCNT}, s{sCNT}, {WS_CLM}")
    stamp(a, cfg, 3)
    if cfg.get("prog"):
        a("s_lshl_b32 s98, s2, 3")
        a(f"s_add_u32 s98, s98, s{sW}")
        a("s_lshl_b32 s98, s98, 8")
        a("s_add_u32 s98, s98, 0x200000")
        a("v_mov_b32 v22, s99")
        a("v_mov_b32 v23, 0")
        a("s_mov_b64 exec, 1")
        a(f"buffer_store_dword v22, v23, s[{dWS}:{dWS+3}], s98 offen")
        a("s_mov_b64 exec, -1")
        a("s_add_u32 s98, s98, 4")
    CZ = f32(0.0625*LOG2E)
    A = 22; Z = 26; P = 27; T = 28; PB = 30; U = 34
    def refill4(R, d, so, fl):
        mode = cfg.get("ldmode", "imm")
        for i in range(4):
            if mode == "sofs":
                a(f"s_add_u32 s{sT2}, s{so}, {i*1024}")
                a(f"buffer_load_dwordx4 v[{R+4*i}:{R+4*i+3}], v{vL16}, s[{d}:{d+3}], s{sT2} offen {fl}")
            else:
                if mode.startswith("nop"):
                    a(f"s_nop {mode[3:]}")
                a(f"buffer_load_dwordx4 v[{R+4*i}:{R+4*i+3}], v{vL16}, s[{d}:{d+3}], s{so} offen offset:{i*1024} {fl}")
    def tile(K, V, lab, refill=True, so=None):
        if refill:
            a(f"s_waitcnt vmcnt({VW})")
        for jj in range(4):
            for i in range(4):
                if jj == 0:
                    a(f"v_dot2_f32_bf16 v{A+i}, v{K+4*i}, v{vQ}, 0")
                else:
                    a(f"v_dot2c_f32_bf16 v{A+i}, v{K+4*i+jj}, v{vQ+jj}")
        if refill:
            refill4(K, dK, so, KF_)
        else:
            a("s_nop 2")
        a(f"v_permlane16_swap_b32 v{A}, v{A+1}")
        a(f"v_permlane16_swap_b32 v{A+2}, v{A+3}")
        a("s_nop 0")
        a(f"v_add_f32 v{A}, v{A}, v{A+1}")
        a(f"v_add_f32 v{A+2}, v{A+2}, v{A+3}")
        a("s_nop 0")
        a(dpp("v_add_f32", Z, A, A, "row_ror:8", bm="0x3"))
        a(dpp("v_add_f32", Z, A+2, A+2, "row_ror:8", bm="0xc"))
        for ctrl in ("quad_perm:[1,0,3,2]", "quad_perm:[2,3,0,1]", "row_half_mirror"):
            a("s_nop 1")
            a(dpp("v_add_f32", Z, Z, Z, ctrl))
        a(f"v_cvt_pk_bf16_f32 v{Z}, v{Z}, v{Z}")
        a(f"v_and_b32 v{Z}, s{sMASK}, v{Z}")
        a(f"v_mul_f32 v{Z}, {CZ}, v{Z}")
        a(f"v_cmp_gt_f32 vcc, v{Z}, v{vM}")
        a(f"s_cbranch_vccnz L_resc{lab}")
        a(f"L_back{lab}:")
        a(f"v_sub_f32 v{P}, v{Z}, v{vM}")
        a(f"v_exp_f32 v{P}, v{P}")
        a("s_nop 0")
        a(f"v_add_f32 v{vL}, v{vL}, v{P}")
        a(f"v_mov_b32 v{T}, v{P}")
        a("s_nop 1")
        a(f"v_permlane16_swap_b32 v{P}, v{T}")
        a("s_nop 1")
        a(f"v_mov_b32_dpp v{PB}, v{P} row_newbcast:0 row_mask:0xf bank_mask:0xf")
        a(f"v_mov_b32_dpp v{PB+1}, v{T} row_newbcast:0 row_mask:0xf bank_mask:0xf")
        a(f"v_mov_b32_dpp v{PB+2}, v{P} row_newbcast:8 row_mask:0xf bank_mask:0xf")
        a(f"v_mov_b32_dpp v{PB+3}, v{T} row_newbcast:8 row_mask:0xf bank_mask:0xf")
        if refill:
            a(f"s_waitcnt vmcnt({VW})")
        for i in range(4):
            axpy_row(a, vO, V+4*i, PB+i, U)
        if refill:
            refill4(V, dV, so, VF_)
    def claim():
        a(f"v_mov_b32 v{vCLM}, 1")
        a(f"v_mov_b32 v{vCHK}, 0")
        a("s_mov_b64 exec, 1")
        a(f"buffer_atomic_add v{vCLM}, v{vCHK}, s[{dWS}:{dWS+3}], s{sCNT} offen sc0 sc1")
        a("s_mov_b64 exec, -1")
    def resc(lab):
        a(f"L_resc{lab}:")
        a(f"v_max_f32 v{T}, v{Z}, v{vM}")
        for ctrl, rm in (("row_ror:8", "0xf"), ("row_bcast:15", "0xa"), ("row_bcast:31", "0xc")):
            a("s_nop 1")
            a(dpp("v_max_f32", T, T, T, ctrl, rm))
        a("s_nop 0")
        a(f"v_readlane_b32 s{sT0}, v{T}, 63")
        a("s_nop 1")
        a(f"v_subrev_f32 v{T}, s{sT0}, v{vM}")
        a(f"v_exp_f32 v{T}, v{T}")
        a(f"v_mov_b32 v{vM}, s{sT0}")
        a(f"v_mul_f32 v{vL}, v{vL}, v{T}")
        for k in range(4):
            a(f"v_pk_mul_f32 v[{vO+2*k}:{vO+2*k+1}], v[{vO+2*k}:{vO+2*k+1}], v[{T}:{T+1}] op_sel_hi:[1,0]")
        a(f"s_branch L_back{lab}")
    a(".p2align 6")
    a("L_loop:")
    tile(KA, VA, "A", so=sOFF)
    tile(KB, VB, "B", so=sOB)
    if cfg.get("stamps") and not cfg.get("epi"):
        for n2, itv in ((9, 2), (10, 5), (11, 8), (12, SI-1)):
            a(f"s_cmp_lg_u32 s{sIT}, {itv}")
            a(f"s_cbranch_scc1 L_nost{n2}")
            stamp(a, cfg, n2)
            a(f"L_nost{n2}:")
    if cfg.get("prog"):
        a("s_memrealtime s[96:97]")
        a("s_waitcnt lgkmcnt(0)")
        a("v_mov_b32 v22, s96")
        a("v_mov_b32 v23, 0")
        a("s_mov_b64 exec, 1")
        a(f"buffer_store_dword v22, v23, s[{dWS}:{dWS+3}], s98 offen")
        a("s_mov_b64 exec, -1")
        a("s_add_u32 s98, s98, 4")
    a(f"s_cmp_ge_u32 s{sIT}, {SI}")
    a("s_cbranch_scc1 L_dyn")
    a(f"s_cmp_lt_u32 s{sIT}, 11")
    a("s_cbranch_scc1 L_job")
    a("L_jobret:")
    a(f"s_add_u32 s{sIT}, s{sIT}, 1")
    a(f"s_add_u32 s{sOFF}, s{sOFF}, 0x10000")
    a(f"s_add_u32 s{sOB}, s{sOB}, 0x10000")
    a(f"s_cmp_lt_u32 s{sIT}, {SI-2}")
    a("s_cbranch_scc1 L_loop")
    a(f"s_cmp_eq_u32 s{sIT}, {SI}")
    a("s_cbranch_scc1 L_dyn0")
    a(f"s_cmp_eq_u32 s{sIT}, {SI-1}")
    a("s_cbranch_scc1 L_clm0")
    a.c("two iterations before the dynamic phase: fetch the per-batch 'slots cleared' counter")
    a(f"s_lshl_b32 s{sT0}, s{sB}, 4")
    a(f"s_add_u32 s{sT0}, s{sT0}, 128")
    a(f"v_mov_b32 v{vCHK}, s{sT0}")
    a(f"global_load_dword v{vCHK}, v{vCHK}, s[{sDBG_}:{sDBG_+1}] sc1")
    a("s_branch L_loop")
    a("L_clm0:")
    a.c("claims are allowed only once the counter's initialisation is known complete")
    a(f"v_readfirstlane_b32 s{sT0}, v{vCHK}")
    a(f"v_mov_b32 v{vCLM}, {NDYN}")
    if cfg.get("dynw", 8) < 8:
        a(f"s_cmp_ge_u32 s{sW}, {cfg['dynw']}")
        a("s_cbranch_scc1 L_loop")
    a(f"s_cmp_lt_u32 s{sT0}, 32")
    a("s_cbranch_scc1 L_noclm")
    claim()
    a("s_branch L_loop")
    a("L_dyn0:")
    a(f"s_mov_b32 s{sVALID}, 1")
    if cfg.get("dynbar", 1):
        a("s_barrier")
    dbgt(a, cfg, 7, 0, "d")
    dbgt(a, cfg, 13, 0, "g", neg=True)
    a("L_dyn:")
    a(f"s_cmp_eq_u32 s{sVALID}, 0")
    a("s_cbranch_scc1 L_epi")
    a(f"v_readfirstlane_b32 s{sT0}, v{vCLM}")
    a(f"s_min_u32 s{sT0}, s{sT0}, {NDYN}")
    if cfg.get("dsplit"):
        a(f"s_lshl_b32 s{sOFF}, s{sT0}, 12")
        a(f"s_add_u32 s{sOFF}, s{sOFF}, {16*NST*4096}")
        a(f"s_add_u32 s{sOB}, s{sOFF}, {NDYN*4096}")
        a(f"s_cmp_lt_u32 s{sT0}, {NDYN}")
        a(f"s_cselect_b32 s{sOFF}, s{sOFF}, s{sOB}")
    else:
        a(f"s_lshl_b32 s{sOFF}, s{sT0}, 13")
        a(f"s_add_u32 s{sOFF}, s{sOFF}, {16*NST*4096}")
        a(f"s_add_u32 s{sOB}, s{sOFF}, 0x1000")
        a(f"s_cmp_lt_u32 s{sT0}, {NDYN}")
    a(f"s_cselect_b32 s{sVALID}, 1, 0")
    a("s_cbranch_scc0 L_loop")
    claim()
    a("s_branch L_loop")
    a("L_noclm:")
    a(f"s_cmp_eq_u32 s{sS}, 1")
    a("s_cbranch_scc1 L_loop")
    a.c("half 0 owns the counter: only its own wave 1's init matters; wait for wave 1's gu signal (LDS count 8)")
    a(f"v_mov_b32 v{vCHK}, {CNT}")
    a("L_nocl2:")
    a(f"ds_read_b32 v{vCLM}, v{vCHK}")
    a("s_waitcnt lgkmcnt(0)")
    a(f"v_readfirstlane_b32 s{sT0}, v{vCLM}")
    a(f"s_cmp_lt_u32 s{sT0}, 8")
    a("s_cbranch_scc1 L_nocl2")
    claim()
    a("s_branch L_loop")
    for lab in "ABCDEF"[:NPRE]:
        resc(lab)
    def wo_issue():
        for i in range(4):
            a(f"buffer_load_dwordx4 v[{STG+4*i}:{STG+4*i+3}], v{vL16}, s[{dWO}:{dWO+3}], s{sJO} offen offset:{i*896} {WOF}")
        a(f"s_add_u32 s{sJO}, s{sJO}, {4*896}")
    def gu_issue(g0, g1):
        for g in range(g0, g1):
            a(f"buffer_load_dwordx4 v[{GUR+4*g}:{GUR+4*g+3}], v{vGUO}, s[{dGU}:{dGU+3}], s{sGO} offen {GUF}")
            a(f"s_add_u32 s{sGO}, s{sGO}, {8*3584}")
    G = 38; XG = 22; UG = STG
    a("L_job:")
    a(f"s_cmp_eq_u32 s{sIT}, 0")
    a("s_cbranch_scc1 L_job0")
    a(f"s_cmp_gt_u32 s{sIT}, 8")
    a("s_cbranch_scc1 L_jobwd")
    a.c("slots 1..8: interleave two staged wo row pairs into W + idx")
    a(f"s_set_gpr_idx_on s{sIDX}, 0x8")
    a("s_nop 0")
    for pr in range(2):
        for e in range(4):
            r0 = STG + 8*pr + e; r1 = r0 + 4
            a(f"v_perm_b32 v{W+8*pr+2*e}, v{r1}, v{r0}, s{sPL}")
            a(f"v_perm_b32 v{W+8*pr+2*e+1}, v{r1}, v{r0}, s{sPH}")
    a("s_set_gpr_idx_off")
    a(f"s_add_u32 s{sIDX}, s{sIDX}, 16")
    a(f"s_cmp_eq_u32 s{sIT}, 8")
    a("s_cbranch_scc1 L_job8")
    a(f"s_cmp_eq_u32 s{sIT}, 4")
    a("s_cbranch_scc1 L_job4")
    wo_issue()
    a(f"s_cmp_gt_u32 s{sIT}, 3")
    a("s_cbranch_scc1 L_jobret")
    a(f"s_cmp_eq_u32 s{sIT}, 2")
    a("s_cbranch_scc1 L_job2")
    a(f"s_cmp_eq_u32 s{sIT}, 3")
    a("s_cbranch_scc1 L_job3")
    gu_issue(4, 8)
    a("s_branch L_jobret")
    a("L_job2:")
    gu_issue(8, 11)
    a("s_branch L_jobret")
    a("L_job3:")
    gu_issue(11, 14)
    a("s_branch L_jobret")
    a("L_job8:")
    a.c("w_down rows 64j+8w+i")
    a(f"s_lshl_b32 s{sT0}, s{sJ}, 6")
    a(f"s_lshl_b32 s{sT1}, s{sW}, 3")
    a(f"s_add_u32 s{sT0}, s{sT0}, s{sT1}")
    a(f"s_mul_i32 s{sJO}, s{sT0}, 896")
    for i in range(4):
        a(f"buffer_load_dwordx4 v[{STG+4*i}:{STG+4*i+3}], v{vL16}, s[{dWD}:{dWD+3}], s{sJO} offen offset:{i*896} {WDF}")
    a(f"s_add_u32 s{sJO}, s{sJO}, {4*896}")
    a("s_branch L_jobret")
    a("L_job0:")
    a("s_waitcnt vmcnt(16)")
    a.c("wave 1: its clearing stores are complete (older than everything waited for) -> count them")
    a(f"s_cmp_lg_u32 s{sW}, 1")
    a("s_cbranch_scc1 L_nocnt")
    a(f"s_lshl_b32 s{sT0}, s{sB}, 4")
    a(f"s_add_u32 s{sT0}, s{sT0}, 128")
    a(f"v_mov_b32 v{XG}, s{sT0}")
    a(f"v_mov_b32 v{XG+1}, 1")
    a("s_mov_b64 exec, 1")
    a(f"global_atomic_add v{XG}, v{XG+1}, s[{sDBG_}:{sDBG_+1}] sc1")
    a("s_mov_b64 exec, -1")
    a("L_nocnt:")
    a.c("wo rows h*256+32w+i")
    a(f"s_lshl_b32 s{sT0}, s{sH}, 8")
    a(f"s_lshl_b32 s{sT1}, s{sW}, 5")
    a(f"s_add_u32 s{sT0}, s{sT0}, s{sT1}")
    a(f"s_mul_i32 s{sJO}, s{sT0}, 896")
    a(f"s_mov_b32 s{sIDX}, 0")
    wo_issue()
    if NPRE == 6:
        tile(KE, VE, "E", refill=False)
        tile(KF, VF, "F", refill=False)
    gu_issue(0, 4)
    a.c("tiles C and D (prefetched in the prologue)")
    tile(KC, VC, "C", refill=False)
    tile(KD, VD, "D", refill=False)
    a("s_branch L_jobret")
    a("L_job4:")
    a.c("gate/up partial sums; multipliers xn[b][112*(w&3) + 8i + (lane>>3)]")
    a(f"v_lshrrev_b32 v{vA0}, 3, v{vLANE}")
    a(f"v_lshlrev_b32 v{vA0}, 2, v{vA0}")
    a(f"s_and_b32 s{sT0}, s{sW}, 3")
    a(f"s_mul_i32 s{sT0}, s{sT0}, 448")
    a(f"s_lshl_b32 s{sT1}, s{sB}, 11")
    a(f"s_add_u32 s{sT0}, s{sT0}, s{sT1}")
    a(f"v_add_u32 v{vA0}, s{sT0}, v{vA0}")
    for k in range(7):
        a(f"ds_read2_b32 v[{XG+2*k}:{XG+2*k+1}], v{vA0} offset0:{XT//4+16*k} offset1:{XT//4+16*k+8}")
    for k in range(8):
        a(f"v_mov_b32 v{G+k}, 0")
    a("s_waitcnt lgkmcnt(0)")
    for i in range(14):
        axpy_row(a, G, GUR+4*i, XG+i, UG)
    wo_issue()
    for k in range(4):
        a(f"v_permlane32_swap_b32 v{G+k}, v{G+4+k}")
    a("s_nop 0")
    for k in range(4):
        a(f"v_add_f32 v{G+k}, v{G+k}, v{G+4+k}")
    a("s_nop 0")
    a(f"v_permlane16_swap_b32 v{G}, v{G+2}")
    a(f"v_permlane16_swap_b32 v{G+1}, v{G+3}")
    a("s_nop 0")
    a(f"v_add_f32 v{G}, v{G}, v{G+2}")
    a(f"v_add_f32 v{G+1}, v{G+1}, v{G+3}")
    a.c("LDS addr = GP + w*256 + ((lane&7)*8 + (lane>>3))*4")
    a(f"v_and_b32 v{XG}, 7, v{vLANE}")
    a(f"v_lshrrev_b32 v{XG+1}, 3, v{vLANE}")
    a(dpp("v_add_f32", G+4, G, G, "row_ror:8", bm="0x3"))
    a(dpp("v_add_f32", G+4, G+1, G+1, "row_ror:8", bm="0xc"))
    a(f"v_lshl_add_u32 v{XG}, v{XG}, 3, v{XG+1}")
    a(f"v_lshlrev_b32 v{XG}, 2, v{XG}")
    a(f"s_lshl_b32 s{sT0}, s{sW}, 8")
    a(f"v_add_u32 v{XG}, s{sT0}, v{XG}")
    a(f"ds_write_b32 v{XG}, v{G+4} offset:{GP}")
    a(f"v_mov_b32 v{XG+2}, {CNT}")
    a(f"v_mov_b32 v{XG+3}, 1")
    a("s_waitcnt lgkmcnt(0)")
    a("s_mov_b64 exec, 1")
    a(f"ds_add_u32 v{XG+2}, v{XG+3}")
    a("s_mov_b64 exec, -1")
    a("s_branch L_jobret")
    a("L_jobwd:")
    a(f"v_lshlrev_b32 v{vA0}, 5, v{vLANE}")
    a(f"s_lshl_b32 s{sT0}, s{sW}, 11")
    a(f"v_add_u32 v{vA0}, s{sT0}, v{vA0}")
    a(f"s_cmp_eq_u32 s{sIT}, 10")
    a("s_cbranch_scc1 L_job10")
    a(f"v_mov_b32 v{XG}, {CNT}")
    a("L_cntspin:")
    a(f"ds_read_b32 v{XG+1}, v{XG}")
    a("s_waitcnt lgkmcnt(0)")
    a(f"v_readfirstlane_b32 s{sT0}, v{XG+1}")
    a(f"s_cmp_ge_u32 s{sT0}, 8")
    a("s_cbranch_scc1 L_cntok")
    a("s_sleep 16")
    a("s_branch L_cntspin")
    a("L_cntok:")
    a(f"v_lshlrev_b32 v{XG+8}, 2, v{vLANE}")
    a(f"v_add_u32 v{XG+8}, {GP}, v{XG+8}")
    for k in range(4):
        a(f"ds_read2st64_b32 v[{XG+2*k}:{XG+2*k+1}], v{XG+8} offset0:{2*k} offset1:{2*k+1}")
    for k in range(8):
        a(f"v_mov_b32 v{G+k}, 0")
    a(f"s_lshl_b32 s{sT0}, s{sW}, 3")
    a("s_waitcnt lgkmcnt(0)")
    a(f"v_add_f32 v{XG}, v{XG}, v{XG+1}")
    a(f"v_add_f32 v{XG+2}, v{XG+2}, v{XG+3}")
    a(f"v_add_f32 v{XG+4}, v{XG+4}, v{XG+5}")
    a(f"v_add_f32 v{XG+6}, v{XG+6}, v{XG+7}")
    a(f"v_add_f32 v{XG}, v{XG}, v{XG+2}")
    a(f"v_add_f32 v{XG+4}, v{XG+4}, v{XG+6}")
    bf16_round(a, XG)
    bf16_round(a, XG+4)
    a(f"v_mul_f32 v{XG}, {f32(-LOG2E)}, v{XG}")
    a(f"v_exp_f32 v{XG}, v{XG}")
    a("s_nop 0")
    a(f"v_add_f32 v{XG}, 1.0, v{XG}")
    a(f"v_rcp_f32 v{XG}, v{XG}")
    a("s_nop 0")
    bf16_round(a, XG)
    a(f"v_mul_f32 v{XG}, v{XG}, v{XG+4}")
    bf16_round(a, XG)
    a("s_nop 0")
    for i in range(8):
        a(f"v_readlane_b32 s{sP+i}, v{XG}, s{sT0}")
        a(f"s_add_u32 s{sT0}, s{sT0}, 1")
    a("s_nop 0")
    UW = 30
    for i in range(4):
        axpy_row(a, G, STG+4*i, sP+i, UW, sgpr=True)
    for i in range(4):
        a(f"buffer_load_dwordx4 v[{STG+4*i}:{STG+4*i+3}], v{vL16}, s[{dWD}:{dWD+3}], s{sJO} offen offset:{i*896} {WDF}")
    a(f"ds_write_b128 v{vA0}, v[{G}:{G+3}] offset:{YG}")
    a(f"ds_write_b128 v{vA0}, v[{G+4}:{G+7}] offset:{YG+16}")
    a("s_branch L_jobret")
    a("L_job10:")
    a(f"ds_read_b128 v[{G}:{G+3}], v{vA0} offset:{YG}")
    a(f"ds_read_b128 v[{G+4}:{G+7}], v{vA0} offset:{YG+16}")
    a("s_waitcnt lgkmcnt(0)")
    for i in range(4):
        axpy_row(a, G, STG+4*i, sP+4+i, UW, sgpr=True)
    a(f"ds_write_b128 v{vA0}, v[{G}:{G+3}] offset:{YG}")
    a(f"ds_write_b128 v{vA0}, v[{G+4}:{G+7}] offset:{YG+16}")
    a("s_branch L_jobret")
    a("L_epi:")
    if cfg.get("dbgb"):
        a(f"s_cmp_lg_u32 s{sW}, 0")
        a(f"s_cbranch_scc1 L_dtb")
        a("s_memrealtime s[96:97]")
        a(f"s_lshl_b32 s98, s{sB if cfg['dbgb'] == 1 else sH}, 3")
        if cfg["dbgb"] == 2: a("s_lshr_b32 s98, s98, 1"); a("s_and_b32 s98, s98, 0x38")
        a("s_add_u32 s98, s98, 4")
        a(f"v_mov_b32 v22, s98")
        a("s_waitcnt lgkmcnt(0)")
        a("v_mov_b32 v23, s96")
        a("s_mov_b64 exec, 1")
        a(f"global_atomic_umax v22, v23, s[{sDBG_}:{sDBG_+1}] sc1")
        a("s_mov_b64 exec, -1")
        a(f"L_dtb:")
    dbgt(a, cfg, 3, 0, "b")
    dbgt(a, cfg, 9, 0, "e", neg=True)
    stamp(a, cfg, 4)
    CW = 5
    CL = STG; XR = STG+2
    NCW = cfg.get("ncw", 1)
    a(f"s_sub_u32 s{sT0}, s{sW}, {CW}")
    a(f"s_cmp_ge_u32 s{sT0}, {NCW}")
    a("s_cbranch_scc1 L_epi1")
    a.c("consumer wave: 'slots cleared' counter of batch b, x for the residual")
    a(f"s_lshl_b32 s{sT0}, s{sB}, 4")
    a(f"s_add_u32 s{sT0}, s{sT0}, 128")
    a(f"v_mov_b32 v{CL+1}, s{sT0}")
    a(f"global_load_dword v{CL}, v{CL+1}, s[{sDBG_}:{sDBG_+1}] sc1")
    a(f"v_and_b32 v{CL+4}, 3, v{vLANE}")
    a(f"v_lshlrev_b32 v{CL+4}, 3, v{CL+4}")
    a(f"s_mul_i32 s{sT1}, s{sB}, 896")
    srd(a, dX, sX_, f"s{sT1}", 896)
    a(f"s_lshl_b32 s{sT0}, s{sJ}, 5")
    a(f"buffer_load_dwordx2 v[{XR}:{XR+1}], v{CL+4}, s[{dX}:{dX+3}], s{sT0} offen")
    if cfg.get("touch", 0):
        a.c("touch the output page now (value unused) so the final store does not pay the address translation")
        srd(a, dGU, sOUT_, f"s{sT1}", 896)
        a(f"buffer_load_dword v{CL+5}, v{CL+4}, s[{dGU}:{dGU+3}], s{sT0} offen")
    a("L_epi1:")
    a(dpp("v_add_f32", vL, vL, vL, "row_ror:8"))
    for k in range(4):
        a(f"v_permlane32_swap_b32 v{vO+k}, v{vO+4+k}")
    a(dpp("v_add_f32", vL, vL, vL, "row_bcast:15", "0xa"))
    for k in range(4):
        a(f"v_add_f32 v{vO+k}, v{vO+k}, v{vO+4+k}")
    a(dpp("v_add_f32", vL, vL, vL, "row_bcast:31", "0xc"))
    a(f"s_mul_i32 s{sT0}, s{sW}, {OPS}")
    a(f"v_add_u32 v{vA0}, s{sT0}, v{vA1}")
    a(f"ds_write_b128 v{vA0}, v[{vO}:{vO+3}] offset:{OP}")
    a(f"s_lshl_b32 s{sT0}, s{sW}, 3")
    a(f"v_mov_b32 v{vA0}, s{sT0}")
    a("s_lshl_b64 exec, 1, 63")
    a(f"ds_write_b64 v{vA0}, v[{vM}:{vL}] offset:{ML}")
    a("s_mov_b64 exec, -1")
    R = 22
    a(f"v_and_b32 v{R}, 7, v{vLANE}")
    a(f"v_lshlrev_b32 v{vA0}, 3, v{R}")
    a(f"v_mul_u32_u24 v{R}, {OPS}, v{R}")
    a(f"v_lshrrev_b32 v{R+1}, 3, v{vLANE}")
    a(f"v_lshl_add_u32 v{R}, v{R+1}, 4, v{R}")
    a(f"s_lshl_b32 s{sT0}, s{sW}, 7")
    a(f"v_add_u32 v{R}, s{sT0}, v{R}")
    a("s_waitcnt lgkmcnt(0)")
    a("s_barrier")
    MX = 24; O4 = 28; MM = 26; Y = 32
    if cfg.get("epi"): stamp(a, cfg, 9)
    a(f"ds_read_b64 v[{MX}:{MX+1}], v{vA0} offset:{ML}")
    a(f"ds_read_b128 v[{O4}:{O4+3}], v{R} offset:{OP}")
    for k in range(8):
        a(f"v_mov_b32 v{Y+k}, 0")
    a("s_waitcnt lgkmcnt(1)")
    a(dpp("v_max_f32", MM, MX, MX, "quad_perm:[1,0,3,2]"))
    a("s_nop 1")
    a(dpp("v_max_f32", MM, MM, MM, "quad_perm:[2,3,0,1]"))
    a("s_nop 1")
    a(dpp("v_max_f32", MM, MM, MM, "row_half_mirror"))
    a(f"v_sub_f32 v{MX}, v{MX}, v{MM}")
    a(f"v_exp_f32 v{MX}, v{MX}")
    a("s_waitcnt lgkmcnt(0)")
    a(f"v_mul_f32 v{MM+1}, v{MX+1}, v{MX}")
    for k in range(4):
        a(f"v_mul_f32 v{O4+k}, v{O4+k}, v{MX}")
    for ctrl in ("quad_perm:[1,0,3,2]", "quad_perm:[2,3,0,1]", "row_half_mirror"):
        a(dpp("v_add_f32", MM+1, MM+1, MM+1, ctrl))
        for k in range(4):
            a(dpp("v_add_f32", O4+k, O4+k, O4+k, ctrl))
    a(f"v_cvt_pk_bf16_f32 v{O4}, v{O4}, v{O4+1}")
    a(f"v_cvt_pk_bf16_f32 v{O4+1}, v{O4+2}, v{O4+3}")
    a("s_nop 0")
    for dq in range(8):
        a(f"v_readlane_b32 s{sP+2*dq}, v{O4}, {8*dq}")
        a(f"v_readlane_b32 s{sP+2*dq+1}, v{O4+1}, {8*dq}")
    a(f"v_lshlrev_b32 v{vA0}, 5, v{vLANE}")
    a(f"s_lshl_b32 s{sT0}, s{sW}, 11")
    a(f"v_add_u32 v{vA0}, s{sT0}, v{vA0}")
    if cfg.get("epi"): stamp(a, cfg, 10)
    for k in range(16):
        for e in range(8):
            a(f"v_dot2c_f32_bf16 v{Y+e}, s{sP+k}, v{W+8*k+e}")
    a("s_nop 3")
    if cfg.get("epi"): stamp(a, cfg, 11)
    a(f"ds_write_b128 v{vA0}, v[{Y}:{Y+3}] offset:{YA}")
    a(f"ds_write_b128 v{vA0}, v[{Y+4}:{Y+7}] offset:{YA+16}")
    a("s_waitcnt lgkmcnt(0)")
    a("s_barrier")
    stamp(a, cfg, 5)
    a(f"s_sub_u32 s{sT0}, s{sW}, {CW}")
    a(f"s_cmp_lt_u32 s{sT0}, {NCW}")
    a("s_cbranch_scc1 L_cons")
    a(f"s_cmp_gt_u32 s{sW}, 4")
    a("s_cbranch_scc1 L_fin")
    a(f"s_cmp_eq_u32 s{sW}, 4")
    a("s_cbranch_scc1 L_stml")
    a.c("waves 0,1: YA ; waves 2,3: YG ; n = (w&1)*64 + lane < 112")
    a(f"s_and_b32 s{sT0}, s{sW}, 1")
    a(f"s_lshl_b32 s{sT0}, s{sT0}, 10")
    a(f"v_add_u32 v{vA0}, s{sT0}, v{vL16}")
    a(f"s_lshr_b32 s{sT1}, s{sW}, 1")
    a(f"s_mov_b32 s{sT0}, {YA}")
    a(f"s_cmp_eq_u32 s{sT1}, 0")
    a(f"s_cselect_b32 s{sT0}, s{sT0}, {YG}")
    a(f"v_add_u32 v{R}, s{sT0}, v{vA0}")
    rds = [24, 28, 32, 36, 40, 44, 48, 52]
    for w2 in range(8):
        a(f"ds_read_b128 v[{rds[w2]}:{rds[w2]+3}], v{R} offset:{2048*w2}")
    a(f"s_mul_i32 s{sT1}, s{sT1}, 1792")
    a(f"s_add_u32 s{sT0}, s{sSLOT}, s{sT1}")
    a(f"v_cmp_gt_u32 vcc, 1792, v{vA0}")
    RD = rds[0]
    for w2 in range(1, 8):
        a(f"s_waitcnt lgkmcnt({7-w2})")
        a(f"v_pk_add_f32 v[{RD}:{RD+1}], v[{RD}:{RD+1}], v[{rds[w2]}:{rds[w2]+1}]")
        a(f"v_pk_add_f32 v[{RD+2}:{RD+3}], v[{RD+2}:{RD+3}], v[{rds[w2]+2}:{rds[w2]+3}]")
    a("s_and_saveexec_b64 s[100:101], vcc")
    a(f"buffer_store_dwordx4 v[{RD}:{RD+3}], v{vA0}, s[{dWS}:{dWS+3}], s{sT0} offen sc1")
    a("s_mov_b64 exec, -1")
    if cfg.get("epi"): stamp(a, cfg, 12)
    a("s_branch L_fin")
    a("L_stml:")
    a(f"v_mov_b32 v{vA0}, 3584")
    a("s_mov_b64 exec, 1")
    a(f"buffer_store_dwordx2 v[{MM}:{MM+1}], v{vA0}, s[{dWS}:{dWS+3}], s{sSLOT} offen sc1")
    a("s_mov_b64 exec, -1")
    a("s_branch L_fin")
    a("L_cons:")
    a(f"s_cmp_ge_u32 s{sJ}, 28")
    a("s_cbranch_scc1 L_fin")
    VO_, VM_ = 22, 23
    a(f"v_lshrrev_b32 v{VM_}, 2, v{vLANE}")
    a(f"v_lshlrev_b32 v{VM_}, 12, v{VM_}")
    a(f"v_and_b32 v{VO_}, 3, v{vLANE}")
    a(f"v_lshl_add_u32 v{VO_}, v{VO_}, 4, v{VM_}")
    a(f"s_lshl_b32 s{sT0}, s{sB}, 17")
    a(f"s_lshl_b32 s{sT1}, s{sJ}, 6")
    a(f"s_add_u32 s{sT1}, s{sT1}, s{sT0}")
    a(f"s_add_u32 s{sT2}, s{sT1}, 0x10000")
    a(f"s_add_u32 s{sT3}, s{sT0}, 0x10000")
    a(f"s_mov_b32 s{sIT}, 0")
    a("s_waitcnt vmcnt(0)")
    a("L_clrchk:")
    a(f"v_cmp_gt_u32 vcc, 32, v{CL}")
    a("s_cbranch_vccz L_poll0")
    a("s_sleep 8")
    a(f"global_load_dword v{CL}, v{CL+1}, s[{sDBG_}:{sDBG_+1}] sc1")
    a(f"s_add_u32 s{sIT}, s{sIT}, 1")
    a(f"s_cmp_lt_u32 s{sIT}, {SPIN}")
    a("s_waitcnt vmcnt(0)")
    a("s_cbranch_scc1 L_clrchk")
    a("L_poll0:")
    A0, A1, G0, G1, M0, M1 = 24, 28, 32, 36, 40, 42
    loads = [
        (A0, 4, VO_, sT1, 0), (A1, 4, VO_, sT2, 0), (G0, 4, VO_, sT1, 1792), (G1, 4, VO_, sT2, 1792),
        (M0, 2, VM_, sT0, 3584), (M1, 2, VM_, sT3, 3584)]
    masks = [sP + 2*i for i in range(6)]
    for m in masks:
        a(f"s_mov_b64 s[{m}:{m+1}], -1")
    a(f"s_mov_b32 s{sIT}, 0")
    DN = 46
    if NCW > 1:
        a(f"v_mov_b32 v{DN}, {CNT+8}")
        a(f"v_mov_b32 v{DN+1}, 1")
        for k in range(1, NCW):
            a(f"s_cmp_lt_u32 s{sW}, {CW+k}")
            a("s_cbranch_scc1 L_poll")
            a(f"s_sleep {cfg.get('stag', 10)}")
    a("L_poll:")
    for n2, ((r, cnt, vo, so, off), m) in enumerate(zip(loads, masks)):
        a(f"s_mov_b64 exec, s[{m}:{m+1}]")
        a(f"s_cbranch_execz L_skip{n2}")
        a(f"buffer_load_dwordx{cnt} v[{r}:{r+cnt-1}], v{vo}, s[{dWS}:{dWS+3}], s{so} offen offset:{off} sc1")
        a(f"L_skip{n2}:")
    a("s_mov_b64 exec, -1")
    a("s_waitcnt vmcnt(0)")
    TM = 44
    for (r, cnt, vo, so, off), m in zip(loads, masks):
        if cnt == 4:
            a(f"v_max3_u32 v{TM}, v{r}, v{r+1}, v{r+2}")
            a(f"v_max_u32 v{TM}, v{TM}, v{r+3}")
        else:
            a(f"v_max_u32 v{TM}, v{r}, v{r+1}")
        a(f"v_cmp_eq_u32 s[{m}:{m+1}], -1, v{TM}")
    a("s_nop 1")
    a(f"s_or_b64 s[100:101], s[{masks[0]}:{masks[0]+1}], s[{masks[1]}:{masks[1]+1}]")
    for m in masks[2:]:
        a(f"s_or_b64 s[100:101], s[100:101], s[{m}:{m+1}]")
    a("s_cbranch_scc0 L_ready")
    if NCW > 1:
        a.c("another consumer wave of this workgroup may already have finished the job")
        a(f"ds_read_b32 v{TM}, v{DN}")
        a("s_waitcnt lgkmcnt(0)")
        a(f"v_readfirstlane_b32 s{sIDX}, v{TM}")
        a(f"s_cmp_lg_u32 s{sIDX}, 0")
        a("s_cbranch_scc1 L_fin")
    a(f"s_add_u32 s{sIT}, s{sIT}, 1")
    a(f"s_cmp_lt_u32 s{sIT}, {SPIN}")
    if SLEEP:
        a(f"s_sleep {SLEEP}")
    a("s_cbranch_scc1 L_poll")
    a("L_ready:")
    if NCW > 1:
        a(f"ds_write_b32 v{DN}, v{DN+1}")
    stamp(a, cfg, 6)
    for M in (M0, M1):
        a(dpp("v_max_f32", TM + (M == M1), M, M, "row_half_mirror"))
    for M in (M0, M1):
        a(f"v_sub_f32 v{M}, v{M}, v{TM + (M == M1)}")
    for M in (M0, M1):
        a(f"v_exp_f32 v{M}, v{M}")
    a("s_nop 0")
    for M in (M0, M1):
        a(f"v_mul_f32 v{M+1}, v{M+1}, v{M}")
    a("s_nop 0")
    for M in (M0, M1):
        a(dpp("v_add_f32", M+1, M+1, M+1, "row_half_mirror"))
    for M in (M0, M1):
        a(f"v_rcp_f32 v{M+1}, v{M+1}")
    a(f"v_pk_add_f32 v[{G0}:{G0+1}], v[{G0}:{G0+1}], v[{G1}:{G1+1}]")
    a(f"v_pk_add_f32 v[{G0+2}:{G0+3}], v[{G0+2}:{G0+3}], v[{G1+2}:{G1+3}]")
    for M in (M0, M1):
        a(f"v_mul_f32 v{M}, v{M}, v{M+1}")
    a(f"v_pk_mul_f32 v[{A0}:{A0+1}], v[{A0}:{A0+1}], v[{M0}:{M0+1}] op_sel_hi:[1,0]")
    a(f"v_pk_mul_f32 v[{A0+2}:{A0+3}], v[{A0+2}:{A0+3}], v[{M0}:{M0+1}] op_sel_hi:[1,0]")
    a(pkfma_bcast(A0, A1, M1))
    a(pkfma_bcast(A0+2, A1+2, M1))
    regs8 = [G0, G0+1, G0+2, G0+3, A0, A0+1, A0+2, A0+3]
    for ctrl in ("row_ror:4", "row_ror:8"):
        for r in regs8:
            a(dpp("v_add_f32", r, r, r, ctrl))
    a("s_nop 0")
    for k in range(4):
        a(f"v_permlane32_swap_b32 v{A0+k}, v{G0+k}")
    a("s_nop 0")
    for k in range(4):
        a(f"v_add_f32 v{A0+k}, v{A0+k}, v{G0+k}")
    for k in range(4):
        a(f"v_mov_b32 v{G0+k}, v{A0+k}")
    a("s_nop 0")
    for k in range(4):
        a(f"v_permlane16_swap_b32 v{A0+k}, v{G0+k}")
    a("s_nop 0")
    for k in range(4):
        a(f"v_add_f32 v{A0+k}, v{A0+k}, v{G0+k}")
    for k in range(4):
        bf16_round(a, A0+k)
    for k in range(4):
        a(f"v_mov_b32 v{G0+k}, v{A0+k}")
    a(f"v_lshlrev_b32 v{A1}, 16, v{XR}")
    a(f"v_and_b32 v{A1+1}, s{sMASK}, v{XR}")
    for k in range(4):
        a(f"v_permlane32_swap_b32 v{A0+k}, v{G0+k}")
    a(f"v_lshlrev_b32 v{A1+2}, 16, v{XR+1}")
    a(f"v_and_b32 v{A1+3}, s{sMASK}, v{XR+1}")
    for k in range(4):
        a(f"v_add_f32 v{A0+k}, v{A0+k}, v{A1+k}")
    for k in range(4):
        bf16_round(a, A0+k)
    for k in range(4):
        a(f"v_add_f32 v{A0+k}, v{A0+k}, v{G0+k}")
    a(f"v_cvt_pk_bf16_f32 v{A0}, v{A0}, v{A0+1}")
    a(f"v_cvt_pk_bf16_f32 v{A0+1}, v{A0+2}, v{A0+3}")
    a(f"s_mul_i32 s{sT1}, s{sB}, 896")
    srd(a, dGU, sOUT_, f"s{sT1}", 896)
    a(f"s_lshl_b32 s{sT0}, s{sJ}, 5")
    a("s_mov_b64 exec, 15")
    a(f"buffer_store_dwordx2 v[{A0}:{A0+1}], v{CL+4}, s[{dGU}:{dGU+3}], s{sT0} offen {cfg.get('outf','')}")
    a("s_mov_b64 exec, -1")
    dbgt(a, cfg, 1, None, "a")
    a("L_fin:")
    if cfg.get("stamps"):
        a("s_waitcnt vmcnt(0)")
        stamp(a, cfg, 7)
        a("v_writelane_b32 v7, s98, 0")
        a("s_getreg_b32 s96, hwreg(HW_REG_XCC_ID)")
        a("v_writelane_b32 v7, s96, 8")
        a(f"s_lshl_b32 s{sT0}, s2, 3")
        a(f"s_add_u32 s{sT0}, s{sT0}, s{sW}")
        a(f"s_lshl_b32 s{sT0}, s{sT0}, 6")
        a(f"s_add_u32 s{sT0}, s{sT0}, 0x200000")
        a(f"v_lshlrev_b32 v{vA0}, 2, v{vLANE}")
        a("s_mov_b64 exec, 0xffff")
        a(f"buffer_store_dword v7, v{vA0}, s[{dWS}:{dWS+3}], s{sT0} offen")
    a("L_end:")
    a("s_endpgm")
    hdr = open(REF).read().split("; Override launch")[0] if os.path.exists(REF) else ""
    return hdr + f"""; @launch grid=(256,1,1) block=(512,1,1) lds={LDS_BYTES}
""" + DOC + f""".amdgcn_target "amdgcn-amd-amdhsa--gfx950"
.text
.globl {KN}
.p2align 8
.type {KN},@function
{KN}:
""" + a.text() + f""".section .rodata,"a"
.p2align 6
.amdhsa_kernel {KN}
  .amdhsa_next_free_vgpr 256
  .amdhsa_next_free_sgpr 102
  .amdhsa_accum_offset 256
  .amdhsa_group_segment_fixed_size 0
  .amdhsa_kernarg_size 96
  .amdhsa_user_sgpr_count 2
  .amdhsa_user_sgpr_kernarg_segment_ptr 1
  .amdhsa_system_sgpr_workgroup_id_x 1
.end_amdhsa_kernel
"""

if __name__ == "__main__":
    name = sys.argv[1]
    cfg = {"n1": 6, "spr1": 20, "n2": 6, "spr2": 30, "pace": 99, "n0": 4, "outf": "sc1", "sleep": 1, "vw": 12, "dynw": 4, "bar0": 0}
    cfg.update(json.loads(sys.argv[2]) if len(sys.argv) > 2 else {})
    open(name, "w").write(gen(cfg))
```
